```python
import torch

def _softmax(x, axis=-1):
    return torch.softmax(x, dim=axis)
def _gelu(x):
    return torch.nn.functional.gelu(x, approximate="tanh")
def _silu(x):
    return torch.nn.functional.silu(x)
def _sigmoid(x):
    return torch.sigmoid(x)
def _layernorm(x, axis=-1, eps=1e-5):
    m = x.mean(dim=axis, keepdim=True)
    v = x.var(dim=axis, keepdim=True, unbiased=False)
    return (x - m) / torch.sqrt(v + eps)
def _scatter_add(tgt, idx, src, axis=0):
    return tgt.clone().index_add_(axis, idx, src)
def _segment_sum(src, seg, n):
    out = torch.zeros((n,) + src.shape[1:], dtype=src.dtype)
    return out.index_add_(0, seg, src)
def _pad(x, pw):
    flat = tuple(v for pair in reversed(pw) for v in pair)
    return torch.nn.functional.pad(x, flat)

kernel_name = 'gated_mix__softmax_full_mha__softmax_full_mha__prompt'

def setup_inputs():

    _w = (lambda a: (lambda t: t.to(torch.bfloat16) if t.is_floating_point() else t)(torch.as_tensor(a)))
    def _A_setup():
        B, S, D = 1, 2048, 576
        return {
            "x": _w((lambda *s: torch.randn(*s, dtype=torch.bfloat16) * 0.05)(B, S, D)),
            "wqkv": _w((lambda *s: torch.randn(*s, dtype=torch.bfloat16) * 0.8)(D, 3 * D)),
            "wo": _w((lambda *s: torch.randn(*s, dtype=torch.bfloat16) * 0.05)(D, D)),
        }
    _A_in = _A_setup()

    def _B_setup():
        B, S, D = 1, 2048, 576
        return {
            "x": _w((lambda *s: torch.randn(*s, dtype=torch.bfloat16) * 0.05)(B, S, D)),
            "wqkv": _w((lambda *s: torch.randn(*s, dtype=torch.bfloat16) * 0.8)(D, 3 * D)),
            "wo": _w((lambda *s: torch.randn(*s, dtype=torch.bfloat16) * 0.05)(D, D)),
        }
    _B_in = _B_setup()

    return {
        "A_x": _A_in["x"],
        "A_wqkv": _A_in["wqkv"],
        "A_wo": _A_in["wo"],
        "B_x": _B_in["x"],
        "B_wqkv": _B_in["wqkv"],
        "B_wo": _B_in["wo"],
        "gate_w": _w((lambda *s: torch.randn(*s, dtype=torch.bfloat16) * 0.05)(576) * 16.0),
    }

def reference(A_x, A_wqkv, A_wo, B_x, B_wqkv, B_wo, gate_w):
    def _A_ref(x, wqkv, wo):
        B, S, D = x.shape
        H = 32; Dh = D // H
        qkv = (lambda x, *d: x.permute(*d))((x @ wqkv).reshape(B, S, 3, H, Dh), 2, 0, 3, 1, 4)
        q, k, v = qkv[0], qkv[1], qkv[2]
        scale = Dh ** -0.5
        scores = torch.einsum("bhqd,bhkd->bhqk", q, k) * scale
        p = _softmax(scores, axis=-1)
        o = torch.einsum("bhqk,bhkd->bhqd", p, v)
        return (lambda x, *d: x.permute(*d))(o, 0, 2, 1, 3).reshape(B, S, D) @ wo

    def _B_ref(x, wqkv, wo):
        B, S, D = x.shape
        H = 32; Dh = D // H
        qkv = (lambda x, *d: x.permute(*d))((x @ wqkv).reshape(B, S, 3, H, Dh), 2, 0, 3, 1, 4)
        q, k, v = qkv[0], qkv[1], qkv[2]
        scale = Dh ** -0.5
        scores = torch.einsum("bhqd,bhkd->bhqk", q, k) * scale
        p = _softmax(scores, axis=-1)
        o = torch.einsum("bhqk,bhkd->bhqd", p, v)
        return (lambda x, *d: x.permute(*d))(o, 0, 2, 1, 3).reshape(B, S, D) @ wo

    x = A_x
    g = _sigmoid((x * gate_w).sum(-1, keepdims=True))
    a = _A_ref(x, A_wqkv, A_wo)
    b = _B_ref(x, B_wqkv, B_wo)
    return g * a + (1 - g) * b
```

```python
import re

class Asm:
    def __init__(self):
        self.lines = []
        self._uid = 0
    def __call__(self, text):
        for ln in text.strip("\n").split("\n"):
            ln = ln.strip()
            if ln:
                self.lines.append(ln)
    def label(self, name):
        self.lines.append(name + ":")
    def uid(self, base):
        self._uid += 1
        return f"{base}_{self._uid}"
    def nop(self, n):
        while n > 0:
            k = min(n, 16)
            self(f"s_nop {k-1}")
            n -= k
    def text(self):
        out = []
        for ln in self.lines:
            out.append(ln if (ln.endswith(":") or ln.startswith(".")) else "    " + ln)
        return "\n".join(out) + "\n"

def vr(b, n=1):
    return f"v{b}" if n == 1 else f"v[{b}:{b+n-1}]"
def sr(b, n=1):
    return f"s{b}" if n == 1 else f"s[{b}:{b+n-1}]"

_REG = re.compile(r"^(-|\|)?(abs\()?([vsa])(\d+)\)?\|?$")
_RNG = re.compile(r"^(-)?([vsa])\[(\d+):(\d+)\]$")

def regs_of(op):
    op = op.strip()
    m = _RNG.match(op)
    if m:
        return {(m.group(2), i) for i in range(int(m.group(3)), int(m.group(4)) + 1)}
    m = _REG.match(op)
    if m:
        return {(m.group(3), int(m.group(4)))}
    if op in ("vcc", "vcc_lo", "vcc_hi"): return {("s", "vcc")}
    if op in ("exec", "exec_lo", "exec_hi"): return {("s", "exec")}
    if op == "m0": return {("s", "m0")}
    return set()

TRANS = ("v_exp_", "v_log_", "v_rcp_", "v_rsq_", "v_sqrt_", "v_sin_", "v_cos_")
def passes(mn):
    if "32x32x4_2b" in mn: return 16
    if "32x32" in mn: return 8
    if "16x16" in mn: return 4
    if "4x4" in mn: return 2
    raise ValueError(mn)

class Ins:
    def __init__(self, text, idx):
        self.text = text; self.idx = idx
        t = text.split(";")[0].strip()
        parts = t.split(None, 1)
        self.mn = parts[0]
        rest = parts[1] if len(parts) > 1 else ""
        ops = [o.strip() for o in rest.split(",")] if rest else []
        mods = ""
        if ops:
            last = ops[-1].split(None, 1)
            if len(last) > 1 and not self.mn.startswith("s_waitcnt"):
                ops[-1] = last[0]; mods = last[1]
        self.ops = ops; self.mods = mods
        mn = self.mn
        R = lambda i: regs_of(ops[i]) if i < len(ops) else set()
        self.kind = "other"; self.w = set(); self.r = set()
        self.A = self.B = self.C = set()
        self.cnt = None
        self.storedata = set()
        if mn.startswith("v_mfma") or mn.startswith("v_smfmac"):
            self.kind = "mfma"; self.np = passes(mn)
            self.w = R(0); self.A = R(1); self.B = R(2)
            if mn.startswith("v_smfmac"):
                self.C = R(0); self.A = self.A | R(3)
            else:
                self.C = R(3)
            self.r = self.A | self.B | self.C
        elif mn.startswith("v_"):
            self.kind = "valu"
            if mn.startswith("v_cmp"):
                self.w = R(0); self.r = set().union(*[R(i) for i in range(1, len(ops))])
            elif "permlane" in mn and "swap" in mn:
                self.w = R(0) | R(1); self.r = R(0) | R(1)
            elif re.match(r"v_(add|sub|subrev)_co_", mn):
                self.w = R(0) | R(1); self.r = R(2) | R(3)
            elif re.match(r"v_(addc|subb)_co_", mn):
                self.w = R(0) | R(1); self.r = R(2) | R(3) | R(4)
            elif mn == "v_nop":
                pass
            else:
                self.w = R(0); self.r = set().union(set(), *[R(i) for i in range(1, len(ops))])
                if mn.startswith(("v_fmac", "v_dot2c", "v_pk_fmac", "v_writelane")) or "UNUSED_PRESERVE" in mods or "dpp" in mn or "row_" in mods or "quad_perm" in mods:
                    self.r |= R(0)
                if mn.startswith("v_cndmask") and len(ops) == 3:
                    self.r |= {("s", "vcc")}
            self.trans = mn.startswith(TRANS)
            self.dpp = "dpp" in mn or "row_" in mods or "quad_perm" in mods
        elif mn.startswith("ds_"):
            self.kind = "ds"; self.cnt = "lgkm"
            if mn.startswith(("ds_read", "ds_bpermute", "ds_permute", "ds_swizzle")):
                self.w = R(0); self.r = set().union(set(), *[R(i) for i in range(1, len(ops))])
            else:
                self.r = set().union(set(), *[R(i) for i in range(len(ops))])
        elif mn.startswith(("buffer_", "global_")):
            self.kind = "vmem"; self.cnt = "vm"
            allr = set().union(set(), *[R(i) for i in range(len(ops))])
            self.lds = (" lds" in " " + mods) or "_lds_" in mn
            if mn in ("buffer_inv", "buffer_wbl2"):
                pass
            elif "load" in mn and not self.lds:
                self.w = R(0); self.r = set().union(set(), *[R(i) for i in range(1, len(ops))])
                if "d16" in mn: self.d16 = True
            elif "atomic" in mn and "sc0" in mods:
                self.w = R(0); self.r = allr
            else:
                self.r = allr
                if self.lds: self.r |= {("s", "m0")}
                if "store" in mn and ("x4" in mn or "x3" in mn):
                    self.storedata = R(0) if mn.startswith("buffer_") else R(1)
        elif mn.startswith("s_"):
            self.kind = "salu"
            if mn.startswith(("s_load", "s_buffer_load", "s_memtime", "s_memrealtime")):
                self.kind = "smem"; self.cnt = "smem"
                self.w = R(0); self.r = set().union(set(), *[R(i) for i in range(1, len(ops))])
            elif mn.startswith(("s_cmp", "s_bitcmp")):
                self.r = set().union(set(), *[R(i) for i in range(len(ops))])
            elif mn.startswith(("s_waitcnt", "s_barrier", "s_nop", "s_branch", "s_cbranch", "s_endpgm", "s_setprio", "s_sleep")):
                if "vcc" in mn: self.r = {("s", "vcc")}
                if "exec" in mn: self.r = {("s", "exec")}
            else:
                self.w = R(0); self.r = set().union(set(), *[R(i) for i in range(1, len(ops))])
                if "saveexec" in mn: self.w |= {("s", "exec")}
        self.states = 1
        if mn == "s_nop": self.states = int(ops[0], 0) + 1

def need(p, c):
    n = 0
    vw = {x for x in p.w if x[0] in "va"}
    sw = {x for x in p.w if x[0] == "s"}
    if p.kind == "valu":
        if c.kind == "mfma" and vw & c.r: n = max(n, 2)
        if c.kind == "valu":
            if p.trans and not c.trans and vw & c.r: n = max(n, 1)
            if c.mn.startswith(("v_readfirstlane", "v_readlane")) and vw & c.r: n = max(n, 1)
            if "permlane" in c.mn and vw & c.r: n = max(n, 2)
            if c.dpp and vw & c.r: n = max(n, 2)
            if sw & c.r: n = max(n, 4 if c.mn.startswith(("v_readlane", "v_writelane")) else 2)
            if ("sdwa" in p.mn or "op_sel" in p.mods) and vw & (c.r | c.w): n = max(n, 1)
        if c.kind == "vmem" and sw & c.r: n = max(n, 5)
        if ("s", "exec") in sw and c.kind in ("valu", "mfma"): n = max(n, 5)
        if c.mn.startswith("s_cbranch_vcc") and ("s", "vcc") in sw: n = max(n, 0)
    if p.kind == "mfma":
        k = {2: 0, 4: 1, 8: 2, 16: 3}[p.np]
        if c.kind == "mfma":
            if p.w & (c.A | c.B): n = max(n, (5, 8, 12, 20)[k])
            if p.w & c.C:
                if p.w == c.C and p.np == c.np: n = max(n, (2, 0, 0, 0)[k])
                else: n = max(n, (4, 6, 10, 18)[k])
            elif p.w & c.w: n = max(n, (4, 6, 10, 18)[k])
        elif c.kind in ("valu", "ds", "vmem"):
            if p.w & (c.r | c.w): n = max(n, (5, 8, 12, 20)[k])
        if c.kind == "valu" and p.C & c.w: n = max(n, (1, 3, 7, 15)[k])
    if p.kind == "salu" and ("s", "m0") in sw and c.kind == "vmem" and getattr(c, "lds", False): n = max(n, 1)
    if p.kind == "vmem" and p.storedata and c.kind in ("valu", "ds", "vmem", "mfma") and p.storedata & c.w: n = max(n, 2)
    return n

def parse(lines):
    ins = []; labels = {}
    for ln in lines:
        t = ln.split(";")[0].strip()
        if not t or t.startswith("."): continue
        if t.endswith(":"):
            labels[t[:-1]] = len(ins); continue
        ins.append(Ins(t, len(ins)))
    succ = []
    for i, x in enumerate(ins):
        s = []
        if x.mn == "s_endpgm": pass
        elif x.mn == "s_branch": s = [labels[x.ops[0]]]
        elif x.mn.startswith("s_cbranch"): s = [i + 1, labels[x.ops[0]]]
        else: s = [i + 1]
        succ.append([j for j in s if j < len(ins)])
    return ins, succ

def check_hazards(lines, horizon=22):
    ins, succ = parse(lines)
    errs = []
    for i, p in enumerate(ins):
        if p.kind not in ("valu", "mfma", "salu", "vmem"): continue
        best = {}
        stack = [(j, 0) for j in succ[i]]
        while stack:
            j, d = stack.pop()
            if d >= horizon or best.get(j, 99) <= d: continue
            best[j] = d
            c = ins[j]
            n = need(p, c)
            if n > d: errs.append(f"HAZARD need {n} have {d}: [{p.text}] -> [{c.text}]")
            for k in succ[j]: stack.append((k, d + c.states))
    return errs

def check_waits(lines, maxvisit=3):
    ins, succ = parse(lines)
    errs = set()
    seen = {}
    stack = [(0, (), (), frozenset())]
    steps = 0
    while stack:
        i, vm, lg, sm = stack.pop()
        while True:
            steps += 1
            if steps > 4000000: return list(errs) + ["wait check gave up"]
            x = ins[i]
            key = (i, vm, lg, sm)
            if len(succ[i]) != 1 or x.mn.startswith("s_branch"):
                if key in seen: break
                seen[key] = 1
            touched = x.r | x.w
            pend = set().union(set(), *vm, *lg) | set(sm)
            if getattr(x, "d16", False): touched = x.r
            if x.kind == "ds" and x.w:
                touched = x.r | (x.w - set().union(set(), *lg))
            if touched & pend:
                errs.add(f"WAIT: [{x.text}] touches pending {sorted(touched & pend)[:4]}")
            if x.mn == "s_waitcnt":
                t = x.text
                m = re.search(r"vmcnt\((\d+)\)", t)
                if m:
                    n = int(m.group(1)); vm = vm[len(vm) - n:] if n < len(vm) else vm
                    if n == 0: vm = ()
                m = re.search(r"lgkmcnt\((\d+)\)", t)
                if m:
                    n = int(m.group(1))
                    if n == 0: lg = (); sm = frozenset()
                    elif not sm: lg = lg[len(lg) - n:] if n < len(lg) else lg
            elif x.cnt == "vm":
                vm = vm + (frozenset(x.w),)
                if len(vm) > 63: errs.add(f"vmcnt overflow at [{x.text}]"); vm = vm[-63:]
            elif x.cnt == "lgkm":
                lg = lg + (frozenset(x.w),)
                if len(lg) > 40: lg = lg[-40:]
            elif x.cnt == "smem":
                sm = sm | frozenset(x.w)
            s = succ[i]
            if not s: break
            for k in s[1:]: stack.append((k, vm, lg, sm))
            i = s[0]
    return sorted(errs)
```

```python
import sys, math, struct
from asmlib import Asm, vr, sr, check_hazards, check_waits

NAME = "gated_mix__softmax_full_mha__softmax_full_mha__prompt"
def f32(x): return struct.unpack("<I", struct.pack("<f", x))[0]

PB = 4992
HS = 4 * PB
SLOT = 40960
QIMG = 3 * SLOT
GATE_LDS = 147456
WS_KV = 0
WS_Q = 256 * SLOT
WS_OM = 2 * 256 * SLOT
WS_OR = WS_OM + 128 * 32 * 1024
WS_END = WS_OR + 32 * 2048 * 8
QSCALE = math.log2(math.e) / math.sqrt(18.0)

SRD_X, SRD_W, SRD_WS, SRD_G, SRD_O = 4, 8, 12, 16, 20
S_W, S_TB, S_GRP, S_B, S_P = 24, 25, 26, 27, 28
S_T0, S_T1, S_T2, S_T3 = 29, 30, 31, 32
S_X0, S_X1, S_WOFF, S_QS = 33, 34, 35, 36
S_CH, S_SLOTN, S_KVB, S_SOFF, S_CNT = 37, 38, 39, 40, 41
S_PTR = 44

def srd(a, d, ptr, size):
    a(f"s_mov_b32 s{d}, s{ptr}\ns_and_b32 s{d+1}, s{ptr+1}, 0xffff\ns_mov_b32 s{d+2}, {size}\ns_mov_b32 s{d+3}, 0x00020000")

def ids(a):
    a(f"""
    v_readfirstlane_b32 s{S_W}, v0
    v_and_b32 v1, 63, v0
    s_and_b32 s{S_T0}, s2, 7
    s_lshl_b32 s{S_T0}, s{S_T0}, 2
    s_bfe_u32 s{S_T1}, s2, 0x20003
    s_or_b32 s{S_GRP}, s{S_T0}, s{S_T1}
    s_lshr_b32 s{S_TB}, s2, 5
    s_lshr_b32 s{S_B}, s{S_GRP}, 4
    s_and_b32 s{S_P}, s{S_GRP}, 15
    s_lshr_b32 s{S_W}, s{S_W}, 6
    """)

XD = 6
ACC = 8
WF = ACC + 56
XF = WF + 56
AW = XF + 8 * XD
AG, AX, AD = AW + 7, AW + 8, AW + 9
EKM, EVA, EVB, EMID, EONE, EKC, ESC = AW + 10, AW + 11, AW + 12, AW + 13, AW + 14, AW + 15, AW + 16
P1_END = AW + 17
T_QA, T_QB, T_KA, T_KB, T_VA, T_VB, T_MID = range(7)
acc = lambda n, tt: ACC + (2 * n + tt) * 4

def p1_issue(a, ks):
    a(f"s_mov_b32 m0, s{S_T2}")
    a(f"s_add_u32 s{S_T2}, s{S_T2}, 8192")
    a(f"buffer_load_dwordx4 v{AD}, {sr(SRD_W,4)}, s{S_WOFF} offen lds")
    a(f"s_add_u32 s{S_WOFF}, s{S_WOFF}, {32*3456}")
    x = XF + 8 * (ks % XD)
    a(f"buffer_load_dwordx4 {vr(x,4)}, v{AX}, {sr(SRD_X,4)}, s{S_X0} offen offset:{64*ks}")
    a(f"buffer_load_dwordx4 {vr(x+4,4)}, v{AX}, {sr(SRD_X,4)}, s{S_X1} offen offset:{64*ks}")

def p1_reads(ks):
    wf = WF + 28 * (ks % 2)
    off = (ks % 8) * 8192
    L = []
    for n in (T_MID, T_QA, T_QB, T_KA, T_KB, T_VA, T_VB):
        g = [f"ds_read_b64_tr_b16 {vr(wf+4*n,2)}, v{AW+n} offset:{off}",
             f"ds_read_b64_tr_b16 {vr(wf+4*n+2,2)}, v{AW+n} offset:{off+1024}"]
        if n == T_MID:
            g += ["s_mov_b64 exec, s[42:43]",
                  f"ds_read_b128 {vr(wf+4*n,4)}, v{AG} offset:{64*ks}",
                  "s_mov_b64 exec, -1"]
        L.append(g)
    return L

def phase1(a):
    a(f"""
    s_load_dwordx4 {sr(S_PTR,4)}, s[0:1], 0
    s_load_dwordx2 {sr(S_PTR+4,2)}, s[0:1], 32
    s_load_dwordx2 {sr(S_PTR+6,2)}, s[0:1], 48
    s_load_dwordx2 {sr(S_PTR+8,2)}, s[0:1], 72
    """)
    ids(a)
    a(f"""
    v_lshrrev_b32 v2, 4, v1
    v_and_b32 v3, 15, v1
    s_bfe_u32 s{S_T0}, s{S_W}, 0x10001
    s_lshl_b32 s{S_T0}, s{S_T0}, 3
    v_lshlrev_b32 v4, 1, v2
    v_or_b32 v4, s{S_T0}, v4
    v_xor_b32 v4, v4, v3
    v_min_u32 v4, 14, v4
    v_mul_u32_u24 v5, 52, v4
    v_lshrrev_b32 v5, 8, v5
    v_lshlrev_b32 v4, 4, v4
    v_mul_u32_u24 v6, 1072, v5
    v_add_u32 v4, v4, v6
    v_and_b32 v5, 2, v5
    v_lshlrev_b32 v5, 2, v5
    v_sub_u32 v4, v4, v5
    v_mul_u32_u24 v5, 3456, v2
    s_mul_i32 s{S_T0}, s{S_W}, {4*3456}
    s_mul_i32 s{S_T1}, s{S_P}, 72
    s_add_u32 s{S_T0}, s{S_T0}, s{S_T1}
    v_add3_u32 v{AD}, v4, v5, s{S_T0}
    v_mul_u32_u24 v4, 1152, v3
    v_lshlrev_b32 v5, 4, v2
    s_mul_i32 s{S_T0}, s{S_W}, {32*1152}
    v_add3_u32 v{AX}, v4, v5, s{S_T0}
    s_mul_i32 s{S_X0}, s{S_TB}, {256*1152}
    s_add_u32 s{S_X1}, s{S_X0}, {16*1152}
    s_mov_b32 s{S_WOFF}, 0
    s_lshl_b32 s{S_T2}, s{S_W}, 10
    v_lshlrev_b32 v7, 4, v1
    v_add_u32 v7, s{S_T2}, v7
    s_add_u32 s{S_T3}, s{S_T2}, {GATE_LDS}
    s_waitcnt lgkmcnt(0)
    s_cmp_eq_u32 s{S_B}, 0
    s_cselect_b32 s{S_PTR+2}, s{S_PTR+2}, s{S_PTR+4}
    s_cselect_b32 s{S_PTR+3}, s{S_PTR+3}, s{S_PTR+5}
    """)
    srd(a, SRD_X, S_PTR, 2048 * 1152)
    srd(a, SRD_W, S_PTR + 2, 576 * 3456)
    srd(a, SRD_G, S_PTR + 6, 1152)
    a(f"s_mov_b32 m0, s{S_T3}")
    srd(a, SRD_WS, S_PTR + 8, WS_END)
    a(f"buffer_load_dwordx4 v7, {sr(SRD_G,4)}, 0 offen lds")
    for ks in range(XD):
        p1_issue(a, ks)
    a(f"""
    v_bfe_u32 v4, v1, 2, 2
    v_and_b32 v5, 3, v1
    v_and_b32 v6, 1, v2
    v_lshlrev_b32 v6, 2, v6
    v_or_b32 v6, v6, v4
    v_lshlrev_b32 v6, 1, v6
    v_lshl_add_u32 v7, v2, 3, v4
    v_lshlrev_b32 v7, 8, v7
    """)
    u, t = ACC, ACC + 1
    def addr(n):
        a(f"""
        v_lshrrev_b32 v{t}, 1, v{u}
        v_xor_b32 v{t}, v{t}, v6
        v_lshl_add_u32 v{t}, v{t}, 4, v7
        v_and_b32 v{u+2}, 1, v{u}
        v_lshl_add_u32 v{AW+n}, v{u+2}, 3, v{t}
        """)
    a(f"v_lshrrev_b32 v{u}, 1, v5\nv_lshl_add_u32 v{u}, v5, 1, v{u}"); addr(T_QA)
    a(f"v_add_u32 v{u}, 1, v{u}"); addr(T_QB)
    a(f"v_add_u32 v{u}, 9, v{u}"); addr(T_KA)
    a(f"v_add_u32 v{u}, 1, v{u}"); addr(T_KB)
    a(f"v_add_u32 v{u}, 21, v5"); addr(T_VA)
    a(f"v_add_u32 v{u}, 25, v5"); addr(T_VB)
    a(f"v_lshlrev_b32 v{u}, 3, v5\ns_mov_b32 s{S_T0}, 0x1b1d0e04\nv_lshrrev_b32 v{u}, v{u}, s{S_T0}\nv_and_b32 v{u}, 0xff, v{u}"); addr(T_MID)
    a(f"v_lshlrev_b32 v{AG}, 4, v2\nv_add_u32 v{AG}, {GATE_LDS}, v{AG}")
    a("s_mov_b32 s42, 0xf000f000\ns_mov_b32 s43, 0xf000f000")
    a(f"""
    s_lshr_b32 s{S_T0}, s{S_W}, 1
    s_mul_i32 s{S_T0}, s{S_T0}, {PB}
    s_and_b32 s{S_T1}, s{S_W}, 1
    v_lshrrev_b32 v4, 1, v2
    v_and_b32 v5, 1, v2
    v_mul_u32_u24 v6, {HS}, v4
    v_lshl_add_u32 v7, v5, 5, v3
    v_lshl_add_u32 v6, v7, 4, v6
    s_lshl_b32 s{S_T3}, s{S_T1}, 10
    s_add_u32 s{S_T3}, s{S_T3}, s{S_T0}
    v_add_u32 v{EKM}, s{S_T3}, v6
    s_mul_i32 s{S_T3}, s{S_T1}, 1216
    s_add_u32 s{S_T3}, s{S_T3}, s{S_T0}
    s_add_u32 s{S_T3}, s{S_T3}, 2048
    v_mul_u32_u24 v6, 19, v4
    v_add_u32 v6, v6, v3
    v_lshlrev_b32 v6, 4, v6
    v_lshl_add_u32 v6, v5, 3, v6
    v_add_u32 v{EVA}, s{S_T3}, v6
    v_mov_b32 v6, {HS-32}
    v_mov_b32 v7, 256
    v_cmp_gt_u32 vcc, 2, v3
    v_lshrrev_b32 v4, 3, v3
    v_mul_u32_u24 v4, 19, v4
    v_cndmask_b32 v6, v6, v7, vcc
    v_add_u32 v{EVB}, v{EVA}, v6
    v_add_u32 v4, 14, v4
    v_lshlrev_b32 v4, 4, v4
    v_and_b32 v5, 7, v3
    v_lshl_add_u32 v4, v5, 1, v4
    s_add_u32 s{S_QS}, s{S_T3}, {HS}
    v_add_u32 v4, s{S_QS}, v4
    s_lshl_b32 s{S_T1}, s{S_T1}, 3
    s_add_u32 s{S_T1}, s{S_T1}, s{S_T0}
    s_add_u32 s{S_T1}, s{S_T1}, 4480
    v_lshlrev_b32 v5, 4, v3
    v_add_u32 v5, s{S_T1}, v5
    v_add_u32 v6, {QIMG}, v5
    v_cmp_eq_u32 vcc, 1, v2
    v_add_u32 v7, 4, v6
    s_nop 0
    v_cndmask_b32 v6, v6, v5, vcc
    v_cmp_eq_u32 vcc, 2, v2
    v_mov_b32 v{ESC}, 1.0
    s_nop 0
    v_cndmask_b32 v6, v6, v4, vcc
    v_cmp_eq_u32 vcc, 3, v2
    v_mov_b32 v5, {hex(f32(QSCALE))}
    s_nop 0
    v_cndmask_b32 v{EMID}, v6, v7, vcc
    v_cmp_eq_u32 vcc, 0, v2
    v_bfe_u32 v4, v1, 2, 1
    v_mul_u32_u24 v4, {HS}, v4
    v_cndmask_b32 v{ESC}, v{ESC}, v5, vcc
    v_bfe_u32 v5, v1, 1, 1
    v_mul_u32_u24 v5, 608, v5
    v_and_b32 v6, 1, v1
    v_mul_u32_u24 v6, 304, v6
    v_add3_u32 v4, v4, v5, v6
    s_add_u32 s{S_T3}, s{S_T3}, 288
    v_add_u32 v{EONE}, s{S_T3}, v4
    v_lshrrev_b32 v4, 5, v1
    v_mul_u32_u24 v4, {HS}, v4
    v_and_b32 v5, 31, v1
    v_lshl_add_u32 v4, v5, 4, v4
    s_add_u32 s{S_T1}, s{S_T1}, 4
    v_add_u32 v{EKC}, s{S_T1}, v4
    s_mov_b32 s{S_QS}, {hex(f32(QSCALE))}
    """)
    a(f"s_waitcnt vmcnt({2 + 3*(XD-1)})\ns_barrier")
    for g in p1_reads(0):
        for x in g: a(x)
    issued = XD - 1
    for ks in range(18):
        if ks % 2 == 0 and ks + 1 < 18:
            tgt = min(ks + 2, 17)
            a(f"s_waitcnt vmcnt({2 + 3*(issued - tgt)})\ns_barrier")
        if ks == 16:
            pass
        if ks == 17:
            a("s_waitcnt vmcnt(0)")
        if ks + 1 in (8, 16):
            for n in range(7): a(f"v_add_u32 v{AW+n}, 0x10000, v{AW+n}")
        a("s_waitcnt lgkmcnt(0)")
        groups = p1_reads(ks + 1) if ks + 1 < 18 else []
        wf = WF + 28 * (ks % 2); x = XF + 8 * (ks % XD)
        i = 0
        for n in (T_QA, T_QB, T_KA, T_KB, T_VA, T_VB, T_MID):
            for tt in range(2):
                c = vr(acc(n, tt), 4)
                cin = "0" if ks == 0 else c
                if n in (T_VA, T_VB):
                    a(f"v_mfma_f32_16x16x32_bf16 {c}, {vr(x+4*tt,4)}, {vr(wf+4*n,4)}, {cin}")
                else:
                    a(f"v_mfma_f32_16x16x32_bf16 {c}, {vr(wf+4*n,4)}, {vr(x+4*tt,4)}, {cin}")
                if i < len(groups):
                    for y in groups[i]: a(y)
                i += 1
        if ks + XD < 18:
            p1_issue(a, ks + XD); issued = ks + XD
    a("s_barrier")
    T = WF
    a(f"v_mov_b32 v{T+16}, 0x3f803f80\nv_mov_b32 v{T+17}, 0x3f803f80\nv_mov_b32 v{T+18}, 0x3f803f80\nv_mov_b32 v{T+19}, 0x3f803f80\nv_mov_b32 v{T+20}, 0x3f80")
    a(f"ds_write_b32 v{EKC}, v{T+20}")
    a(f"s_mov_b64 exec, 0xff\nds_write_b128 v{EONE}, {vr(T+16,4)}\ns_mov_b64 exec, -1")
    a(f"v_add_u32 v{T+21}, {QIMG}, v{EKM}")
    for tt in range(2):
        t = T + 24 + 16 * tt
        for k, n in enumerate((T_KA, T_KB)):
            c = acc(n, tt)
            a(f"v_cvt_pk_bf16_f32 v{t+2*k}, v{c}, v{c+1}\nv_cvt_pk_bf16_f32 v{t+2*k+1}, v{c+2}, v{c+3}")
        a(f"ds_write_b128 v{EKM}, {vr(t,4)} offset:{256*tt}")
        for k, (n, ad) in enumerate(((T_VA, EVA), (T_VB, EVB))):
            c = acc(n, tt)
            a(f"v_cvt_pk_bf16_f32 v{t+4+2*k}, v{c}, v{c+1}\nv_cvt_pk_bf16_f32 v{t+5+2*k}, v{c+2}, v{c+3}")
            a(f"ds_write_b64 v{ad}, {vr(t+4+2*k,2)} offset:{608*tt}")
        for k, n in enumerate((T_QA, T_QB)):
            c = acc(n, tt)
            for e in range(4): a(f"v_mul_f32 v{c+e}, s{S_QS}, v{c+e}")
            a(f"v_cvt_pk_bf16_f32 v{t+8+2*k}, v{c}, v{c+1}\nv_cvt_pk_bf16_f32 v{t+9+2*k}, v{c+2}, v{c+3}")
        a(f"ds_write_b128 v{T+21}, {vr(t+8,4)} offset:{256*tt}")
        c = acc(T_MID, tt)
        for e in range(4): a(f"v_mul_f32 v{c+e}, v{ESC}, v{c+e}")
        a(f"v_cvt_pk_bf16_f32 v{t+12}, v{c}, v{c+1}\nv_cvt_pk_bf16_f32 v{t+13}, v{c+2}, v{c+3}")
        a(f"""
        s_mov_b32 exec_lo, 0
        s_mov_b32 exec_hi, 0xffff
        ds_write_b16 v{EMID}, v{t+12} offset:{608*tt}
        ds_write_b16_d16_hi v{EMID}, v{t+12} offset:{608*tt+16}
        ds_write_b16 v{EMID}, v{t+13} offset:{608*tt+32}
        ds_write_b16_d16_hi v{EMID}, v{t+13} offset:{608*tt+48}
        s_mov_b32 exec_hi, 0xffff0000
        v_mov_b32 v{t+12}, v{c}
        v_mov_b32 v{t+13}, v{c}
        s_mov_b32 exec_lo, -1
        ds_write_b32 v{EMID}, v{t+12} offset:{256*tt}
        ds_write_b32 v{EMID}, v{t+13} offset:{256*tt+HS}
        s_mov_b64 exec, -1
        """)
    a("s_waitcnt lgkmcnt(0)\ns_barrier")

def copy_out(a, lds_base, ws_base, tmp, mods=""):
    a(f"""
    v_lshlrev_b32 v2, 4, v1
    s_lshl_b32 s{S_T0}, s{S_W}, 10
    v_add_u32 v2, s{S_T0}, v2
    v_add_u32 v3, {lds_base}, v2
    s_lshl_b32 s{S_T0}, s{S_GRP}, 3
    s_add_u32 s{S_T0}, s{S_T0}, s{S_TB}
    s_mul_i32 s{S_T0}, s{S_T0}, {SLOT}
    s_add_u32 s{S_T0}, s{S_T0}, {ws_base}
    """)
    for u in range(5):
        a(f"ds_read_b128 {vr(tmp+4*u,4)}, v3 offset:{8192*u}")
    for u in range(5):
        a(f"s_waitcnt lgkmcnt({4-u})")
        a(f"buffer_store_dwordx4 {vr(tmp+4*u,4)}, v2, {sr(SRD_WS,4)}, s{S_T0} offen{mods}")
        a(f"s_add_u32 s{S_T0}, s{S_T0}, 8192")

SB = (8, 40); OA = 72; QM = 104; QR = 112; KM = 116; KR = 120; VF = 124
IDX, BKM, BKR, BV, AKM, AKR, AV, VG, DA = range(132, 141)
TMP = 144
P2_END = TMP + 24
ORDER = "E3 s3p lv1 E3 2b lkr E8 w0 s0 E4 s1 E4 m0 E4 s2 lv0 E3 m1 lkm E3"

def dma_piece(a):
    a(f"""
    s_mov_b32 m0, s{S_SLOTN}
    s_add_u32 s{S_SLOTN}, s{S_SLOTN}, 8192
    buffer_load_dwordx4 v{DA}, {sr(SRD_G,4)}, s{S_SOFF} offen lds
    s_add_u32 s{S_SOFF}, s{S_SOFF}, 8192
    """)

def dma_setup(a, dc):
    a(f"""
    s_add_u32 s{S_T0}, s{S_CH}, {dc}
    s_and_b32 s{S_T1}, s{S_T0}, 3
    s_mul_i32 s{S_SLOTN}, s{S_T1}, {SLOT}
    s_lshl_b32 s{S_T1}, s{S_W}, 10
    s_add_u32 s{S_SLOTN}, s{S_SLOTN}, s{S_T1}
    s_cmp_lt_u32 s{S_T0}, 8
    s_cselect_b32 s{SRD_G+2}, {256*SLOT}, 0
    s_add_u32 s{S_T0}, s{S_T0}, s{S_TB}
    s_and_b32 s{S_T0}, s{S_T0}, 7
    s_mul_i32 s{S_T0}, s{S_T0}, {SLOT}
    s_add_u32 s{S_SOFF}, s{S_T0}, s{S_KVB}
    """)

def att_ops(t):
    par = t % 2
    cur, nxt = SB[par], SB[1 - par]
    pb = lambda x: ((x % 8) // 2) * PB
    return cur, {
     "2b": f"v_mfma_f32_32x32x4_2b_bf16 {vr(nxt,32)}, {vr(KR+2*(1-par),2)}, {vr(QR,2)}, 0",
     "m0": f"v_mfma_f32_32x32x16_bf16 {vr(nxt,16)}, {vr(KM,4)}, {vr(QM,4)}, {vr(nxt,16)}",
     "m1": f"v_mfma_f32_32x32x16_bf16 {vr(nxt+16,16)}, {vr(KM,4)}, {vr(QM+4,4)}, {vr(nxt+16,16)}",
     "s0": f"v_smfmac_f32_32x32x32_bf16 {vr(OA,16)}, {vr(VF,4)}, {vr(cur,8)}, v{IDX}",
     "s1": f"v_smfmac_f32_32x32x32_bf16 {vr(OA,16)}, {vr(VF+4,4)}, {vr(cur+8,8)}, v{IDX}",
     "s2": f"v_smfmac_f32_32x32x32_bf16 {vr(OA+16,16)}, {vr(VF,4)}, {vr(cur+16,8)}, v{IDX}",
     "s3": f"v_smfmac_f32_32x32x32_bf16 {vr(OA+16,16)}, {vr(VF+4,4)}, {vr(cur+24,8)}, v{IDX}",
     "s3p": f"v_smfmac_f32_32x32x32_bf16 {vr(OA+16,16)}, {vr(VF+4,4)}, {vr(nxt+24,8)}, v{IDX}",
     "lkr": f"ds_read_b128 {vr(KR,4)}, v{AKR} offset:{pb(t+2)}" if par == 0 else None,
     "lkm": f"ds_read_b128 {vr(KM,4)}, v{AKM} offset:{pb(t+2)+1024*par}",
     "lv0": f"ds_read_b128 {vr(VF,4)}, v{AV} offset:{pb(t+1)+1216*(1-par)}",
     "lv1": f"ds_read_b128 {vr(VF+4,4)}, v{AV} offset:{pb(t)+1216*par+608}",
    }

def att_tile(a, t, hooks=None):
    cur, ops = att_ops(t)
    e = 0
    for tok in ORDER.split():
        if hooks and tok in hooks: hooks[tok]()
        if tok[0] == "E":
            for _ in range(int(tok[1:])):
                a(f"v_exp_f32 v{cur+e}, v{cur+e}"); e += 1
        elif tok[0] == "w": a(f"s_waitcnt lgkmcnt({tok[1:]})")
        elif ops[tok]: a(ops[tok])

def att_setup(a):
    a(f"""
    s_lshr_b32 s{S_T0}, s{S_W}, 2
    s_mul_i32 s{S_T0}, s{S_T0}, {HS}
    v_lshlrev_b32 v2, 4, v1
    v_add_u32 v{BKM}, s{S_T0}, v2
    v_and_b32 v3, 31, v1
    v_lshlrev_b32 v4, 4, v3
    s_add_u32 s{S_T1}, s{S_T0}, 4480
    v_add_u32 v{BKR}, s{S_T1}, v4
    v_lshrrev_b32 v5, 5, v1
    s_and_b32 s{S_T2}, s{S_W}, 3
    s_mul_i32 s{S_T2}, s{S_T2}, {PB}
    s_add_u32 s{S_T2}, s{S_T2}, {QIMG}
    v_add_u32 v6, s{S_T2}, v{BKM}
    v_lshl_add_u32 v7, v5, 3, v{BKR}
    v_add_u32 v7, s{S_T2}, v7
    ds_read_b128 {vr(QM,4)}, v6
    ds_read_b128 {vr(QM+4,4)}, v6 offset:1024
    ds_read_b64 {vr(QR,2)}, v7
    ds_read_b128 {vr(KR,4)}, v{BKR}
    ds_read_b128 {vr(KM,4)}, v{BKM}
    v_subrev_u32 v6, 20, v3
    v_cmp_gt_u32 vcc, 8, v6
    v_mov_b32 v7, 4
    v_mov_b32 v{IDX}, 0xdddddddd
    v_cndmask_b32 v7, v7, 0, vcc
    v_cmp_gt_u32 vcc, 19, v3
    v_mul_u32_u24 v5, 19, v5
    s_add_u32 s{S_T1}, s{S_T0}, 2048
    v_cndmask_b32 v3, v7, v3, vcc
    v_add_u32 v3, v3, v5
    v_lshlrev_b32 v3, 4, v3
    v_add_u32 v{BV}, s{S_T1}, v3
    v_mov_b32 v{AKM}, v{BKM}
    v_mov_b32 v{AKR}, v{BKR}
    v_mov_b32 v{AV}, v{BV}
    """)
    s0, s1 = SB
    a(f"s_waitcnt lgkmcnt(2)\nv_mov_b32 v{VG}, v{QR+1}\nv_mov_b32 v{QR+1}, 0")
    a(f"ds_read_b128 {vr(VF,4)}, v{AV}\ns_waitcnt lgkmcnt(1)")
    qk = lambda: (a(f"v_mfma_f32_32x32x4_2b_bf16 {vr(s0,32)}, {vr(KR,2)}, {vr(QR,2)}, 0"))
    def mains():
        a(f"v_mfma_f32_32x32x16_bf16 {vr(s0,16)}, {vr(KM,4)}, {vr(QM,4)}, {vr(s0,16)}")
        a(f"v_mfma_f32_32x32x16_bf16 {vr(s0+16,16)}, {vr(KM,4)}, {vr(QM+4,4)}, {vr(s0+16,16)}")
    qk()
    for i in range(32): a(f"v_mov_b32 v{OA+i}, 0")
    mains()
    for i in range(8): a(f"v_mov_b32 v{s1+24+i}, 0")
    for i in range(4): a(f"v_mov_b32 v{VF+4+i}, 0")
    for blk in range(2):
        b = s0 + 16 * blk; m = TMP + blk
        a(f"v_max3_f32 v{m}, v{b}, v{b+1}, v{b+2}")
        for i in range(3, 15, 2): a(f"v_max3_f32 v{m}, v{m}, v{b+i}, v{b+i+1}")
        a(f"v_max_f32 v{m}, v{m}, v{b+15}")
    a(f"""
    s_nop 1
    v_permlane32_swap_b32 v{TMP}, v{TMP+1}
    v_max_f32 v{TMP}, v{TMP}, v{TMP+1}
    v_cvt_pk_bf16_f32 v{QR+1}, -v{TMP}, 0
    s_nop 1
    """)
    qk(); a.nop(18); mains()
    a(f"ds_read_b128 {vr(KM,4)}, v{AKM} offset:1024")
    a.nop(10)

def att_chunk(a, first=False):
    def sync():
        a("s_waitcnt vmcnt(5)\ns_barrier")
        a(f"""
        s_add_u32 s{S_T2}, s{S_CH}, 1
        s_and_b32 s{S_T2}, s{S_T2}, 3
        s_mul_i32 s{S_T2}, s{S_T2}, {SLOT}
        v_add_u32 v{AKR}, s{S_T2}, v{BKR}
        v_add_u32 v{AKM}, s{S_T2}, v{BKM}
        """)
        dma_setup(a, 3)
    for t in range(8):
        hooks = {}
        if t == 6:
            hooks["lkr"] = sync
            hooks["s1"] = lambda: dma_piece(a)
            hooks["s2"] = lambda: dma_piece(a)
        if t == 7:
            hooks["2b"] = lambda: dma_piece(a)
            hooks["s1"] = lambda: dma_piece(a)
            hooks["m1"] = lambda: dma_piece(a)
            hooks["lv0"] = lambda: a(f"v_add_u32 v{AV}, s{S_T2}, v{BV}")
        att_tile(a, t, hooks)

def att_finish(a, mods=""):
    _, ops = att_ops(7)
    a(f"s_nop 1\n{ops['s3']}")
    T = TMP
    a(f"""
    s_lshl_b32 s{S_T0}, s{S_B}, 31
    s_xor_b32 s{S_T0}, s{S_T0}, {hex(f32(-math.log2(math.e)))}
    v_mul_f32 v{VG}, s{S_T0}, v{VG}
    v_exp_f32 v{VG}, v{VG}
    s_nop 0
    v_add_f32 v{VG}, 1.0, v{VG}
    v_rcp_f32 v{VG}, v{VG}
    """)
    a(f"""
    s_and_b32 s{S_T0}, s{S_W}, 3
    s_lshl_b32 s{S_T1}, s{S_TB}, 2
    s_add_u32 s{S_T0}, s{S_T0}, s{S_T1}
    s_lshl_b32 s{S_T1}, s{S_T0}, 17
    s_lshl_b32 s{S_T2}, s{S_GRP}, 10
    s_add_u32 s{S_T1}, s{S_T1}, s{S_T2}
    s_lshr_b32 s{S_T3}, s{S_W}, 2
    s_lshl_b32 s{S_T2}, s{S_T3}, 9
    s_add_u32 s{S_T1}, s{S_T1}, s{S_T2}
    s_add_u32 s{S_X0}, s{S_T1}, {WS_OM}
    s_add_u32 s{S_X1}, s{S_X0}, 0x10000
    v_bfe_u32 v2, v1, 4, 1
    v_lshlrev_b32 v2, 15, v2
    v_lshrrev_b32 v3, 5, v1
    v_lshl_add_u32 v2, v3, 8, v2
    v_and_b32 v3, 15, v1
    v_lshl_add_u32 v2, v3, 4, v2
    s_lshl_b32 s{S_T0}, s{S_T0}, 9
    s_lshl_b32 s{S_T2}, s{S_GRP}, 14
    s_add_u32 s{S_T0}, s{S_T0}, s{S_T2}
    s_lshl_b32 s{S_T3}, s{S_T3}, 2
    s_add_u32 s{S_T0}, s{S_T0}, s{S_T3}
    s_add_u32 s{S_WOFF}, s{S_T0}, {WS_OR}
    v_lshlrev_b32 v3, 3, v1
    """)
    a.label("L_att_norm")
    a(f"""
    v_mov_b32 v{T}, v{OA+10}
    v_mov_b32 v{T+1}, v{OA+26}
    s_mov_b32 s{S_T0}, {hex(f32(2.0**-60))}
    s_mov_b32 s{S_T1}, {hex(f32(2.0**60))}
    v_permlane32_swap_b32 v{T}, v{T+1}
    """)
    m = T + 2
    a(f"v_add_f32 v{m}, |v{OA}|, |v{OA+16}|")
    for i in range(1, 8): a(f"v_add_f32 v{m}, v{m}, |v{OA+i}|\nv_add_f32 v{m}, v{m}, |v{OA+16+i}|")
    a(f"""
    s_mov_b32 exec_hi, 0
    v_add_f32 v{m}, v{m}, |v{OA+8}|
    v_add_f32 v{m}, v{m}, |v{OA+9}|
    v_add_f32 v{m}, v{m}, |v{OA+24}|
    v_add_f32 v{m}, v{m}, |v{OA+25}|
    s_mov_b64 exec, -1
    v_cmp_nle_f32 s[46:47], s{S_T0}, v{T}
    v_cmp_nge_f32 s[48:49], s{S_T1}, v{T}
    v_rcp_f32 v{T}, v{T}
    s_mov_b32 s{S_T0}, 0x7f000000
    v_cmp_nge_f32 vcc, s{S_T0}, v{T+2}
    s_or_b64 s[46:47], s[46:47], s[48:49]
    s_or_b64 vcc, vcc, s[46:47]
    s_and_b64 vcc, vcc, s[50:51]
    s_cbranch_vccnz L_att_slow
    v_mul_f32 v{T}, v{T}, v{VG}
    v_mov_b32 v{T+1}, v{T}
    s_nop 1
    v_permlane32_swap_b32 v{T}, v{T+1}
    """)
    for blk in range(2):
        o = OA + 16 * blk; f = T + blk; d = T + 4 + 4 * blk
        for i in range(10): a(f"v_mul_f32 v{o+i}, v{f}, v{o+i}")
        for i in range(4): a(f"v_cvt_pk_bf16_f32 v{d+i}, v{o+2*i}, v{o+2*i+1}")
        a(f"buffer_store_dwordx4 {vr(d,4)}, v2, {sr(SRD_WS,4)}, s{S_X0+blk} offen{mods}")
        a(f"v_cvt_pk_bf16_f32 v{T+12+blk}, v{o+8}, v{o+9}")
    a(f"s_nop 1\nv_permlane32_swap_b32 v{T+12}, v{T+13}")
    a(f"buffer_store_dword v{T+12}, v3, {sr(SRD_WS,4)}, s{S_WOFF} offen{mods}")

def att_slow(a):
    s0 = SB[0]; T = TMP
    M0, M1, GK, GR, GV = T + 16, T + 17, T + 18, T + 19, T + 20
    a.label("L_att_slow")
    a(f"""
    s_mov_b64 s[50:51], 0
    v_mov_b32 v{QR+1}, 0
    v_mov_b32 v{M0}, 0xff800000
    v_mov_b32 v{M1}, 0xff800000
    s_mov_b32 s{SRD_G+2}, {256*SLOT}
    s_waitcnt vmcnt(0) lgkmcnt(0)
    """)
    for i in range(32): a(f"v_mov_b32 v{OA+i}, 0")
    for ps in range(2):
        a(f"s_mov_b32 s{S_CNT}, 0")
        a.label(f"L_slow_{ps}")
        a(f"""
        s_lshr_b32 s{S_T0}, s{S_CNT}, 3
        s_mul_i32 s{S_T0}, s{S_T0}, {SLOT}
        s_bfe_u32 s{S_T1}, s{S_CNT}, 0x20001
        s_mul_i32 s{S_T1}, s{S_T1}, {PB}
        s_add_u32 s{S_T0}, s{S_T0}, s{S_T1}
        s_add_u32 s{S_T0}, s{S_T0}, s{S_KVB}
        s_and_b32 s{S_T1}, s{S_CNT}, 1
        s_lshl_b32 s{S_T2}, s{S_T1}, 10
        s_add_u32 s{S_T2}, s{S_T2}, s{S_T0}
        buffer_load_dwordx4 {vr(KM,4)}, v{BKM}, {sr(SRD_G,4)}, s{S_T2} offen
        s_lshl_b32 s{S_T2}, s{S_T1}, 3
        s_add_u32 s{S_T2}, s{S_T2}, s{S_T0}
        buffer_load_dwordx2 {vr(KR,2)}, v{BKR}, {sr(SRD_G,4)}, s{S_T2} offen
        s_mul_i32 s{S_T2}, s{S_T1}, 1216
        s_add_u32 s{S_T2}, s{S_T2}, s{S_T0}
        buffer_load_dwordx4 {vr(VF,4)}, v{BV}, {sr(SRD_G,4)}, s{S_T2} offen
        buffer_load_dwordx4 {vr(VF+4,4)}, v{BV}, {sr(SRD_G,4)}, s{S_T2} offen offset:608
        s_waitcnt vmcnt(0)
        v_mfma_f32_32x32x4_2b_bf16 {vr(s0,32)}, {vr(KR,2)}, {vr(QR,2)}, 0
        """)
        a.nop(20)
        a(f"v_mfma_f32_32x32x16_bf16 {vr(s0,16)}, {vr(KM,4)}, {vr(QM,4)}, {vr(s0,16)}")
        a(f"v_mfma_f32_32x32x16_bf16 {vr(s0+16,16)}, {vr(KM,4)}, {vr(QM+4,4)}, {vr(s0+16,16)}")
        a.nop(14)
        if ps == 0:
            for blk, m in enumerate((M0, M1)):
                for i in range(0, 16, 2): a(f"v_max3_f32 v{m}, v{m}, v{s0+16*blk+i}, v{s0+16*blk+i+1}")
        else:
            for i in range(32): a(f"v_sub_f32 v{s0+i}, v{s0+i}, v{M0 if i < 16 else M1}")
            for i in range(32): a(f"v_exp_f32 v{s0+i}, v{s0+i}")
            a.nop(2)
            for i in range(4):
                a(f"v_smfmac_f32_32x32x32_bf16 {vr(OA+16*(i//2),16)}, {vr(VF+4*(i%2),4)}, {vr(s0+8*i,8)}, v{IDX}")
            a.nop(14)
        a(f"s_add_u32 s{S_CNT}, s{S_CNT}, 1\ns_cmp_lt_u32 s{S_CNT}, 64\ns_cbranch_scc1 L_slow_{ps}")
        if ps == 0:
            for m in (M0, M1):
                a(f"v_mov_b32 v{GK}, v{m}\ns_nop 1\nv_permlane32_swap_b32 v{GK}, v{m}\nv_max_f32 v{m}, v{m}, v{GK}")
    a("s_branch L_att_norm")

def att_common(a):
    a(f"""
    s_lshl_b32 s{S_KVB}, s{S_GRP}, 3
    s_mul_i32 s{S_KVB}, s{S_KVB}, {SLOT}
    s_mov_b32 s{SRD_G}, s{SRD_WS}
    s_mov_b32 s{SRD_G+1}, s{SRD_WS+1}
    s_mov_b32 s{SRD_G+3}, 0x00020000
    s_mov_b64 s[50:51], -1
    s_mov_b32 s{S_CH}, 0
    v_lshlrev_b32 v{DA}, 4, v1
    s_lshl_b32 s{S_T0}, s{S_W}, 10
    v_add_u32 v{DA}, s{S_T0}, v{DA}
    """)

def att_loop(a):
    a.label("L_att_loop")
    att_chunk(a)
    a(f"s_add_u32 s{S_CH}, s{S_CH}, 1\ns_cmp_lt_u32 s{S_CH}, 8\ns_cbranch_scc1 L_att_loop")

OACC = 8
OF = OACC + 20
W4R = OF + 72
WB = W4R + 16
A1 = WB + 40
A1R = A1 + 4
A2 = A1R + 4
P3_END = A2 + 1
P2BASE, R1BASE = 131072, 147456
S_TT, S_C0, S_TOK = S_GRP, S_P, S_TB

def p3_ids(a):
    a(f"""
    s_and_b32 s{S_TT}, s{S_W}, 3
    s_lshr_b32 s{S_B}, s{S_W}, 2
    s_and_b32 s{S_T0}, s2, 7
    s_lshl_b32 s{S_T0}, s{S_T0}, 2
    s_bfe_u32 s{S_T1}, s2, 0x20003
    s_add_u32 s{S_T0}, s{S_T0}, s{S_T1}
    s_lshl_b32 s{S_T0}, s{S_T0}, 2
    s_add_u32 s{S_TOK}, s{S_T0}, s{S_TT}
    s_lshr_b32 s{S_C0}, s2, 5
    s_mul_i32 s{S_C0}, s{S_C0}, 144
    """)

def p3_wload(a):
    a(f"""
    v_lshrrev_b32 v2, 3, v1
    v_and_b32 v3, 7, v1
    v_and_b32 v4, 6, v2
    v_xor_b32 v3, v3, v4
    v_lshlrev_b32 v3, 4, v3
    v_add_u32 v3, s{S_C0}, v3
    s_lshr_b32 s{S_T0}, s{S_TT}, 1
    s_and_b32 s{S_T1}, s{S_TT}, 1
    s_mul_i32 s{S_T2}, s{S_T0}, 18
    s_lshl_b32 s{S_T3}, s{S_T1}, 3
    s_add_u32 s{S_T2}, s{S_T2}, s{S_T3}
    v_add_u32 v4, s{S_T2}, v2
    v_mul_u32_u24 v4, 1152, v4
    v_add_u32 v4, v4, v3
    s_lshl_b32 s{S_T2}, s{S_B}, 16
    s_lshl_b32 s{S_T3}, s{S_TT}, 10
    s_add_u32 s{S_SLOTN}, s{S_T2}, s{S_T3}
    s_mov_b32 s{S_SOFF}, 0
    """)
    def main(p):
        a(f"""
        s_mov_b32 m0, s{S_SLOTN}
        s_add_u32 s{S_SLOTN}, s{S_SLOTN}, 4096
        buffer_load_dwordx4 v4, {sr(SRD_W,4)}, s{S_SOFF} offen lds
        s_add_u32 s{S_SOFF}, s{S_SOFF}, {36*1152}
        """)
    pre = lambda: None
    return main

def phase3(a, fused=False):
    main = p3_wload(a)
    a(f"""
    v_lshrrev_b32 v5, 4, v1
    v_mul_u32_u24 v5, 18, v5
    v_and_b32 v6, 15, v1
    v_add_u32 v5, v5, v6
    v_mul_u32_u24 v5, 1152, v5
    s_add_u32 s{S_T2}, s{S_C0}, 128
    v_add_u32 v5, s{S_T2}, v5
    s_lshl_b32 s{S_T2}, s{S_T1}, 1
    s_add_u32 s{S_T2}, s{S_T2}, s{S_T0}
    s_mul_i32 s{S_T2}, s{S_T2}, 72
    v_lshrrev_b32 v6, 2, v2
    v_mul_u32_u24 v6, 36, v6
    v_bfe_u32 v7, v2, 1, 1
    v_mul_u32_u24 v7, 18, v7
    v_and_b32 v2, 1, v2
    v_add3_u32 v6, v6, v7, v2
    s_add_u32 s{S_T2}, s{S_T2}, 16
    v_add_u32 v6, s{S_T2}, v6
    v_mul_u32_u24 v6, 1152, v6
    v_add_u32 v6, v6, v3
    v_lshrrev_b32 v2, 4, v1
    v_mul_u32_u24 v7, {36*1152}, v2
    v_and_b32 v3, 7, v1
    v_lshl_add_u32 v7, v3, 1, v7
    s_add_u32 s{S_T2}, s{S_C0}, {128 + 16*1152}
    v_add_u32 v7, s{S_T2}, v7
    """)
    def part2(u):
        a(f"""
        s_lshl_b32 s{S_T0}, s{S_TT}, 1
        s_add_u32 s{S_T0}, s{S_T0}, {u}
        s_lshl_b32 s{S_T1}, s{S_T0}, 10
        s_lshl_b32 s{S_T2}, s{S_B}, 13
        s_add_u32 s{S_T1}, s{S_T1}, s{S_T2}
        s_add_u32 m0, s{S_T1}, {P2BASE}
        s_mul_i32 s{S_T0}, s{S_T0}, {72*1152}
        buffer_load_dwordx4 v5, {sr(SRD_W,4)}, s{S_T0} offen lds
        """)
    def rem1(u):
        a(f"""
        s_lshl_b32 s{S_T1}, s{S_TT}, 10
        s_lshl_b32 s{S_T2}, s{S_B}, 13
        s_add_u32 s{S_T1}, s{S_T1}, s{S_T2}
        s_add_u32 m0, s{S_T1}, {R1BASE + 4096*u}
        s_mov_b32 s{S_T0}, {8*u*36*1152}
        buffer_load_dwordx4 v6, {sr(SRD_W,4)}, s{S_T0} offen lds
        """)
    def gathers():
        for u in range(2):
            for i in range(2):
                for hh in range(2):
                    d = W4R + 4 * u + 2 * i + hh
                    a(f"s_mov_b32 s{S_T0}, {(36*(8*u+4*i) + 18*hh)*1152}")
                    a(f"buffer_load_ushort v{d}, v7, {sr(SRD_W,4)}, s{S_T0} offen")
                    a(f"buffer_load_ushort v{d+8}, v7, {sr(SRD_W,4)}, s{S_T0} offen offset:1152")
    def oaddr():
        a(f"""
        v_lshlrev_b32 v2, 4, v1
        s_lshl_b32 s{S_X0}, s{S_TOK}, 15
        s_lshl_b32 s{S_T0}, s{S_B}, 14
        s_add_u32 s{S_X0}, s{S_X0}, s{S_T0}
        s_add_u32 s{S_X0}, s{S_X0}, {WS_OM}
        v_lshrrev_b32 v3, 4, v1
        v_lshlrev_b32 v3, 14, v3
        v_and_b32 v{A2}, 15, v1
        v_lshl_add_u32 v3, v{A2}, 3, v3
        s_lshl_b32 s{S_X1}, s{S_B}, 18
        s_lshl_b32 s{S_T0}, s{S_TOK}, 7
        s_add_u32 s{S_X1}, s{S_X1}, s{S_T0}
        s_add_u32 s{S_X1}, s{S_X1}, {WS_OR}
        """)
    mods = " sc1" if fused else ""
    def oload(st):
        if st < 16:
            if st and st % 4 == 0: a(f"s_add_u32 s{S_X0}, s{S_X0}, 4096")
            a(f"buffer_load_dwordx4 {vr(OF+4*st,4)}, v2, {sr(SRD_WS,4)}, s{S_X0} offen offset:{1024*(st%4)}{mods}")
        else:
            for i in range(2):
                a(f"buffer_load_dwordx2 {vr(OF+4*st+2*i,2)}, v3, {sr(SRD_WS,4)}, s{S_X1} offen{mods}")
                a(f"s_add_u32 s{S_X1}, s{S_X1}, 0x10000")
    oaddr()
    part2(0); part2(1)
    for st in range(16):
        main(st); oload(st)
    rem1(0); rem1(1); oload(16); oload(17); gathers()
    a(f"""
    v_lshrrev_b32 v2, 4, v1
    v_bfe_u32 v3, v1, 2, 2
    v_and_b32 v4, 3, v1
    v_and_b32 v5, 1, v2
    v_lshl_add_u32 v5, v5, 2, v3
    v_lshrrev_b32 v6, 1, v2
    v_lshlrev_b32 v7, 11, v6
    v_lshl_add_u32 v7, v5, 7, v7
    v_lshl_add_u32 v7, v4, 3, v7
    s_lshl_b32 s{S_T0}, s{S_B}, 16
    v_add_u32 v7, s{S_T0}, v7
    v_lshrrev_b32 v2, 1, v5
    s_lshl_b32 s{S_T1}, s{S_B}, 13
    s_add_u32 s{S_T2}, s{S_T1}, {R1BASE}
    s_sub_u32 s{S_T2}, s{S_T2}, s{S_T0}
    """)
    for t in range(4):
        a(f"v_xor_b32 v3, {t}, v2\nv_lshl_add_u32 v{A1+t}, v3, 5, v7\nv_add_u32 v{A1R+t}, s{S_T2}, v{A1+t}")
    a(f"""
    v_lshl_add_u32 v6, v6, 4, v5
    v_lshlrev_b32 v6, 4, v6
    v_and_b32 v4, 1, v4
    v_lshl_add_u32 v6, v4, 3, v6
    s_add_u32 s{S_T1}, s{S_T1}, {P2BASE}
    v_add_u32 v{A2}, s{S_T1}, v6
    """)
    def wreads(st):
        wb = WB + 20 * (st % 2); L = []
        for t in range(4):
            ad, off = (A1 + t, 4096 * st) if st < 16 else (A1R + t, 4096 * (st - 16))
            L.append([f"ds_read_b64_tr_b16 {vr(wb+4*t,2)}, v{ad} offset:{off}",
                      f"ds_read_b64_tr_b16 {vr(wb+4*t+2,2)}, v{ad} offset:{off+1024}"])
        if st < 16:
            L.append([f"ds_read_b64_tr_b16 {vr(wb+16,2)}, v{A2} offset:{512*st}",
                      f"ds_read_b64_tr_b16 {vr(wb+18,2)}, v{A2} offset:{512*st+128}"])
        return L
    total = 2 + 32 + 2 + 4 + 16
    def landed(n): return total - n
    a(f"s_waitcnt vmcnt({landed(2 + 2*3 + 1)})\ns_barrier")
    for g in wreads(0):
        for x in g: a(x)
    for st in range(18):
        if st in (3, 7, 11):
            a(f"s_waitcnt vmcnt({landed(2 + 2*(st+4) + 1)})\ns_barrier")
        if st == 15:
            a(f"s_waitcnt vmcnt({landed(36)})\ns_barrier")
        if st < 16: a(f"s_waitcnt vmcnt({landed(2 + 2*(st+1))}) lgkmcnt(0)")
        else: a(f"s_waitcnt vmcnt(0) lgkmcnt(0)")
        if st == 16:
            for d in range(W4R, W4R + 8): a(f"v_lshl_or_b32 v{d}, v{d+8}, 16, v{d}")
        groups = wreads(st + 1) if st + 1 < 18 else []
        wb = WB + 20 * (st % 2)
        for t in range(5):
            c = vr(OACC + 4 * t, 4)
            w = vr(wb + 4 * t, 4) if (t < 4 or st < 16) else vr(W4R + 4 * (st - 16), 4)
            a(f"v_mfma_f32_16x16x32_bf16 {c}, {w}, {vr(OF+4*st,4)}, {'0' if st == 0 else c}")
            if t < len(groups):
                for y in groups[t]: a(y)
    T = OF
    a(f"""
    v_lshlrev_b32 v2, 4, v1
    s_mul_i32 s{S_T0}, s{S_TT}, 5120
    v_add_u32 v2, s{S_T0}, v2
    v_and_b32 v3, 15, v1
    s_lshl_b32 s{S_T0}, s{S_TOK}, 4
    v_add_u32 v3, s{S_T0}, v3
    v_mul_u32_u24 v3, 1152, v3
    v_add_u32 v3, s{S_C0}, v3
    v_lshrrev_b32 v4, 4, v1
    v_lshl_add_u32 v5, v4, 3, v3
    v_and_b32 v6, 1, v4
    v_lshl_add_u32 v3, v6, 5, v3
    v_lshrrev_b32 v4, 1, v4
    v_lshl_add_u32 v3, v4, 4, v3
    s_barrier
    s_cmp_eq_u32 s{S_B}, 0
    s_cbranch_scc0 L_p3_b
    """)
    def fin(tiles, give, off):
        for t in give: a(f"ds_write_b128 v2, {vr(OACC+4*t,4)} offset:{1024*t}")
        a("s_waitcnt lgkmcnt(0)\ns_barrier")
        for k, t in enumerate(tiles): a(f"ds_read_b128 {vr(T+4*k,4)}, v2 offset:{1024*t}")
        for k, t in enumerate(tiles):
            a(f"s_waitcnt lgkmcnt({len(tiles)-1-k})")
            for e in range(4): a(f"v_add_f32 v{OACC+4*t+e}, v{OACC+4*t+e}, v{T+4*k+e}")
        d = T + 12
        t0, t1 = tiles[0], tiles[1]
        a(f"""
        v_cvt_pk_bf16_f32 v{d}, v{OACC+4*t0}, v{OACC+4*t0+1}
        v_cvt_pk_bf16_f32 v{d+1}, v{OACC+4*t0+2}, v{OACC+4*t0+3}
        v_cvt_pk_bf16_f32 v{d+2}, v{OACC+4*t1}, v{OACC+4*t1+1}
        v_cvt_pk_bf16_f32 v{d+3}, v{OACC+4*t1+2}, v{OACC+4*t1+3}
        s_nop 1
        v_permlane16_swap_b32 v{d}, v{d+2}
        v_permlane16_swap_b32 v{d+1}, v{d+3}
        buffer_store_dwordx4 {vr(d,4)}, v3, {sr(SRD_O,4)}, 0 offen offset:{off}
        """)
        if len(tiles) == 3:
            t2 = tiles[2]
            a(f"""
            v_cvt_pk_bf16_f32 v{d+4}, v{OACC+4*t2}, v{OACC+4*t2+1}
            v_cvt_pk_bf16_f32 v{d+5}, v{OACC+4*t2+2}, v{OACC+4*t2+3}
            s_mov_b32 exec_hi, 0
            buffer_store_dwordx2 {vr(d+4,2)}, v5, {sr(SRD_O,4)}, 0 offen offset:128
            """)
        a("s_endpgm")
    fin((0, 1, 4), (2, 3), 0)
    a.label("L_p3_b")
    fin((2, 3), (0, 1, 4), 64)

def kernel(label, body, nv):
    return f""".globl {label}
.p2align 8
.type {label},@function
{label}:
{body.text()}"""

def desc(label, nv):
    nv4 = (nv + 3) // 4 * 4
    return f""".amdhsa_kernel {label}
  .amdhsa_next_free_vgpr {nv4}
  .amdhsa_next_free_sgpr 64
  .amdhsa_accum_offset {nv4}
  .amdhsa_group_segment_fixed_size 0
  .amdhsa_kernarg_size 80
  .amdhsa_user_sgpr_count 2
  .amdhsa_user_sgpr_kernarg_segment_ptr 1
  .amdhsa_system_sgpr_workgroup_id_x 1
.end_amdhsa_kernel
"""

def guard(a, tag):
    a(f"s_cmp_lt_u32 s2, 256\ns_cbranch_scc1 L_go_{tag}\ns_endpgm")
    a.label(f"L_go_{tag}")

def build3():
    k1 = Asm(); guard(k1, "qkv"); phase1(k1)
    copy_out(k1, 0, WS_KV, WF); copy_out(k1, QIMG, WS_Q, WF + 20); k1("s_endpgm")

    k2 = Asm(); guard(k2, "att")
    k2(f"s_load_dwordx2 {sr(S_PTR+8,2)}, s[0:1], 72"); ids(k2); k2("s_waitcnt lgkmcnt(0)")
    srd(k2, SRD_WS, S_PTR + 8, WS_END)
    att_common(k2)
    k2(f"""
    s_lshl_b32 s{S_T0}, s{S_GRP}, 3
    s_add_u32 s{S_T0}, s{S_T0}, s{S_TB}
    s_mul_i32 s{S_SOFF}, s{S_T0}, {SLOT}
    s_add_u32 s{S_SOFF}, s{S_SOFF}, {WS_Q}
    s_lshl_b32 s{S_SLOTN}, s{S_W}, 10
    s_add_u32 s{S_SLOTN}, s{S_SLOTN}, {QIMG}
    s_mov_b32 s{SRD_G+2}, {WS_END}
    """)
    for u in range(5): dma_piece(k2)
    for c in range(3):
        dma_setup(k2, c)
        for u in range(5): dma_piece(k2)
    k2("s_waitcnt vmcnt(10)\ns_barrier")
    att_setup(k2); att_loop(k2); att_finish(k2); k2("s_endpgm"); att_slow(k2)

    k3 = Asm(); guard(k3, "out")
    k3(f"""
    s_load_dwordx2 {sr(S_PTR,2)}, s[0:1], 16
    s_load_dwordx2 {sr(S_PTR+2,2)}, s[0:1], 40
    s_load_dwordx2 {sr(S_PTR+4,2)}, s[0:1], 56
    s_load_dwordx2 {sr(S_PTR+8,2)}, s[0:1], 72
    v_readfirstlane_b32 s{S_W}, v0
    v_and_b32 v1, 63, v0
    s_nop 2
    s_lshr_b32 s{S_W}, s{S_W}, 6
    """)
    p3_ids(k3)
    k3(f"""
    s_waitcnt lgkmcnt(0)
    s_cmp_eq_u32 s{S_B}, 0
    s_cselect_b32 s{S_PTR}, s{S_PTR}, s{S_PTR+2}
    s_cselect_b32 s{S_PTR+1}, s{S_PTR+1}, s{S_PTR+3}
    """)
    srd(k3, SRD_W, S_PTR, 576 * 1152); srd(k3, SRD_O, S_PTR + 4, 2048 * 1152); srd(k3, SRD_WS, S_PTR + 8, WS_END)
    phase3(k3)
    return [("qkv_kernel", k1, P1_END), ("att_kernel", k2, P2_END), ("out_kernel", k3, P3_END)]

def emit(kernels, path):
    head = open(f"cdna_kernels/{NAME}.s.ref").read().split("; Override launch")[0]
    s = head
    for label, body, nv in kernels:
        s += f"; @launch kernel={label} grid=(256,1,1) block=(512,1,1) lds=163840\n"
    s += '.amdgcn_target "amdgcn-amd-amdhsa--gfx950"\n.text\n'
    ok = True
    for label, body, nv in kernels:
        for e in check_hazards(body.lines) + check_waits(body.lines):
            print(label, e); ok = False
        s += kernel(label, body, nv)
    s += '.section .rodata,"a"\n.p2align 6\n'
    for label, body, nv in kernels: s += desc(label, nv)
    open(path, "w").write(s)
    print("wrote", path, "checks", "OK" if ok else "FAILED", [(l, len(b.lines), nv) for l, b, nv in kernels])

if __name__ == "__main__":
    out = sys.argv[1] if len(sys.argv) > 1 else f"cdna_kernels/{NAME}.s"
    emit(build3(), out)
```

```python
import sys, math, struct
from asmlib import Asm, vr, sr, check_hazards, check_waits

NAME = "gated_mix__softmax_full_mha__softmax_full_mha__prompt"
def f32(x): return struct.unpack("<I", struct.pack("<f", x))[0]

VSUB = 640
VOFF, KROFF = 2048, 2048 + 4 * VSUB
PB = KROFF + 512
HS = 4 * PB
SLOT = 2 * HS
QIMG = 3 * SLOT
XLDS = 49152
GATE_LDS = 147456
WS_KV = 0
WS_OM = 256 * SLOT
WS_OR = WS_OM + 128 * 32 * 1024
WS_F1 = WS_OR + 32 * 2048 * 8
WS_F2 = WS_F1 + 8192
WS_END = WS_F2 + 8192
QSCALE = math.log2(math.e) / math.sqrt(18.0)
SPIN_MAX = 1 << 18
def vpos_slot(s): return 12 + s if s < 4 else s - 4 if s < 12 else s + 4 if s < 16 else s - 7 if s < 19 else 8
def vslot_dim(d): return 8 * (d & 1) + (d >> 1) if d < 16 else d
def vpos_dim(d): return vpos_slot(vslot_dim(d))

PROF = False
OPT = {}
WS_PROF = WS_END
def stamp(a, i, cyc=False):
    if not PROF: return
    a(f"{'s_memtime' if cyc else 's_memrealtime'} s[70:71]\ns_waitcnt lgkmcnt(0)\ns_mov_b32 s{72+i}, s70")
def stamp_out(a, n=24):
    if not PROF: return
    a(f"s_getreg_b32 s94, hwreg(HW_REG_HW_ID)\ns_getreg_b32 s95, hwreg(HW_REG_XCC_ID)")
    a(f"s_lshl_b32 s70, s2, 3\ns_add_u32 s70, s70, s{S_W}\ns_lshl_b32 s70, s70, 7\ns_add_u32 s70, s70, {WS_PROF}")
    a("s_mov_b64 exec, 1\ns_mov_b32 s14, 0x10000000\nv_mov_b32 v3, 0")
    for i in range(n):
        a(f"v_mov_b32 v2, s{72+i}\nbuffer_store_dword v2, v3, s[12:15], s70 offen offset:{4*i}")

SRD_X, SRD_W, SRD_WS, SRD_G, SRD_O = 4, 8, 12, 16, 20
S_W, S_TB, S_GRP, S_B, S_P = 24, 25, 26, 27, 28
S_T0, S_T1, S_T2, S_T3 = 29, 30, 31, 32
S_X0, S_X1, S_WOFF, S_QS = 33, 34, 35, 36
S_CH, S_M0, S_KVB, S_SOFF, S_CNT = 37, 38, 39, 40, 41
S_EX = 42
S_PTR = 44
S_DBG = 60
S_MSTEP, S_SSTEP, S_NSL, S_C0 = 64, 65, 66, 67
S_OK = 68

def srd(a, d, ptr, size):
    a(f"s_mov_b32 s{d}, s{ptr}\ns_and_b32 s{d+1}, s{ptr+1}, 0xffff\ns_mov_b32 s{d+2}, {size}\ns_mov_b32 s{d+3}, 0x00020000")

def spin(a, tag, load, reg):
    a(f"s_mov_b32 s{S_CNT}, {SPIN_MAX}")
    a.label(f"L_spin_{tag}")
    a(f"""
    s_waitcnt vmcnt(0)
    v_cmp_eq_u32 vcc, 0, v{reg}
    s_cbranch_vccz L_got_{tag}
    {load}
    s_sub_u32 s{S_CNT}, s{S_CNT}, 1
    s_cmp_lg_u32 s{S_CNT}, 0
    s_cbranch_scc1 L_spin_{tag}
    s_waitcnt vmcnt(0)
    """)
    a.label(f"L_got_{tag}")

ACC = 8
WF = ACC + 56
XF = WF + 56
AW = XF + 16
AG, AXR, AXD, AD = AW + 7, AW + 8, AW + 10, AW + 12
EKM, EVA, EVB, EMID, EONE, EKC, ESC, RDY = range(AW + 13, AW + 21)
P1_END = RDY + 1
T_QA, T_QB, T_KA, T_KB, T_VA, T_VB, T_MID = range(7)
acc = lambda n, tt: ACC + (2 * n + tt) * 4

def p1_issue(n):
    st = n % 3; L = []
    for h in range(2):
        L.append([f"s_add_u32 m0, s{S_T2}, {st*16384 + h*8192}",
                  f"s_mov_b32 s{S_WOFF}, {(2*n+h)*32*3456}",
                  f"buffer_load_dwordx4 v{AD}, {sr(SRD_W,4)}, s{S_WOFF} offen lds"])
    for u in range(4):
        L.append([f"s_add_u32 m0, s{S_T3}, {st*4096 + u*1024}",
                  f"s_add_u32 s{S_X1}, s{S_X0}, {128*n + (u>>1)*16*1152}",
                  f"buffer_load_dwordx4 v{AXD+(u&1)}, {sr(SRD_X,4)}, s{S_X1} offen lds"])
    return L

def p1_reads(ks):
    wf = WF + 28 * (ks % 2); xf = XF + 8 * (ks % 2)
    st = (ks // 2) % 3
    off = st * 16384 + (ks % 2) * 8192
    L = [[f"ds_read_b128 {vr(xf+4*tt,4)}, v{AXR+ks%2} offset:{st*4096 + tt*2048}" for tt in range(2)]]
    for n in (T_QA, T_QB, T_KA, T_KB, T_VA, T_VB, T_MID):
        g = [f"ds_read_b64_tr_b16 {vr(wf+4*n,2)}, v{AW+n} offset:{off}",
             f"ds_read_b64_tr_b16 {vr(wf+4*n+2,2)}, v{AW+n} offset:{off+1024}"]
        if n == T_MID:
            g += [f"s_mov_b64 exec, {sr(S_EX,2)}",
                  f"ds_read_b128 {vr(wf+4*n,4)}, v{AG} offset:{64*ks}",
                  "s_mov_b64 exec, -1"]
        L.append(g)
    return L

def byte_table(a, dst, idx, table):
    w = [sum(table[4*i+k] << (8*k) for k in range(4)) for i in range(len(table) // 4)]
    a(f"v_and_b32 v{dst}, 7, v{idx}\nv_or_b32 v{dst}, 0x0c0c0c00, v{dst}")
    a(f"s_mov_b32 s{S_CNT}, {hex(w[1])}\nv_mov_b32 v{ACC+4}, {hex(w[0])}")
    if len(w) == 2:
        a(f"v_perm_b32 v{dst}, s{S_CNT}, v{ACC+4}, v{dst}"); return
    a(f"v_perm_b32 v{ACC+5}, s{S_CNT}, v{ACC+4}, v{dst}")
    a(f"s_mov_b32 s{S_CNT}, {hex(w[3])}\nv_mov_b32 v{ACC+4}, {hex(w[2])}\nv_cmp_gt_u32 vcc, 8, v{idx}")
    a(f"v_perm_b32 v{dst}, s{S_CNT}, v{ACC+4}, v{dst}\ns_nop 0\nv_cndmask_b32 v{dst}, v{dst}, v{ACC+5}, vcc")

def phase1(a):
    a(f"""
    s_load_dwordx16 {sr(S_PTR,16)}, s[0:1], 0
    s_load_dwordx4 {sr(S_DBG,4)}, s[0:1], 64
    v_readfirstlane_b32 s{S_W}, v0
    v_and_b32 v1, 63, v0
    s_and_b32 s{S_T0}, s2, 7
    s_lshl_b32 s{S_T0}, s{S_T0}, 2
    s_bfe_u32 s{S_T1}, s2, 0x20003
    s_or_b32 s{S_GRP}, s{S_T0}, s{S_T1}
    s_lshr_b32 s{S_TB}, s2, 5
    s_lshr_b32 s{S_B}, s{S_GRP}, 4
    s_and_b32 s{S_P}, s{S_GRP}, 15
    s_lshr_b32 s{S_W}, s{S_W}, 6
    """)
    a(f"""
    v_lshrrev_b32 v2, 4, v1
    v_and_b32 v3, 15, v1
    s_bfe_u32 s{S_T0}, s{S_W}, 0x10001
    s_lshl_b32 s{S_T0}, s{S_T0}, 3
    v_lshlrev_b32 v4, 1, v2
    v_or_b32 v4, s{S_T0}, v4
    v_xor_b32 v4, v4, v3
    v_min_u32 v4, 14, v4
    v_mul_u32_u24 v5, 52, v4
    v_lshrrev_b32 v5, 8, v5
    v_lshlrev_b32 v4, 4, v4
    v_mul_u32_u24 v6, 1072, v5
    v_add_u32 v4, v4, v6
    v_and_b32 v5, 2, v5
    v_lshlrev_b32 v5, 2, v5
    v_sub_u32 v4, v4, v5
    v_mul_u32_u24 v5, 3456, v2
    s_mul_i32 s{S_T0}, s{S_W}, {4*3456}
    s_mul_i32 s{S_T1}, s{S_P}, 72
    s_add_u32 s{S_T0}, s{S_T0}, s{S_T1}
    v_add3_u32 v{AD}, v4, v5, s{S_T0}
    v_lshrrev_b32 v4, 3, v1
    v_mul_u32_u24 v4, 1152, v4
    v_and_b32 v5, 7, v1
    v_xor_b32 v5, v5, v2
    v_lshl_add_u32 v{AXD}, v5, 4, v4
    v_xor_b32 v5, 4, v5
    v_lshl_add_u32 v4, v5, 4, v4
    v_add_u32 v{AXD+1}, {8*1152}, v4
    s_lshl_b32 s{S_X0}, s{S_TB}, 3
    s_add_u32 s{S_X0}, s{S_X0}, s{S_W}
    s_mul_i32 s{S_X0}, s{S_X0}, {32*1152}
    s_lshl_b32 s{S_T2}, s{S_W}, 10
    s_mul_i32 s{S_T3}, s{S_W}, 12288
    s_add_u32 s{S_T3}, s{S_T3}, {XLDS}
    v_lshlrev_b32 v7, 4, v1
    v_add_u32 v7, s{S_T2}, v7
    s_add_u32 m0, s{S_T2}, {GATE_LDS}
    s_waitcnt lgkmcnt(0)
    s_cmp_eq_u32 s{S_B}, 0
    s_cselect_b32 s{S_PTR+2}, s{S_PTR+2}, s{S_PTR+8}
    s_cselect_b32 s{S_PTR+3}, s{S_PTR+3}, s{S_PTR+9}
    """)
    srd(a, SRD_W, S_PTR + 2, 576 * 3456)
    srd(a, SRD_X, S_PTR, 2048 * 1152)
    srd(a, SRD_G, S_PTR + 12, 1152)
    a(f"buffer_load_dwordx4 v7, {sr(SRD_G,4)}, 0 offen lds")
    for g in p1_issue(0):
        for x in g: a(x)
    srd(a, SRD_WS, S_DBG + 2, WS_END)
    srd(a, SRD_O, S_DBG, 256)
    a(f"""
    s_cmp_lg_u32 s2, 0
    s_cbranch_scc1 L_noclear
    v_mov_b32 v{ACC}, 0
    v_mov_b32 v{ACC+1}, 0
    v_mov_b32 v{ACC+2}, 0
    v_mov_b32 v{ACC+3}, 0
    s_mov_b32 s{S_T0}, {WS_F1}
    buffer_store_dwordx4 {vr(ACC,4)}, v7, {sr(SRD_WS,4)}, s{S_T0} offen sc1
    s_mov_b32 s{S_T0}, {WS_F2}
    buffer_store_dwordx4 {vr(ACC,4)}, v7, {sr(SRD_WS,4)}, s{S_T0} offen sc1
    s_nop 0
    """)
    a.label("L_noclear")
    for n in (1, 2):
        for g in p1_issue(n):
            for x in g: a(x)
    a(f"""
    v_lshrrev_b32 v4, 1, v3
    v_xor_b32 v4, v4, v2
    v_lshlrev_b32 v5, 7, v3
    v_add_u32 v5, s{S_T3}, v5
    v_lshl_add_u32 v{AXR}, v4, 4, v5
    v_xor_b32 v4, 4, v4
    v_lshl_add_u32 v{AXR+1}, v4, 4, v5
    v_bfe_u32 v4, v1, 2, 2
    v_and_b32 v5, 3, v1
    v_and_b32 v6, 1, v2
    v_lshlrev_b32 v6, 2, v6
    v_or_b32 v6, v6, v4
    v_lshlrev_b32 v6, 1, v6
    v_lshl_add_u32 v7, v2, 3, v4
    v_lshlrev_b32 v7, 8, v7
    """)
    u, t = ACC, ACC + 1
    def addr(n):
        a(f"""
        v_lshrrev_b32 v{t}, 1, v{u}
        v_xor_b32 v{t}, v{t}, v6
        v_lshl_add_u32 v{t}, v{t}, 4, v7
        v_and_b32 v{u+2}, 1, v{u}
        v_lshl_add_u32 v{AW+n}, v{u+2}, 3, v{t}
        """)
    a(f"v_lshrrev_b32 v{u}, 1, v5\nv_lshl_add_u32 v{u}, v5, 1, v{u}"); addr(T_QA)
    a(f"v_add_u32 v{u}, 1, v{u}"); addr(T_QB)
    a(f"v_add_u32 v{u}, 9, v{u}"); addr(T_KA)
    a(f"v_add_u32 v{u}, 1, v{u}"); addr(T_KB)
    a(f"v_add_u32 v{u}, 21, v5"); addr(T_VA)
    a(f"v_add_u32 v{u}, 25, v5"); addr(T_VB)
    a(f"v_lshlrev_b32 v{u}, 3, v5\ns_mov_b32 s{S_T0}, 0x1b1d0e04\nv_lshrrev_b32 v{u}, v{u}, s{S_T0}\nv_and_b32 v{u}, 0xff, v{u}"); addr(T_MID)
    a(f"v_lshlrev_b32 v{AG}, 4, v2\nv_add_u32 v{AG}, {GATE_LDS}, v{AG}")
    a(f"s_mov_b32 s{S_EX}, 0xf000f000\ns_mov_b32 s{S_EX+1}, 0xf000f000")
    byte_table(a, EVA, 3, [vpos_dim(d) for d in range(16)])
    byte_table(a, EVB, 3, [vpos_dim(16), vpos_dim(17)] + [vpos_dim(d) for d in range(14)])
    a(f"""
    s_lshr_b32 s{S_T0}, s{S_W}, 1
    s_mul_i32 s{S_T0}, s{S_T0}, {PB}
    s_and_b32 s{S_T1}, s{S_W}, 1
    v_lshrrev_b32 v4, 1, v2
    v_and_b32 v5, 1, v2
    v_mul_u32_u24 v6, {HS}, v4
    v_lshl_add_u32 v7, v5, 5, v3
    v_lshl_add_u32 v6, v7, 4, v6
    s_lshl_b32 s{S_QS}, s{S_T1}, 10
    s_add_u32 s{S_QS}, s{S_QS}, s{S_T0}
    v_add_u32 v{EKM}, s{S_QS}, v6
    s_mul_i32 s{S_QS}, s{S_T1}, {2*VSUB}
    s_add_u32 s{S_QS}, s{S_QS}, s{S_T0}
    s_add_u32 s{S_QS}, s{S_QS}, {VOFF}
    v_mul_u32_u24 v6, 320, v4
    v_lshl_add_u32 v6, v5, 3, v6
    v_add_u32 v6, s{S_QS}, v6
    v_lshl_add_u32 v{EVA}, v{EVA}, 4, v6
    v_lshl_add_u32 v{EVB}, v{EVB}, 4, v6
    v_mov_b32 v6, {HS}
    v_cmp_gt_u32 vcc, 2, v3
    v_lshrrev_b32 v4, 3, v3
    v_mul_u32_u24 v4, 320, v4
    v_cndmask_b32 v6, v6, 0, vcc
    v_add_u32 v{EVB}, v{EVB}, v6
    v_and_b32 v5, 7, v3
    v_lshl_add_u32 v4, v5, 1, v4
    s_add_u32 s{S_CNT}, s{S_QS}, {HS}
    v_add_u32 v4, s{S_CNT}, v4
    s_lshl_b32 s{S_T1}, s{S_T1}, 3
    s_add_u32 s{S_T1}, s{S_T1}, s{S_T0}
    s_add_u32 s{S_T1}, s{S_T1}, {KROFF}
    v_lshlrev_b32 v5, 4, v3
    v_add_u32 v5, s{S_T1}, v5
    v_add_u32 v6, {QIMG}, v5
    v_cmp_eq_u32 vcc, 1, v2
    v_add_u32 v7, 4, v6
    s_nop 0
    v_cndmask_b32 v6, v6, v5, vcc
    v_cmp_eq_u32 vcc, 2, v2
    v_mov_b32 v{ESC}, 1.0
    s_nop 0
    v_cndmask_b32 v6, v6, v4, vcc
    v_cmp_eq_u32 vcc, 3, v2
    v_mov_b32 v5, {hex(f32(QSCALE))}
    s_nop 0
    v_cndmask_b32 v{EMID}, v6, v7, vcc
    v_cmp_eq_u32 vcc, 0, v2
    v_bfe_u32 v4, v1, 2, 1
    v_mul_u32_u24 v4, {HS}, v4
    v_cndmask_b32 v{ESC}, v{ESC}, v5, vcc
    v_and_b32 v5, 3, v1
    v_mul_u32_u24 v5, 320, v5
    v_bfe_u32 v6, v1, 3, 1
    v_mul_u32_u24 v6, {16*(vpos_slot(18)-vpos_slot(19))}, v6
    v_add3_u32 v4, v4, v5, v6
    s_add_u32 s{S_QS}, s{S_QS}, {16*vpos_slot(19)}
    v_add_u32 v{EONE}, s{S_QS}, v4
    v_lshrrev_b32 v4, 5, v1
    v_mul_u32_u24 v4, {HS}, v4
    v_and_b32 v5, 31, v1
    v_lshl_add_u32 v4, v5, 4, v4
    s_add_u32 s{S_T1}, s{S_T1}, 4
    v_add_u32 v{EKC}, s{S_T1}, v4
    s_mov_b32 s{S_QS}, {hex(f32(QSCALE))}
    v_mov_b32 v7, 0
    """)
    stamp(a, 1)
    a("s_waitcnt vmcnt(12)\ns_barrier")
    stamp(a, 2)
    for g in p1_reads(0):
        for x in g: a(x)
    issued = 2
    extra = 0
    for ks in range(18):
        n = ks // 2
        a("s_waitcnt lgkmcnt(0)")
        dma = []
        if ks % 2 == 1 and n + 1 < 9:
            a(f"s_waitcnt vmcnt({6*(issued - n - 1)})\ns_barrier")
            if ks == 1:
                a(f"""
                s_or_b32 s{S_T0}, s2, s{S_W}
                s_cbranch_scc1 L_noready
                v_mov_b32 v6, 1
                s_mov_b64 exec, 1
                buffer_store_dword v6, v7, {sr(SRD_O,4)}, 0 offen sc1
                s_mov_b64 exec, -1
                """)
                a.label("L_noready")
            if n + 3 < 9:
                dma = p1_issue(n + 3); issued = n + 3
            if ks == 15:
                a(f"buffer_load_dword v{RDY}, v7, {sr(SRD_O,4)}, 0 offen sc1")
        groups = p1_reads(ks + 1) if ks + 1 < 18 else []
        wf = WF + 28 * (ks % 2); x = XF + 8 * (ks % 2)
        i = 0
        for nn in (T_QA, T_QB, T_KA, T_KB, T_VA, T_VB, T_MID):
            for tt in range(2):
                c = vr(acc(nn, tt), 4)
                cin = "0" if ks == 0 else c
                if OPT.get("nomfma") and 0 < ks < 17: pass
                elif nn in (T_VA, T_VB):
                    a(f"v_mfma_f32_16x16x32_bf16 {c}, {vr(x+4*tt,4)}, {vr(wf+4*nn,4)}, {cin}")
                else:
                    a(f"v_mfma_f32_16x16x32_bf16 {c}, {vr(wf+4*nn,4)}, {vr(x+4*tt,4)}, {cin}")
                if i < len(groups):
                    for y in groups[i]: a(y)
                if 0 <= i - 8 < len(dma):
                    for y in dma[i - 8]: a(y)
                i += 1
    stamp(a, 3)
    a("s_barrier")
    T = WF
    a(f"v_bfe_u32 v{T+16}, v1, 3, 1\ns_mov_b32 s{S_T0}, 0x3f803f80\nv_mul_lo_u32 v{T+16}, v{T+16}, s{S_T0}\nv_mov_b32 v{T+20}, 0x3f80")
    a(f"v_mov_b32 v{T+17}, v{T+16}\nv_mov_b32 v{T+18}, v{T+16}\nv_mov_b32 v{T+19}, v{T+16}")
    a(f"ds_write_b32 v{EKC}, v{T+20}")
    a(f"s_mov_b64 exec, 0xffff\nds_write_b128 v{EONE}, {vr(T+16,4)}\ns_mov_b64 exec, -1")
    a(f"v_add_u32 v{T+21}, {QIMG}, v{EKM}")
    for tt in range(2):
        t = T + 24 + 16 * tt
        for k, n in enumerate((T_KA, T_KB)):
            c = acc(n, tt)
            a(f"v_cvt_pk_bf16_f32 v{t+2*k}, v{c}, v{c+1}\nv_cvt_pk_bf16_f32 v{t+2*k+1}, v{c+2}, v{c+3}")
        a(f"ds_write_b128 v{EKM}, {vr(t,4)} offset:{256*tt}")
        for k, (n, ad) in enumerate(((T_VA, EVA), (T_VB, EVB))):
            c = acc(n, tt)
            a(f"v_cvt_pk_bf16_f32 v{t+4+2*k}, v{c}, v{c+1}\nv_cvt_pk_bf16_f32 v{t+5+2*k}, v{c+2}, v{c+3}")
            a(f"ds_write_b64 v{ad}, {vr(t+4+2*k,2)} offset:{VSUB*tt}")
        c = acc(T_MID, tt)
        for e in range(4): a(f"v_mul_f32 v{c+e}, v{ESC}, v{c+e}")
        a(f"v_cvt_pk_bf16_f32 v{t+12}, v{c}, v{c+1}\nv_cvt_pk_bf16_f32 v{t+13}, v{c+2}, v{c+3}")
        vo = [VSUB * tt + 16 * vpos_dim(14 + e) for e in range(4)]
        a(f"""
        s_mov_b32 exec_lo, 0
        s_mov_b32 exec_hi, 0xffff
        ds_write_b16 v{EMID}, v{t+12} offset:{vo[0]}
        ds_write_b16_d16_hi v{EMID}, v{t+12} offset:{vo[1]}
        ds_write_b16 v{EMID}, v{t+13} offset:{vo[2]}
        ds_write_b16_d16_hi v{EMID}, v{t+13} offset:{vo[3]}
        s_mov_b32 exec_hi, 0xffff0000
        v_mov_b32 v{t+12}, v{c}
        v_mov_b32 v{t+13}, v{c}
        s_mov_b32 exec_lo, -1
        ds_write_b32 v{EMID}, v{t+12} offset:{256*tt}
        ds_write_b32 v{EMID}, v{t+13} offset:{256*tt+HS}
        s_mov_b64 exec, -1
        """)
        for k, n in enumerate((T_QA, T_QB)):
            c = acc(n, tt)
            for e in range(4): a(f"v_mul_f32 v{c+e}, s{S_QS}, v{c+e}")
            a(f"v_cvt_pk_bf16_f32 v{t+8+2*k}, v{c}, v{c+1}\nv_cvt_pk_bf16_f32 v{t+9+2*k}, v{c+2}, v{c+3}")
        a(f"ds_write_b128 v{T+21}, {vr(t+8,4)} offset:{256*tt}")
    spin(a, "rdy", f"buffer_load_dword v{RDY}, v7, {sr(SRD_O,4)}, 0 offen sc1", RDY)
    a("s_waitcnt lgkmcnt(0)\ns_barrier")

SB = (8, 40); OA = 72; QM = 104; QR = 112; KM = 116; KR = 120; VF = 124
IDX, BKM, BKR, BV, AKM, AKR, AV, VG, DA, DW, FL, FA = range(132, 144)
TMP = 144
P2_END = TMP + 24
ORDER = "E3 s3p lv1 E3 2b lkr E8 w0 s0 E4 s1 E4 m0 E4 s2 lv0 E3 m1 lkm E3"

def copy_out(a):
    tmp = TMP
    a(f"""
    v_lshlrev_b32 v{DA}, 4, v1
    s_lshl_b32 s{S_T0}, s{S_W}, 10
    v_add_u32 v{DA}, s{S_T0}, v{DA}
    s_lshl_b32 s{S_KVB}, s{S_GRP}, 3
    s_add_u32 s{S_T0}, s{S_KVB}, s{S_TB}
    s_mul_i32 s{S_KVB}, s{S_KVB}, {SLOT}
    """)
    for u in range(5):
        a(f"ds_read_b128 {vr(tmp+4*u,4)}, v{DA} offset:{8192*u}")
    a(f"""
    s_lshl_b32 s{S_T1}, s{S_T0}, 3
    s_add_u32 s{S_T1}, s{S_T1}, s{S_W}
    s_lshl_b32 s{S_T1}, s{S_T1}, 2
    s_add_u32 s{S_X0}, s{S_T1}, {WS_F1}
    s_lshl_b32 s{S_X1}, s{S_GRP}, 8
    s_add_u32 s{S_X1}, s{S_X1}, {WS_F1}
    s_mul_i32 s{S_T0}, s{S_T0}, {SLOT}
    v_lshlrev_b32 v{FA}, 2, v1
    """)
    for u in range(5):
        a(f"s_waitcnt lgkmcnt({4-u})")
        a(f"buffer_store_dwordx4 {vr(tmp+4*u,4)}, v{DA}, {sr(SRD_WS,4)}, s{S_T0} offen sc1")
        a(f"s_add_u32 s{S_T0}, s{S_T0}, 8192")

def put_flag(a, soff):
    a(f"""
    v_mov_b32 v{FL}, 1
    s_mov_b64 exec, 1
    buffer_store_dword v{FL}, v{FA}, {sr(SRD_WS,4)}, s{soff} offen sc1
    s_mov_b64 exec, -1
    """)

def dma_piece(a):
    a(f"""
    s_mov_b32 m0, s{S_M0}
    s_mov_b64 exec, {sr(S_EX,2)}
    buffer_load_dwordx4 v{DA}, {sr(SRD_G,4)}, s{S_SOFF} offen sc1 lds
    s_mov_b64 exec, -1
    s_add_u32 s{S_M0}, s{S_M0}, s{S_MSTEP}
    s_add_u32 s{S_SOFF}, s{S_SOFF}, s{S_SSTEP}
    """)

def kv_setup(a, dc):
    a(f"""
    s_add_u32 s{S_T0}, s{S_CH}, {dc}
    s_and_b32 s{S_T1}, s{S_T0}, 3
    s_mul_i32 s{S_M0}, s{S_T1}, {SLOT}
    s_lshl_b32 s{S_T1}, s{S_W}, 10
    s_add_u32 s{S_M0}, s{S_M0}, s{S_T1}
    s_add_u32 s{S_T0}, s{S_T0}, s{S_TB}
    s_and_b32 s{S_T0}, s{S_T0}, 7
    s_mul_i32 s{S_T0}, s{S_T0}, {SLOT}
    s_add_u32 s{S_SOFF}, s{S_T0}, s{S_KVB}
    """)

WPIECE = 864
def wo_srd(a, b):
    p = S_PTR + 4 + 6 * b
    a(f"s_mov_b32 s{SRD_G}, s{p}\ns_and_b32 s{SRD_G+1}, s{p+1}, 0xffff\ns_mov_b32 s{SRD_G+2}, {576*1152}")
def wo_setup(a, b, n0):
    wo_srd(a, b)
    a(f"""
    s_add_u32 s{S_T0}, s{S_W}, {n0}
    s_mul_i32 s{S_SOFF}, s{S_T0}, {6*1152}
    s_mul_i32 s{S_M0}, s{S_T0}, {WPIECE}
    s_add_u32 s{S_M0}, s{S_M0}, {96*WPIECE*b}
    """)

def att_ops(t):
    par = t % 2
    cur, nxt = SB[par], SB[1 - par]
    pb = lambda x: ((x % 8) // 2) * PB
    return cur, {
     "2b": f"v_mfma_f32_32x32x4_2b_bf16 {vr(nxt,32)}, {vr(KR+2*(1-par),2)}, {vr(QR,2)}, 0",
     "m0": f"v_mfma_f32_32x32x16_bf16 {vr(nxt,16)}, {vr(KM,4)}, {vr(QM,4)}, {vr(nxt,16)}",
     "m1": f"v_mfma_f32_32x32x16_bf16 {vr(nxt+16,16)}, {vr(KM,4)}, {vr(QM+4,4)}, {vr(nxt+16,16)}",
     "s0": f"v_smfmac_f32_32x32x32_bf16 {vr(OA,16)}, {vr(VF,4)}, {vr(cur,8)}, v{IDX}",
     "s1": f"v_smfmac_f32_32x32x32_bf16 {vr(OA,16)}, {vr(VF+4,4)}, {vr(cur+8,8)}, v{IDX}",
     "s2": f"v_smfmac_f32_32x32x32_bf16 {vr(OA+16,16)}, {vr(VF,4)}, {vr(cur+16,8)}, v{IDX}",
     "s3": f"v_smfmac_f32_32x32x32_bf16 {vr(OA+16,16)}, {vr(VF+4,4)}, {vr(cur+24,8)}, v{IDX}",
     "s3p": f"v_smfmac_f32_32x32x32_bf16 {vr(OA+16,16)}, {vr(VF+4,4)}, {vr(nxt+24,8)}, v{IDX}",
     "lkr": f"ds_read_b128 {vr(KR,4)}, v{AKR} offset:{pb(t+2)}" if par == 0 else None,
     "lkm": f"ds_read_b128 {vr(KM,4)}, v{AKM} offset:{pb(t+2)+1024*par}",
     "lv0": f"ds_read_b128 {vr(VF,4)}, v{AV} offset:{pb(t+1)+2*VSUB*(1-par)}",
     "lv1": f"ds_read_b128 {vr(VF+4,4)}, v{AV} offset:{pb(t)+2*VSUB*par+VSUB}",
    }

def att_tile(a, t, hooks=None):
    cur, ops = att_ops(t)
    e = 0
    for tok in ORDER.split():
        if hooks and tok in hooks: hooks[tok]()
        if tok[0] == "E":
            for _ in range(int(tok[1:])):
                a(f"v_exp_f32 v{cur+e}, v{cur+e}"); e += 1
        elif tok[0] == "w": a(f"s_waitcnt lgkmcnt({tok[1:]})")
        elif ops[tok]: a(ops[tok])

def att_setup(a):
    a(f"""
    s_lshr_b32 s{S_T0}, s{S_W}, 2
    s_mul_i32 s{S_T0}, s{S_T0}, {HS}
    v_lshlrev_b32 v2, 4, v1
    v_add_u32 v{BKM}, s{S_T0}, v2
    v_and_b32 v3, 31, v1
    v_lshlrev_b32 v4, 4, v3
    s_add_u32 s{S_T1}, s{S_T0}, {KROFF}
    v_add_u32 v{BKR}, s{S_T1}, v4
    v_lshrrev_b32 v5, 5, v1
    s_and_b32 s{S_T2}, s{S_W}, 3
    s_mul_i32 s{S_T2}, s{S_T2}, {PB}
    s_add_u32 s{S_T2}, s{S_T2}, {QIMG}
    v_add_u32 v6, s{S_T2}, v{BKM}
    v_lshl_add_u32 v7, v5, 3, v{BKR}
    v_add_u32 v7, s{S_T2}, v7
    ds_read_b128 {vr(QM,4)}, v6
    ds_read_b128 {vr(QM+4,4)}, v6 offset:1024
    ds_read_b64 {vr(QR,2)}, v7
    ds_read_b128 {vr(KR,4)}, v{BKR}
    ds_read_b128 {vr(KM,4)}, v{BKM}
    v_min_u32 v3, 19, v3
    v_lshrrev_b32 v4, 2, v3
    v_lshlrev_b32 v4, 3, v4
    s_mov_b32 s{S_T2}, 0x1004000c
    v_lshrrev_b32 v6, v4, s{S_T2}
    v_and_b32 v6, 0xff, v6
    v_and_b32 v7, 3, v3
    v_add_u32 v6, v6, v7
    v_add_u32 v7, 1, v7
    v_and_b32 v7, 3, v7
    v_or_b32 v7, 8, v7
    v_cmp_gt_u32 vcc, 16, v3
    v_mul_u32_u24 v5, 20, v5
    s_add_u32 s{S_T1}, s{S_T0}, {VOFF}
    v_cndmask_b32 v3, v7, v6, vcc
    v_add_u32 v3, v3, v5
    v_lshlrev_b32 v3, 4, v3
    v_add_u32 v{BV}, s{S_T1}, v3
    v_mov_b32 v{IDX}, 0xdddddddd
    v_mov_b32 v{AKM}, v{BKM}
    v_mov_b32 v{AKR}, v{BKR}
    v_mov_b32 v{AV}, v{BV}
    """)
    s0, s1 = SB
    a(f"s_waitcnt lgkmcnt(2)\nv_mov_b32 v{VG}, v{QR+1}\nv_mov_b32 v{QR+1}, 0")
    a(f"ds_read_b128 {vr(VF,4)}, v{AV}\ns_waitcnt lgkmcnt(1)")
    qk = lambda: (a(f"v_mfma_f32_32x32x4_2b_bf16 {vr(s0,32)}, {vr(KR,2)}, {vr(QR,2)}, 0"))
    def mains():
        a(f"v_mfma_f32_32x32x16_bf16 {vr(s0,16)}, {vr(KM,4)}, {vr(QM,4)}, {vr(s0,16)}")
        a(f"v_mfma_f32_32x32x16_bf16 {vr(s0+16,16)}, {vr(KM,4)}, {vr(QM+4,4)}, {vr(s0+16,16)}")
    qk()
    for i in range(20): a(f"v_mov_b32 v{OA+i}, 0")
    mains()
    for i in range(20, 32): a(f"v_mov_b32 v{OA+i}, 0")
    T = TMP + 20
    for blk in range(2):
        b = s0 + 16 * blk; m = T + blk
        a(f"v_max3_f32 v{m}, v{b}, v{b+1}, v{b+2}")
        for i in range(3, 15, 2): a(f"v_max3_f32 v{m}, v{m}, v{b+i}, v{b+i+1}")
        a(f"v_max_f32 v{m}, v{m}, v{b+15}")
    a(f"""
    s_nop 1
    v_permlane32_swap_b32 v{T}, v{T+1}
    v_max_f32 v{T}, v{T}, v{T+1}
    v_cvt_pk_bf16_f32 v{QR+1}, -v{T}, 0
    s_nop 1
    """)
    qk()
    for i in range(8): a(f"v_mov_b32 v{s1+24+i}, 0")
    for i in range(4): a(f"v_mov_b32 v{VF+4+i}, 0")
    a(f"""
    s_lshr_b32 s{S_C0}, s2, 5
    s_mul_i32 s{S_C0}, s{S_C0}, 144
    v_mul_u32_u24 v2, 57, v1
    v_lshrrev_b32 v2, 9, v2
    v_mul_u32_u24 v2, {1152 - 144}, v2
    v_lshl_add_u32 v2, v1, 4, v2
    v_add_u32 v{DW}, s{S_C0}, v2
    """)
    mains()
    a(f"""
    ds_read_b128 {vr(KM,4)}, v{AKM} offset:1024
    s_mov_b32 s{SRD_G}, s{SRD_WS}
    s_mov_b32 s{SRD_G+1}, s{SRD_WS+1}
    s_mov_b32 s{SRD_G+2}, {256*SLOT}
    s_mov_b64 {sr(S_OK,2)}, -1
    s_mov_b64 {sr(S_EX,2)}, -1
    s_mov_b32 s{S_CH}, 0
    s_mov_b32 s{S_MSTEP}, 8192
    s_mov_b32 s{S_SSTEP}, 8192
    s_nop 1
    """)

def att_chunk(a, first=False):
    tag = "0" if first else "n"
    def sync():
        a("s_waitcnt vmcnt(5)\ns_barrier")
        a(f"""
        s_add_u32 s{S_NSL}, s{S_CH}, 1
        s_and_b32 s{S_NSL}, s{S_NSL}, 3
        s_mul_i32 s{S_NSL}, s{S_NSL}, {SLOT}
        v_add_u32 v{AKR}, s{S_NSL}, v{BKR}
        v_add_u32 v{AKM}, s{S_NSL}, v{BKM}
        """)
        if first:
            kv_setup(a, 3); return
        a(f"s_cmp_ge_u32 s{S_CH}, 5\ns_cbranch_scc1 L_wo_setup")
        kv_setup(a, 3)
        a.label("L_setup_done")
    load1 = f"buffer_load_dword v{FL}, v{FA}, {sr(SRD_WS,4)}, s{S_X1} offen sc1"
    def publish():
        a("s_waitcnt vmcnt(0)"); put_flag(a, S_X0); stamp(a, 5)
    def acquire():
        spin(a, "kv", load1, FL); stamp(a, 6); kv_setup(a, 1)
    P = lambda: dma_piece(a)
    tp, tl, ta = int(OPT.get("tp", 1)), int(OPT.get("tl", 2)), int(OPT.get("ta", 3))
    for t in range(8):
        hooks = {}
        if first:
            if t == tp: hooks["s3p"] = publish
            if t == tl: hooks["m1"] = lambda: a(load1)
            if t == ta:
                hooks["s1"] = lambda: (acquire(), P())
                hooks["m0"] = P; hooks["s2"] = P; hooks["m1"] = P
            if t == ta + 1:
                hooks["s3p"] = P
                hooks["2b"] = lambda: (kv_setup(a, 2), P())
                hooks["s0"] = P; hooks["s1"] = P; hooks["m0"] = P; hooks["s2"] = P
        if t == 6:
            hooks["lkr"] = sync
            hooks["s1"] = P
            hooks["s2"] = P
        if t == 7:
            hooks["2b"] = P
            hooks["s1"] = P
            hooks["m1"] = P
            hooks["lv0"] = lambda: a(f"v_add_u32 v{AV}, s{S_NSL}, v{BV}")
        att_tile(a, t, hooks)

def att_wo_setup(a):
    a.label("L_wo_setup")
    a(f"""
    v_mov_b32 v{DA}, v{DW}
    s_mov_b32 s{S_EX+1}, 0x3fffff
    s_mov_b32 s{S_MSTEP}, {8*WPIECE}
    s_mov_b32 s{S_SSTEP}, {8*6*1152}
    s_cmp_eq_u32 s{S_CH}, 6
    s_cbranch_scc1 L_setup_done
    s_cmp_eq_u32 s{S_CH}, 7
    s_cbranch_scc1 L_wo_setup_b
    """)
    wo_setup(a, 0, 0)
    a("s_branch L_setup_done")
    a.label("L_wo_setup_b")
    wo_setup(a, 1, 0)
    a("s_branch L_setup_done")

def att_finish(a):
    _, ops = att_ops(7)
    a(f"s_nop 1\n{ops['s3']}\ns_waitcnt lgkmcnt(0)\ns_barrier")
    T = TMP
    a(f"""
    s_lshl_b32 s{S_T0}, s{S_B}, 31
    s_xor_b32 s{S_T0}, s{S_T0}, {hex(f32(-math.log2(math.e)))}
    v_mul_f32 v{VG}, s{S_T0}, v{VG}
    v_exp_f32 v{VG}, v{VG}
    s_and_b32 s{S_T0}, s{S_W}, 3
    v_add_f32 v{VG}, 1.0, v{VG}
    v_rcp_f32 v{VG}, v{VG}
    s_lshl_b32 s{S_T1}, s{S_TB}, 2
    s_add_u32 s{S_T0}, s{S_T0}, s{S_T1}
    s_lshl_b32 s{S_T1}, s{S_T0}, 17
    s_lshl_b32 s{S_T2}, s{S_GRP}, 10
    s_add_u32 s{S_T1}, s{S_T1}, s{S_T2}
    s_lshr_b32 s{S_T3}, s{S_W}, 2
    s_lshl_b32 s{S_T2}, s{S_T3}, 9
    s_add_u32 s{S_T1}, s{S_T1}, s{S_T2}
    s_add_u32 s{S_X0}, s{S_T1}, {WS_OM}
    s_add_u32 s{S_X1}, s{S_X0}, 0x10000
    v_bfe_u32 v2, v1, 4, 1
    v_lshlrev_b32 v2, 15, v2
    v_lshrrev_b32 v3, 5, v1
    v_lshl_add_u32 v2, v3, 8, v2
    v_and_b32 v3, 15, v1
    v_lshl_add_u32 v2, v3, 4, v2
    s_lshl_b32 s{S_QS}, s{S_T0}, 8
    s_lshl_b32 s{S_T2}, s{S_GRP}, 3
    s_add_u32 s{S_QS}, s{S_QS}, s{S_T2}
    s_lshl_b32 s{S_T0}, s{S_T0}, 9
    s_lshl_b32 s{S_T2}, s{S_GRP}, 14
    s_add_u32 s{S_T0}, s{S_T0}, s{S_T2}
    s_lshl_b32 s{S_T3}, s{S_T3}, 2
    s_add_u32 s{S_T0}, s{S_T0}, s{S_T3}
    s_add_u32 s{S_WOFF}, s{S_T0}, {WS_OR}
    s_add_u32 s{S_QS}, s{S_QS}, s{S_T3}
    s_add_u32 s{S_QS}, s{S_QS}, {WS_F2}
    v_lshlrev_b32 v3, 3, v1
    """)
    a.label("L_att_norm")
    m = T + 2
    a(f"""
    v_mov_b32 v{T}, v{OA+10}
    v_mov_b32 v{T+1}, v{OA+26}
    s_mov_b32 s{S_T0}, {hex(f32(2.0**-60))}
    s_mov_b32 s{S_T1}, {hex(f32(2.0**60))}
    v_permlane32_swap_b32 v{T}, v{T+1}
    v_add_f32 v{m}, |v{OA}|, |v{OA+16}|
    v_cmp_nle_f32 s[4:5], s{S_T0}, v{T}
    v_cmp_nge_f32 s[6:7], s{S_T1}, v{T}
    v_rcp_f32 v{T}, v{T}
    """)
    for i in range(1, 10): a(f"v_add_f32 v{m}, v{m}, |v{OA+i}|\nv_add_f32 v{m}, v{m}, |v{OA+16+i}|")
    a(f"""
    s_mov_b32 s{S_T0}, 0x7f000000
    v_mul_f32 v{T}, v{T}, v{VG}
    v_cmp_nge_f32 vcc, s{S_T0}, v{m}
    v_mov_b32 v{T+1}, v{T}
    s_or_b64 s[4:5], s[4:5], s[6:7]
    s_or_b64 vcc, vcc, s[4:5]
    s_and_b64 vcc, vcc, {sr(S_OK,2)}
    s_cbranch_vccnz L_att_slow
    v_permlane32_swap_b32 v{T}, v{T+1}
    """)
    for blk in range(2):
        o = OA + 16 * blk; f = T + blk; d = T + 4 + 4 * blk
        for i in range(10): a(f"v_mul_f32 v{o+i}, v{f}, v{o+i}")
        for i in range(4): a(f"v_cvt_pk_bf16_f32 v{d+i}, v{o+2*i}, v{o+2*i+1}")
        a(f"buffer_store_dwordx4 {vr(d,4)}, v2, {sr(SRD_WS,4)}, s{S_X0+blk} offen sc1")
        a(f"v_cvt_pk_bf16_f32 v{T+12+blk}, v{o+8}, v{o+9}")
    a(f"s_nop 1\nv_permlane32_swap_b32 v{T+12}, v{T+13}")
    a(f"buffer_store_dword v{T+12}, v3, {sr(SRD_WS,4)}, s{S_WOFF} offen sc1")

def att_slow(a):
    s0 = SB[0]; T = TMP
    M0, M1, GK = T + 16, T + 17, T + 18
    a.label("L_att_slow")
    a(f"""
    s_mov_b64 {sr(S_OK,2)}, 0
    v_mov_b32 v{QR+1}, 0
    v_mov_b32 v{M0}, 0xff800000
    v_mov_b32 v{M1}, 0xff800000
    s_waitcnt vmcnt(0) lgkmcnt(0)
    """)
    for i in range(32): a(f"v_mov_b32 v{OA+i}, 0")
    for ps in range(2):
        a(f"s_mov_b32 s{S_CNT}, 0")
        a.label(f"L_slow_{ps}")
        a(f"""
        s_lshr_b32 s{S_T0}, s{S_CNT}, 1
        s_bfe_u32 s{S_T1}, s{S_CNT}, 0x30003
        s_lshl_b32 s{S_T1}, s{S_T1}, 2
        s_add_u32 s{S_T0}, s{S_T0}, s{S_T1}
        s_mul_i32 s{S_T0}, s{S_T0}, {PB}
        s_add_u32 s{S_T0}, s{S_T0}, s{S_KVB}
        s_and_b32 s{S_T1}, s{S_CNT}, 1
        s_lshl_b32 s{S_T2}, s{S_T1}, 10
        s_add_u32 s{S_T2}, s{S_T2}, s{S_T0}
        buffer_load_dwordx4 {vr(KM,4)}, v{BKM}, {sr(SRD_WS,4)}, s{S_T2} offen sc1
        s_lshl_b32 s{S_T2}, s{S_T1}, 3
        s_add_u32 s{S_T2}, s{S_T2}, s{S_T0}
        buffer_load_dwordx2 {vr(KR,2)}, v{BKR}, {sr(SRD_WS,4)}, s{S_T2} offen sc1
        s_mul_i32 s{S_T2}, s{S_T1}, {2*VSUB}
        s_add_u32 s{S_T2}, s{S_T2}, s{S_T0}
        buffer_load_dwordx4 {vr(VF,4)}, v{BV}, {sr(SRD_WS,4)}, s{S_T2} offen sc1
        buffer_load_dwordx4 {vr(VF+4,4)}, v{BV}, {sr(SRD_WS,4)}, s{S_T2} offen offset:{VSUB} sc1
        s_waitcnt vmcnt(0)
        v_mfma_f32_32x32x4_2b_bf16 {vr(s0,32)}, {vr(KR,2)}, {vr(QR,2)}, 0
        """)
        a.nop(20)
        a(f"v_mfma_f32_32x32x16_bf16 {vr(s0,16)}, {vr(KM,4)}, {vr(QM,4)}, {vr(s0,16)}")
        a(f"v_mfma_f32_32x32x16_bf16 {vr(s0+16,16)}, {vr(KM,4)}, {vr(QM+4,4)}, {vr(s0+16,16)}")
        a.nop(14)
        if ps == 0:
            for blk, m in enumerate((M0, M1)):
                for i in range(0, 16, 2): a(f"v_max3_f32 v{m}, v{m}, v{s0+16*blk+i}, v{s0+16*blk+i+1}")
        else:
            for i in range(32): a(f"v_sub_f32 v{s0+i}, v{s0+i}, v{M0 if i < 16 else M1}")
            for i in range(32): a(f"v_exp_f32 v{s0+i}, v{s0+i}")
            a.nop(2)
            for i in range(4):
                a(f"v_smfmac_f32_32x32x32_bf16 {vr(OA+16*(i//2),16)}, {vr(VF+4*(i%2),4)}, {vr(s0+8*i,8)}, v{IDX}")
            a.nop(14)
        a(f"s_add_u32 s{S_CNT}, s{S_CNT}, 1\ns_cmp_lt_u32 s{S_CNT}, 64\ns_cbranch_scc1 L_slow_{ps}")
        if ps == 0:
            for m in (M0, M1):
                a(f"v_mov_b32 v{GK}, v{m}\ns_nop 1\nv_permlane32_swap_b32 v{GK}, v{m}\nv_max_f32 v{m}, v{m}, v{GK}")
    a("s_branch L_att_norm")

OACC = 8
OF = OACC + 20
WB = OF + 72
WBUF = (WB, 144, 164)
AM, AM8, AM15, AR, AR3 = range(WB + 20, WB + 25)
P3_END = 184
S_TT, S_TOK = S_GRP, S_TB

def phase3(a):
    wo_setup(a, 1, 40)
    for u in range(6): dma_piece(a)
    a(f"s_cmp_ge_u32 s{S_W}, 5\ns_cbranch_scc1 L_wo_short")
    dma_piece(a)
    a.label("L_wo_short")
    wo_setup(a, 0, 80)
    dma_piece(a); dma_piece(a)
    a("s_waitcnt vmcnt(8)")
    put_flag(a, S_QS)
    stamp(a, 9)
    a(f"""
    s_and_b32 s{S_TT}, s{S_W}, 3
    s_lshr_b32 s{S_B}, s{S_W}, 2
    s_and_b32 s{S_T0}, s2, 7
    s_lshl_b32 s{S_T0}, s{S_T0}, 2
    s_bfe_u32 s{S_T1}, s2, 0x20003
    s_add_u32 s{S_T0}, s{S_T0}, s{S_T1}
    s_lshl_b32 s{S_QS}, s{S_T0}, 8
    s_add_u32 s{S_QS}, s{S_QS}, {WS_F2}
    s_lshl_b32 s{S_T0}, s{S_T0}, 2
    s_add_u32 s{S_TOK}, s{S_T0}, s{S_TT}
    v_lshrrev_b32 v2, 4, v1
    v_bfe_u32 v3, v1, 2, 2
    v_and_b32 v4, 3, v1
    v_lshlrev_b32 v4, 3, v4
    s_mul_i32 s{S_T0}, s{S_B}, {576*144}
    v_and_b32 v5, 1, v2
    v_lshl_add_u32 v5, v5, 2, v3
    v_mul_u32_u24 v5, 288, v5
    v_add_u32 v5, v5, v4
    v_lshrrev_b32 v6, 1, v2
    v_mul_u32_u24 v7, 2592, v6
    v_add3_u32 v{AM}, v5, v7, s{S_T0}
    v_add_u32 v{AM8}, {8*5184}, v{AM}
    v_add_u32 v{AM15}, {15*5184}, v{AM}
    v_and_b32 v6, s{S_B}, v6
    v_cmp_eq_u32 vcc, 1, v6
    v_mul_u32_u24 v7, 5184, v2
    v_lshrrev_b32 v6, 1, v3
    v_cndmask_b32 v{AM15}, v{AM15}, v5, vcc
    v_and_b32 v5, 1, v3
    v_add_u32 v5, 16, v5
    v_mul_u32_u24 v5, 144, v5
    v_add_u32 v5, v5, v4
    v_mul_u32_u24 v4, 2592, v6
    v_add3_u32 v7, v7, v4, v5
    v_add_u32 v{AR}, s{S_T0}, v7
    v_add_u32 v{AR3}, {12*5184}, v{AR}
    v_lshrrev_b32 v4, 3, v1
    v_lshl_add_u32 v4, s{S_B}, 3, v4
    v_cmp_eq_u32 vcc, 15, v4
    v_lshlrev_b32 v2, 4, v1
    v_lshrrev_b32 v3, 4, v1
    v_cndmask_b32 v{AR3}, v{AR3}, v5, vcc
    v_lshlrev_b32 v3, 14, v3
    v_and_b32 v4, 15, v1
    v_lshl_add_u32 v3, v4, 3, v3
    s_lshl_b32 s{S_X0}, s{S_TOK}, 15
    s_lshl_b32 s{S_T0}, s{S_B}, 14
    s_add_u32 s{S_X0}, s{S_X0}, s{S_T0}
    s_add_u32 s{S_X0}, s{S_X0}, {WS_OM}
    s_lshl_b32 s{S_X1}, s{S_B}, 18
    s_lshl_b32 s{S_T0}, s{S_TOK}, 7
    s_add_u32 s{S_X1}, s{S_X1}, s{S_T0}
    s_add_u32 s{S_X1}, s{S_X1}, {WS_OR}
    """)
    steps = [16] + list(range(16)) + [17]
    def wreads(k):
        st = steps[k]; wb = WBUF[k % 3]; L = []
        for t in range(5):
            g = []
            for i in range(2):
                if st < 8: ad, off = AM, 5184 * st + 144 * i
                elif st < 15: ad, off = AM8, 5184 * (st - 8) + 144 * i
                elif st == 15: ad, off = AM15, 144 * i
                elif (st, i) == (17, 1): ad, off = AR3, 0
                else: ad, off = AR, 5184 * (8 * (st - 16) + 4 * i)
                g.append(f"ds_read_b64_tr_b16 {vr(wb+4*t+2*i,2)}, v{ad} offset:{off+32*t}")
            L.append(g)
        return L
    a("s_waitcnt vmcnt(8)\ns_barrier")
    for k in range(2):
        for g in wreads(k):
            for x in g: a(x)
    load2 = f"buffer_load_dword v{FL}, v{FA}, {sr(SRD_WS,4)}, s{S_QS} offen sc1"
    a(f"s_waitcnt lgkmcnt(0)\ns_barrier")
    a(f"""
    s_cmp_ge_u32 s{S_W}, 3
    s_cbranch_scc1 L_wo_last
    s_add_u32 s{S_T0}, s{S_W}, 93
    s_mul_i32 s{S_SOFF}, s{S_T0}, {6*1152}
    s_mul_i32 s{S_M0}, s{S_W}, {WPIECE}
    """)
    wo_srd(a, 1)
    dma_piece(a)
    a.label("L_wo_last")
    a(load2)
    srd(a, SRD_O, S_PTR + 14, 2048 * 1152)
    spin(a, "o", load2, FL)
    stamp(a, 10)
    nload = []
    for k, st in enumerate(steps):
        if st < 16:
            if st and st % 4 == 0: a(f"s_add_u32 s{S_X0}, s{S_X0}, 4096")
            a(f"buffer_load_dwordx4 {vr(OF+4*k,4)}, v2, {sr(SRD_WS,4)}, s{S_X0} offen offset:{1024*(st%4)} sc1")
            nload.append(1)
        else:
            for i in range(2):
                a(f"buffer_load_dwordx2 {vr(OF+4*k+2*i,2)}, v3, {sr(SRD_WS,4)}, s{S_X1} offen sc1")
                a(f"s_add_u32 s{S_X1}, s{S_X1}, 0x10000")
            nload.append(2)
    a("s_barrier")
    a(f"""
    v_lshlrev_b32 v2, 4, v1
    s_mul_i32 s{S_T0}, s{S_TT}, 5120
    v_add_u32 v2, s{S_T0}, v2
    v_and_b32 v3, 15, v1
    s_lshl_b32 s{S_T0}, s{S_TOK}, 4
    v_add_u32 v3, s{S_T0}, v3
    v_mul_u32_u24 v3, 1152, v3
    v_add_u32 v3, s{S_C0}, v3
    v_lshrrev_b32 v4, 4, v1
    v_lshl_add_u32 v5, v4, 3, v3
    v_and_b32 v6, 1, v4
    v_lshl_add_u32 v3, v6, 5, v3
    v_lshrrev_b32 v4, 1, v4
    v_lshl_add_u32 v3, v4, 4, v3
    """)
    for k in range(18):
        groups = wreads(k + 2) if k + 2 < 18 else []
        lg = 10 if 1 <= k < 17 else 0
        a(f"s_waitcnt vmcnt({sum(nload[k+1:])}) lgkmcnt({lg})")
        wb = WBUF[k % 3]
        for t in range(5):
            c = vr(OACC + 4 * t, 4)
            a(f"v_mfma_f32_16x16x32_bf16 {c}, {vr(wb+4*t,4)}, {vr(OF+4*k,4)}, {'0' if k == 0 else c}")
            if t < len(groups):
                for y in groups[t]: a(y)
    stamp(a, 11)
    T = OF
    a(f"s_barrier\ns_cmp_eq_u32 s{S_B}, 0\ns_cbranch_scc0 L_p3_b")
    def fin(tiles, give, off):
        a.nop(4)
        for t in give: a(f"ds_write_b128 v2, {vr(OACC+4*t,4)} offset:{1024*t}")
        a("s_waitcnt lgkmcnt(0)\ns_barrier")
        for k, t in enumerate(tiles): a(f"ds_read_b128 {vr(T+4*k,4)}, v2 offset:{1024*t}")
        for k, t in enumerate(tiles):
            a(f"s_waitcnt lgkmcnt({len(tiles)-1-k})")
            for e in range(4): a(f"v_add_f32 v{OACC+4*t+e}, v{OACC+4*t+e}, v{T+4*k+e}")
        d = T + 12
        t0, t1 = tiles[0], tiles[1]
        a(f"""
        v_cvt_pk_bf16_f32 v{d}, v{OACC+4*t0}, v{OACC+4*t0+1}
        v_cvt_pk_bf16_f32 v{d+1}, v{OACC+4*t0+2}, v{OACC+4*t0+3}
        v_cvt_pk_bf16_f32 v{d+2}, v{OACC+4*t1}, v{OACC+4*t1+1}
        v_cvt_pk_bf16_f32 v{d+3}, v{OACC+4*t1+2}, v{OACC+4*t1+3}
        s_nop 1
        v_permlane16_swap_b32 v{d}, v{d+2}
        v_permlane16_swap_b32 v{d+1}, v{d+3}
        buffer_store_dwordx4 {vr(d,4)}, v3, {sr(SRD_O,4)}, 0 offen offset:{off}
        """)
        if len(tiles) == 3:
            t2 = tiles[2]
            a(f"""
            v_cvt_pk_bf16_f32 v{d+4}, v{OACC+4*t2}, v{OACC+4*t2+1}
            v_cvt_pk_bf16_f32 v{d+5}, v{OACC+4*t2+2}, v{OACC+4*t2+3}
            s_mov_b32 exec_hi, 0
            buffer_store_dwordx2 {vr(d+4,2)}, v5, {sr(SRD_O,4)}, 0 offen offset:128
            """)
        if PROF: a("s_waitcnt vmcnt(0)")
        stamp(a, 12); stamp(a, 17, True); stamp_out(a)
        a("s_endpgm")
    fin((0, 1, 4), (2, 3), 0)
    a.label("L_p3_b")
    fin((2, 3), (0, 1, 4), 64)

def build():
    a = Asm()
    a("s_cmp_ge_u32 s2, 256\ns_cbranch_scc1 L_exit")
    stamp(a, 0); stamp(a, 16, True)
    phase1(a); stamp(a, 4)
    copy_out(a); att_setup(a)
    stamp(a, 18, True)
    att_chunk(a, first=True)
    a(f"s_mov_b32 s{S_CH}, 1")
    stamp(a, 7)
    a.label("L_att_loop")
    att_chunk(a)
    a(f"s_add_u32 s{S_CH}, s{S_CH}, 1\ns_cmp_lt_u32 s{S_CH}, 8\ns_cbranch_scc1 L_att_loop")
    stamp(a, 8); stamp(a, 19, True)
    att_finish(a); phase3(a)
    att_wo_setup(a); att_slow(a)
    a.label("L_exit"); a("s_endpgm")
    return a, max(P1_END, P2_END, P3_END)

def emit(path):
    a, nv = build()
    label = NAME + "_kernel"
    nv4 = (nv + 3) // 4 * 4
    s = open(f"cdna_kernels/{NAME}.s.ref").read().split("; Override launch")[0]
    s += "; @launch grid=(256,1,1) block=(512,1,1) lds=163840\n"
    s += f""".amdgcn_target "amdgcn-amd-amdhsa--gfx950"
.text
.globl {label}
.p2align 8
.type {label},@function
{label}:
{a.text()}.section .rodata,"a"
.p2align 6
.amdhsa_kernel {label}
  .amdhsa_next_free_vgpr {nv4}
  .amdhsa_next_free_sgpr {102 if PROF else 72}
  .amdhsa_accum_offset {nv4}
  .amdhsa_group_segment_fixed_size 0
  .amdhsa_kernarg_size 80
  .amdhsa_user_sgpr_count 2
  .amdhsa_user_sgpr_kernarg_segment_ptr 1
  .amdhsa_system_sgpr_workgroup_id_x 1
.end_amdhsa_kernel
"""
    errs = check_hazards(a.lines) + check_waits(a.lines)
    for e in errs: print(e)
    open(path, "w").write(s)
    print("wrote", path, "checks", "FAILED" if errs else "OK", len(a.lines), "lines", nv, "vgprs")

if __name__ == "__main__":
    for x in list(sys.argv):
        if x.startswith("-O"):
            k, v = (x[2:].split("=") + ["1"])[:2]; OPT[k] = v.replace("_", " "); sys.argv.remove(x)
    if "--prof" in sys.argv: PROF = True; sys.argv.remove("--prof")
    emit(sys.argv[1] if len(sys.argv) > 1 else f"cdna_kernels/{NAME}.s")
```

```python
import sys, math, struct
from asmlib import Asm, vr, sr, check_hazards, check_waits

NAME = "gated_mix__softmax_full_mha__softmax_full_mha__prompt"
def f32(x): return struct.unpack("<I", struct.pack("<f", x))[0]

VSUB = 640
VOFF, KROFF = 2048, 2048 + 4 * VSUB
PB = KROFF + 512
HS = 4 * PB
SLOT = 2 * HS
QIMG = 3 * SLOT
WST = (8192, 24576, 40960)
XST = (90112, 122880, 57344)
GATE_LDS = 155648
WS_KV = 0
WS_OM = 256 * SLOT
WS_OR = WS_OM + 128 * 32 * 1024
WS_F1 = WS_OR + 32 * 2048 * 8
WS_F2 = WS_F1 + 4096
WS_END = WS_F2 + 1024
QSCALE = math.log2(math.e) / math.sqrt(18.0)
SPIN_MAX = 1 << 18
def vpos_slot(s): return 12 + s if s < 4 else s - 4 if s < 12 else s + 4 if s < 16 else s - 7 if s < 19 else 8
def vslot_dim(d): return 8 * (d & 1) + (d >> 1) if d < 16 else d
def vpos_dim(d): return vpos_slot(vslot_dim(d))

PROF = False
OPT = {}
WS_PROF = WS_END
def stamp(a, i, cyc=False):
    if not PROF: return
    if OPT.get("g1prof") and 5 <= i <= 12 and getattr(a, "late", False): return
    a(f"{'s_memtime' if cyc else 's_memrealtime'} s[70:71]\ns_waitcnt lgkmcnt(0)\ns_mov_b32 s{72+i}, s70")
def stamp_out(a, n=24):
    if not PROF: return
    a(f"s_getreg_b32 s94, hwreg(HW_REG_HW_ID)\ns_getreg_b32 s95, hwreg(HW_REG_XCC_ID)")
    a(f"s_lshl_b32 s70, s2, 4\ns_add_u32 s70, s70, s{S_W}\ns_lshl_b32 s70, s70, 7\ns_add_u32 s70, s70, {WS_PROF}")
    a("s_mov_b64 exec, 1\ns_mov_b32 s14, 0x10000000\nv_mov_b32 v3, 0")
    for i in range(n):
        a(f"v_mov_b32 v2, s{72+i}\nbuffer_store_dword v2, v3, s[12:15], s70 offen offset:{4*i}")

SRD_X, SRD_W, SRD_WS, SRD_G, SRD_O = 4, 8, 12, 16, 20
S_W, S_TB, S_GRP, S_B, S_P = 24, 25, 26, 27, 28
S_T0, S_T1, S_T2, S_T3 = 29, 30, 31, 32
S_X0, S_X1, S_WOFF, S_QS = 33, 34, 35, 36
S_CH, S_M0, S_KVB, S_SOFF, S_CNT = 37, 38, 39, 40, 41
S_EX = 42
S_PTR = 44
S_DBG = 60
S_MSTEP, S_SSTEP, S_NSL, S_C0 = 64, 65, 66, 67
S_OK = 68

def srd(a, d, ptr, size):
    a(f"s_mov_b32 s{d}, s{ptr}\ns_and_b32 s{d+1}, s{ptr+1}, 0xffff\ns_mov_b32 s{d+2}, {size}\ns_mov_b32 s{d+3}, 0x00020000")

def spin(a, tag, load, reg):
    a(f"s_mov_b32 s{S_CNT}, {SPIN_MAX}")
    a.label(f"L_spin_{tag}")
    a(f"""
    s_waitcnt vmcnt(0)
    v_cmp_eq_u32 vcc, 0, v{reg}
    s_cbranch_vccz L_got_{tag}
    s_sleep 2
    {load}
    s_sub_u32 s{S_CNT}, s{S_CNT}, 1
    s_cmp_lg_u32 s{S_CNT}, 0
    s_cbranch_scc1 L_spin_{tag}
    s_waitcnt vmcnt(0)
    """)
    a.label(f"L_got_{tag}")

ACC = 8
WF = ACC + 56
XF = WF + 56
AW = XF + 16
AG, AXR = AW + 7, AW + 8
EKM, EVA, EVB, EMID, EONE, EKC, ESC = range(AW + 12, AW + 19)
PF = ESC + 1
P1_END = PF + 3
T_QA, T_QB, T_KA, T_KB, T_VA, T_VB, T_MID = range(7)
acc = lambda n, tt: ACC + (2 * n + tt) * 4

def p1_reads(ks):
    wf = WF + 28 * (ks % 2); xf = XF + 8 * (ks % 2)
    st = (ks // 2) % 3
    off = WST[st] - WST[0] + (ks % 2) * 8192
    xa, xo = (AXR + 2, 0) if st == 1 else (AXR, XST[st] - XST[2])
    L = [[f"ds_read_b128 {vr(xf+4*tt,4)}, v{xa+ks%2} offset:{xo + tt*2048}" for tt in range(2)]]
    for n in (T_QA, T_QB, T_KA, T_KB, T_VA, T_VB, T_MID):
        g = [f"ds_read_b64_tr_b16 {vr(wf+4*n,2)}, v{AW+n} offset:{off}",
             f"ds_read_b64_tr_b16 {vr(wf+4*n+2,2)}, v{AW+n} offset:{off+1024}"]
        if n == T_MID:
            g += [f"s_mov_b64 exec, {sr(S_EX,2)}",
                  f"ds_read_b128 {vr(wf+4*n,4)}, v{AG} offset:{64*ks}",
                  "s_mov_b64 exec, -1"]
        L.append(g)
    return L

def byte_table(a, dst, idx, table):
    w = [sum(table[4*i+k] << (8*k) for k in range(4)) for i in range(len(table) // 4)]
    a(f"v_and_b32 v{dst}, 7, v{idx}\nv_or_b32 v{dst}, 0x0c0c0c00, v{dst}")
    a(f"s_mov_b32 s{S_CNT}, {hex(w[1])}\nv_mov_b32 v{ACC+4}, {hex(w[0])}")
    if len(w) == 2:
        a(f"v_perm_b32 v{dst}, s{S_CNT}, v{ACC+4}, v{dst}"); return
    a(f"v_perm_b32 v{ACC+5}, s{S_CNT}, v{ACC+4}, v{dst}")
    a(f"s_mov_b32 s{S_CNT}, {hex(w[3])}\nv_mov_b32 v{ACC+4}, {hex(w[2])}\nv_cmp_gt_u32 vcc, 8, v{idx}")
    a(f"v_perm_b32 v{dst}, s{S_CNT}, v{ACC+4}, v{dst}\ns_nop 0\nv_cndmask_b32 v{dst}, v{dst}, v{ACC+5}, vcc")

MAP = {
 "4": f"""s_and_b32 s{S_T0}, s2, 7
    s_lshl_b32 s{S_T0}, s{S_T0}, 2
    s_bfe_u32 s{S_T1}, s2, 0x20003
    s_or_b32 s{S_GRP}, s{S_T0}, s{S_T1}
    s_lshr_b32 s{S_TB}, s2, 5""",
 "8": f"""s_bfe_u32 s{S_T0}, s2, 0x20001
    s_lshl_b32 s{S_T0}, s{S_T0}, 3
    s_bfe_u32 s{S_T1}, s2, 0x30003
    s_or_b32 s{S_GRP}, s{S_T0}, s{S_T1}
    s_and_b32 s{S_T0}, s2, 1
    s_lshl_b32 s{S_T0}, s{S_T0}, 2
    s_lshr_b32 s{S_TB}, s2, 6
    s_or_b32 s{S_TB}, s{S_TB}, s{S_T0}""",
}
def entry(a):
    a(f"""
    s_load_dwordx16 {sr(S_PTR,16)}, s[0:1], 0
    s_load_dwordx4 {sr(S_DBG,4)}, s[0:1], 64
    v_readfirstlane_b32 s{S_W}, v0
    v_and_b32 v1, 63, v0
    {MAP[OPT.get("map", "4")]}
    s_lshr_b32 s{S_B}, s{S_GRP}, 4
    s_and_b32 s{S_P}, s{S_GRP}, 15
    s_lshr_b32 s{S_W}, s{S_W}, 6
    v_lshrrev_b32 v2, 4, v1
    v_and_b32 v3, 15, v1
    s_cmp_lt_u32 s{S_W}, 8
    s_cbranch_scc1 L_compute
    """)

def prefetch(a):
    nx, nw = 2048 * 9, 576 * 27
    a(f"""
    s_lshl_b32 s{S_T0}, s2, 3
    s_add_u32 s{S_T0}, s{S_T0}, s{S_W}
    s_mul_i32 s{S_T0}, s{S_T0}, 25
    v_add_u32 v4, s{S_T0}, v1
    v_lshlrev_b32 v4, 7, v4
    v_subrev_u32 v5, {nx*128}, v4
    v_subrev_u32 v6, {(nx+nw)*128}, v4
    s_waitcnt lgkmcnt(0)
    """)
    srd(a, SRD_X, S_PTR, 2048 * 1152)
    srd(a, SRD_W, S_PTR + 2, 576 * 3456)
    srd(a, SRD_G, S_PTR + 8, 576 * 3456)
    a(f"""
    s_mov_b64 exec, 0x1ffffff
    buffer_load_dword v{PF}, v4, {sr(SRD_X,4)}, 0 offen
    buffer_load_dword v{PF+1}, v5, {sr(SRD_W,4)}, 0 offen
    buffer_load_dword v{PF+2}, v6, {sr(SRD_G,4)}, 0 offen
    s_mov_b64 exec, -1
    """)

def phase1(a):
    if not OPT.get("nopf"): prefetch(a)
    a(f"""
    s_lshl_b32 s{S_T3}, s{S_W}, 12
    s_add_u32 s{S_T3}, s{S_T3}, {XST[2]}
    v_lshrrev_b32 v4, 1, v3
    v_xor_b32 v4, v4, v2
    v_lshlrev_b32 v5, 7, v3
    v_add_u32 v5, s{S_T3}, v5
    v_lshl_add_u32 v{AXR}, v4, 4, v5
    v_xor_b32 v4, 4, v4
    v_lshl_add_u32 v{AXR+1}, v4, 4, v5
    v_add_u32 v{AXR+2}, {XST[1]-XST[2]}, v{AXR}
    v_add_u32 v{AXR+3}, {XST[1]-XST[2]}, v{AXR+1}
    v_bfe_u32 v4, v1, 2, 2
    v_and_b32 v5, 3, v1
    v_and_b32 v6, 1, v2
    v_lshlrev_b32 v6, 2, v6
    v_or_b32 v6, v6, v4
    v_lshlrev_b32 v6, 1, v6
    v_lshl_add_u32 v7, v2, 3, v4
    v_lshlrev_b32 v7, 8, v7
    v_add_u32 v7, {WST[0]}, v7
    """)
    u, t = ACC, ACC + 1
    def addr(n):
        a(f"""
        v_lshrrev_b32 v{t}, 1, v{u}
        v_xor_b32 v{t}, v{t}, v6
        v_lshl_add_u32 v{t}, v{t}, 4, v7
        v_and_b32 v{u+2}, 1, v{u}
        v_lshl_add_u32 v{AW+n}, v{u+2}, 3, v{t}
        """)
    a(f"v_lshrrev_b32 v{u}, 1, v5\nv_lshl_add_u32 v{u}, v5, 1, v{u}"); addr(T_QA)
    a(f"v_add_u32 v{u}, 1, v{u}"); addr(T_QB)
    a(f"v_add_u32 v{u}, 9, v{u}"); addr(T_KA)
    a(f"v_add_u32 v{u}, 1, v{u}"); addr(T_KB)
    a(f"v_add_u32 v{u}, 21, v5"); addr(T_VA)
    a(f"v_add_u32 v{u}, 25, v5"); addr(T_VB)
    a(f"v_lshlrev_b32 v{u}, 3, v5\ns_mov_b32 s{S_T0}, 0x1b1d0e04\nv_lshrrev_b32 v{u}, v{u}, s{S_T0}\nv_and_b32 v{u}, 0xff, v{u}"); addr(T_MID)
    a(f"v_lshlrev_b32 v{AG}, 4, v2\nv_add_u32 v{AG}, {GATE_LDS}, v{AG}")
    a(f"s_mov_b32 s{S_EX}, 0xf000f000\ns_mov_b32 s{S_EX+1}, 0xf000f000")
    byte_table(a, EVA, 3, [vpos_dim(d) for d in range(16)])
    byte_table(a, EVB, 3, [vpos_dim(16), vpos_dim(17)] + [vpos_dim(d) for d in range(14)])
    a(f"""
    s_lshr_b32 s{S_T0}, s{S_W}, 1
    s_mul_i32 s{S_T0}, s{S_T0}, {PB}
    s_and_b32 s{S_T1}, s{S_W}, 1
    v_lshrrev_b32 v4, 1, v2
    v_and_b32 v5, 1, v2
    v_mul_u32_u24 v6, {HS}, v4
    v_lshl_add_u32 v7, v5, 5, v3
    v_lshl_add_u32 v6, v7, 4, v6
    s_lshl_b32 s{S_QS}, s{S_T1}, 10
    s_add_u32 s{S_QS}, s{S_QS}, s{S_T0}
    v_add_u32 v{EKM}, s{S_QS}, v6
    s_mul_i32 s{S_QS}, s{S_T1}, {2*VSUB}
    s_add_u32 s{S_QS}, s{S_QS}, s{S_T0}
    s_add_u32 s{S_QS}, s{S_QS}, {VOFF}
    v_mul_u32_u24 v6, 320, v4
    v_lshl_add_u32 v6, v5, 3, v6
    v_add_u32 v6, s{S_QS}, v6
    v_lshl_add_u32 v{EVA}, v{EVA}, 4, v6
    v_lshl_add_u32 v{EVB}, v{EVB}, 4, v6
    v_mov_b32 v6, {HS}
    v_cmp_gt_u32 vcc, 2, v3
    v_lshrrev_b32 v4, 3, v3
    v_mul_u32_u24 v4, 320, v4
    v_cndmask_b32 v6, v6, 0, vcc
    v_add_u32 v{EVB}, v{EVB}, v6
    v_and_b32 v5, 7, v3
    v_lshl_add_u32 v4, v5, 1, v4
    s_add_u32 s{S_CNT}, s{S_QS}, {HS}
    v_add_u32 v4, s{S_CNT}, v4
    s_lshl_b32 s{S_T1}, s{S_T1}, 3
    s_add_u32 s{S_T1}, s{S_T1}, s{S_T0}
    s_add_u32 s{S_T1}, s{S_T1}, {KROFF}
    v_lshlrev_b32 v5, 4, v3
    v_add_u32 v5, s{S_T1}, v5
    v_add_u32 v6, {QIMG}, v5
    v_cmp_eq_u32 vcc, 1, v2
    v_add_u32 v7, 4, v6
    s_nop 0
    v_cndmask_b32 v6, v6, v5, vcc
    v_cmp_eq_u32 vcc, 2, v2
    v_mov_b32 v{ESC}, 1.0
    s_nop 0
    v_cndmask_b32 v6, v6, v4, vcc
    v_cmp_eq_u32 vcc, 3, v2
    v_mov_b32 v5, {hex(f32(QSCALE))}
    s_nop 0
    v_cndmask_b32 v{EMID}, v6, v7, vcc
    v_cmp_eq_u32 vcc, 0, v2
    v_bfe_u32 v4, v1, 2, 1
    v_mul_u32_u24 v4, {HS}, v4
    v_cndmask_b32 v{ESC}, v{ESC}, v5, vcc
    v_and_b32 v5, 3, v1
    v_mul_u32_u24 v5, 320, v5
    v_bfe_u32 v6, v1, 3, 1
    v_mul_u32_u24 v6, {16*(vpos_slot(18)-vpos_slot(19))}, v6
    v_add3_u32 v4, v4, v5, v6
    s_add_u32 s{S_QS}, s{S_QS}, {16*vpos_slot(19)}
    v_add_u32 v{EONE}, s{S_QS}, v4
    v_lshrrev_b32 v4, 5, v1
    v_mul_u32_u24 v4, {HS}, v4
    v_and_b32 v5, 31, v1
    v_lshl_add_u32 v4, v5, 4, v4
    s_add_u32 s{S_T1}, s{S_T1}, 4
    v_add_u32 v{EKC}, s{S_T1}, v4
    s_mov_b32 s{S_QS}, {hex(f32(QSCALE))}
    s_waitcnt lgkmcnt(0)
    """)
    srd(a, SRD_WS, S_DBG + 2, WS_END)
    srd(a, SRD_O, S_PTR + 14, 2048 * 1152)
    stamp(a, 1)
    a("s_barrier")
    stamp(a, 2)
    for g in p1_reads(0):
        for x in g: a(x)
    for ks in range(18):
        n = ks // 2
        a("s_waitcnt lgkmcnt(0)")
        if ks % 2 == 1 and n + 1 < 9:
            a("s_barrier")
            if OPT.get("g1prof"): stamp(a, 5 + n)
        groups = p1_reads(ks + 1) if ks + 1 < 18 else []
        if OPT.get("noreads"): groups = []
        if OPT.get("noxreads"): groups = groups[1:]
        wf = WF + 28 * (ks % 2); x = XF + 8 * (ks % 2)
        i = 0
        for nn in (T_QA, T_QB, T_KA, T_KB, T_VA, T_VB, T_MID):
            for tt in range(2):
                c = vr(acc(nn, tt), 4)
                cin = "0" if ks == 0 else c
                if OPT.get("nomfma") and 0 < ks < 17: pass
                elif nn in (T_VA, T_VB):
                    a(f"v_mfma_f32_16x16x32_bf16 {c}, {vr(x+4*tt,4)}, {vr(wf+4*nn,4)}, {cin}")
                else:
                    a(f"v_mfma_f32_16x16x32_bf16 {c}, {vr(wf+4*nn,4)}, {vr(x+4*tt,4)}, {cin}")
                if i < len(groups):
                    for y in groups[i]: a(y)
                i += 1
    stamp(a, 3)
    a("s_waitcnt vmcnt(0)")
    T = WF
    a(f"v_bfe_u32 v{T+16}, v1, 3, 1\ns_mov_b32 s{S_T0}, 0x3f803f80\nv_mul_lo_u32 v{T+16}, v{T+16}, s{S_T0}\nv_mov_b32 v{T+20}, 0x3f80")
    a(f"v_mov_b32 v{T+17}, v{T+16}\nv_mov_b32 v{T+18}, v{T+16}\nv_mov_b32 v{T+19}, v{T+16}")
    a(f"ds_write_b32 v{EKC}, v{T+20}")
    a(f"s_mov_b64 exec, 0xffff\nds_write_b128 v{EONE}, {vr(T+16,4)}\ns_mov_b64 exec, -1")
    a(f"v_add_u32 v{T+21}, {QIMG}, v{EKM}")
    for tt in range(2):
        t = T + 24 + 16 * tt
        for k, n in enumerate((T_KA, T_KB)):
            c = acc(n, tt)
            a(f"v_cvt_pk_bf16_f32 v{t+2*k}, v{c}, v{c+1}\nv_cvt_pk_bf16_f32 v{t+2*k+1}, v{c+2}, v{c+3}")
        a(f"ds_write_b128 v{EKM}, {vr(t,4)} offset:{256*tt}")
        for k, (n, ad) in enumerate(((T_VA, EVA), (T_VB, EVB))):
            c = acc(n, tt)
            a(f"v_cvt_pk_bf16_f32 v{t+4+2*k}, v{c}, v{c+1}\nv_cvt_pk_bf16_f32 v{t+5+2*k}, v{c+2}, v{c+3}")
            a(f"ds_write_b64 v{ad}, {vr(t+4+2*k,2)} offset:{VSUB*tt}")
        c = acc(T_MID, tt)
        for e in range(4): a(f"v_mul_f32 v{c+e}, v{ESC}, v{c+e}")
        a(f"v_cvt_pk_bf16_f32 v{t+12}, v{c}, v{c+1}\nv_cvt_pk_bf16_f32 v{t+13}, v{c+2}, v{c+3}")
        vo = [VSUB * tt + 16 * vpos_dim(14 + e) for e in range(4)]
        a(f"""
        s_mov_b32 exec_lo, 0
        s_mov_b32 exec_hi, 0xffff
        ds_write_b16 v{EMID}, v{t+12} offset:{vo[0]}
        ds_write_b16_d16_hi v{EMID}, v{t+12} offset:{vo[1]}
        ds_write_b16 v{EMID}, v{t+13} offset:{vo[2]}
        ds_write_b16_d16_hi v{EMID}, v{t+13} offset:{vo[3]}
        s_mov_b32 exec_hi, 0xffff0000
        v_mov_b32 v{t+12}, v{c}
        v_mov_b32 v{t+13}, v{c}
        s_mov_b32 exec_lo, -1
        ds_write_b32 v{EMID}, v{t+12} offset:{256*tt}
        ds_write_b32 v{EMID}, v{t+13} offset:{256*tt+HS}
        s_mov_b64 exec, -1
        """)
        for k, n in enumerate((T_QA, T_QB)):
            c = acc(n, tt)
            for e in range(4): a(f"v_mul_f32 v{c+e}, s{S_QS}, v{c+e}")
            a(f"v_cvt_pk_bf16_f32 v{t+8+2*k}, v{c}, v{c+1}\nv_cvt_pk_bf16_f32 v{t+9+2*k}, v{c+2}, v{c+3}")
        a(f"ds_write_b128 v{T+21}, {vr(t+8,4)} offset:{256*tt}")
    a("s_waitcnt lgkmcnt(0)\ns_barrier")

SB = (8, 40); OA = 72; QM = 104; QR = 112; KM = 116; KR = 120; VF = 124
IDX, BKM, BKR, BV, AKM, AKR, AV, VG = range(132, 140)
TMP = 140
P2_END = TMP + 20
ORDER = "E3 s3p lv1 E3 2b lkr E8 w0 s0 E4 s1 E4 m0 E4 s2 lv0 E3 m1 lkm E3"

def att_ops(t):
    par = t % 2
    cur, nxt = SB[par], SB[1 - par]
    pb = lambda x: ((x % 8) // 2) * PB
    return cur, {
     "2b": f"v_mfma_f32_32x32x4_2b_bf16 {vr(nxt,32)}, {vr(KR+2*(1-par),2)}, {vr(QR,2)}, 0",
     "m0": f"v_mfma_f32_32x32x16_bf16 {vr(nxt,16)}, {vr(KM,4)}, {vr(QM,4)}, {vr(nxt,16)}",
     "m1": f"v_mfma_f32_32x32x16_bf16 {vr(nxt+16,16)}, {vr(KM,4)}, {vr(QM+4,4)}, {vr(nxt+16,16)}",
     "s0": f"v_smfmac_f32_32x32x32_bf16 {vr(OA,16)}, {vr(VF,4)}, {vr(cur,8)}, v{IDX}",
     "s1": f"v_smfmac_f32_32x32x32_bf16 {vr(OA,16)}, {vr(VF+4,4)}, {vr(cur+8,8)}, v{IDX}",
     "s2": f"v_smfmac_f32_32x32x32_bf16 {vr(OA+16,16)}, {vr(VF,4)}, {vr(cur+16,8)}, v{IDX}",
     "s3": f"v_smfmac_f32_32x32x32_bf16 {vr(OA+16,16)}, {vr(VF+4,4)}, {vr(cur+24,8)}, v{IDX}",
     "s3p": f"v_smfmac_f32_32x32x32_bf16 {vr(OA+16,16)}, {vr(VF+4,4)}, {vr(nxt+24,8)}, v{IDX}",
     "lkr": f"ds_read_b128 {vr(KR,4)}, v{AKR} offset:{pb(t+2)}" if par == 0 else None,
     "lkm": f"ds_read_b128 {vr(KM,4)}, v{AKM} offset:{pb(t+2)+1024*par}",
     "lv0": f"ds_read_b128 {vr(VF,4)}, v{AV} offset:{pb(t+1)+2*VSUB*(1-par)}",
     "lv1": f"ds_read_b128 {vr(VF+4,4)}, v{AV} offset:{pb(t)+2*VSUB*par+VSUB}",
    }

def att_tile(a, t, hooks=None):
    cur, ops = att_ops(t)
    e = 0
    for tok in ORDER.split():
        if hooks and tok in hooks: hooks[tok]()
        if tok[0] == "E":
            for _ in range(int(tok[1:])):
                a(f"v_exp_f32 v{cur+e}, v{cur+e}"); e += 1
        elif tok[0] == "w": a(f"s_waitcnt lgkmcnt({tok[1:]})")
        elif ops[tok]: a(ops[tok])

def att_setup(a):
    a(f"""
    s_lshr_b32 s{S_T0}, s{S_W}, 2
    s_mul_i32 s{S_T0}, s{S_T0}, {HS}
    v_lshlrev_b32 v2, 4, v1
    v_add_u32 v{BKM}, s{S_T0}, v2
    v_and_b32 v3, 31, v1
    v_lshlrev_b32 v4, 4, v3
    s_add_u32 s{S_T1}, s{S_T0}, {KROFF}
    v_add_u32 v{BKR}, s{S_T1}, v4
    v_lshrrev_b32 v5, 5, v1
    s_and_b32 s{S_T2}, s{S_W}, 3
    s_mul_i32 s{S_T2}, s{S_T2}, {PB}
    s_add_u32 s{S_T2}, s{S_T2}, {QIMG}
    v_add_u32 v6, s{S_T2}, v{BKM}
    v_lshl_add_u32 v7, v5, 3, v{BKR}
    v_add_u32 v7, s{S_T2}, v7
    ds_read_b128 {vr(QM,4)}, v6
    ds_read_b128 {vr(QM+4,4)}, v6 offset:1024
    ds_read_b64 {vr(QR,2)}, v7
    ds_read_b128 {vr(KR,4)}, v{BKR}
    ds_read_b128 {vr(KM,4)}, v{BKM}
    v_min_u32 v3, 19, v3
    v_lshrrev_b32 v4, 2, v3
    v_lshlrev_b32 v4, 3, v4
    s_mov_b32 s{S_T2}, 0x1004000c
    v_lshrrev_b32 v6, v4, s{S_T2}
    v_and_b32 v6, 0xff, v6
    v_and_b32 v7, 3, v3
    v_add_u32 v6, v6, v7
    v_add_u32 v7, 1, v7
    v_and_b32 v7, 3, v7
    v_or_b32 v7, 8, v7
    v_cmp_gt_u32 vcc, 16, v3
    v_mul_u32_u24 v5, 20, v5
    s_add_u32 s{S_T1}, s{S_T0}, {VOFF}
    v_cndmask_b32 v3, v7, v6, vcc
    v_add_u32 v3, v3, v5
    v_lshlrev_b32 v3, 4, v3
    v_add_u32 v{BV}, s{S_T1}, v3
    v_mov_b32 v{IDX}, 0xdddddddd
    v_mov_b32 v{AKM}, v{BKM}
    v_mov_b32 v{AKR}, v{BKR}
    v_mov_b32 v{AV}, v{BV}
    """)
    s0, s1 = SB
    a(f"s_waitcnt lgkmcnt(2)\nv_mov_b32 v{VG}, v{QR+1}\nv_mov_b32 v{QR+1}, 0")
    a(f"ds_read_b128 {vr(VF,4)}, v{AV}\ns_waitcnt lgkmcnt(1)")
    qk = lambda: (a(f"v_mfma_f32_32x32x4_2b_bf16 {vr(s0,32)}, {vr(KR,2)}, {vr(QR,2)}, 0"))
    def mains():
        a(f"v_mfma_f32_32x32x16_bf16 {vr(s0,16)}, {vr(KM,4)}, {vr(QM,4)}, {vr(s0,16)}")
        a(f"v_mfma_f32_32x32x16_bf16 {vr(s0+16,16)}, {vr(KM,4)}, {vr(QM+4,4)}, {vr(s0+16,16)}")
    qk()
    for i in range(20): a(f"v_mov_b32 v{OA+i}, 0")
    mains()
    for i in range(20, 32): a(f"v_mov_b32 v{OA+i}, 0")
    T = TMP
    for blk in range(2):
        b = s0 + 16 * blk; m = T + blk
        a(f"v_max3_f32 v{m}, v{b}, v{b+1}, v{b+2}")
        for i in range(3, 15, 2): a(f"v_max3_f32 v{m}, v{m}, v{b+i}, v{b+i+1}")
        a(f"v_max_f32 v{m}, v{m}, v{b+15}")
    a(f"""
    s_nop 1
    v_permlane32_swap_b32 v{T}, v{T+1}
    v_max_f32 v{T}, v{T}, v{T+1}
    v_cvt_pk_bf16_f32 v{QR+1}, -v{T}, 0
    s_nop 1
    """)
    qk()
    for i in range(8): a(f"v_mov_b32 v{s1+24+i}, 0")
    for i in range(4): a(f"v_mov_b32 v{VF+4+i}, 0")
    a(f"""
    s_lshl_b32 s{S_KVB}, s{S_GRP}, 3
    s_mul_i32 s{S_KVB}, s{S_KVB}, {SLOT}
    s_mov_b64 {sr(S_OK,2)}, -1
    s_mov_b32 s{S_CH}, 0
    s_mov_b32 s{S_NSL}, 0
    s_lshr_b32 s{S_C0}, s2, 5
    s_mul_i32 s{S_C0}, s{S_C0}, 144
    """)
    mains()
    a(f"ds_read_b128 {vr(KM,4)}, v{AKM} offset:1024")
    a.nop(10)

def att_chunk(a):
    def sync():
        a(f"""
        s_add_u32 s{S_NSL}, s{S_NSL}, {SLOT}
        s_cmp_eq_u32 s{S_NSL}, {4*SLOT}
        s_cselect_b32 s{S_NSL}, 0, s{S_NSL}
        s_barrier
        v_add_u32 v{AKR}, s{S_NSL}, v{BKR}
        v_add_u32 v{AKM}, s{S_NSL}, v{BKM}
        """)
    for t in range(8):
        hooks = {}
        if t == 6: hooks["lkr"] = sync
        if t == 7: hooks["lv0"] = lambda: a(f"v_add_u32 v{AV}, s{S_NSL}, v{BV}")
        att_tile(a, t, hooks)

def att_finish(a):
    _, ops = att_ops(7)
    a(f"s_nop 1\n{ops['s3']}")
    T = TMP
    a(f"""
    s_lshl_b32 s{S_T0}, s{S_B}, 31
    s_xor_b32 s{S_T0}, s{S_T0}, {hex(f32(-math.log2(math.e)))}
    v_mul_f32 v{VG}, s{S_T0}, v{VG}
    v_exp_f32 v{VG}, v{VG}
    s_and_b32 s{S_T0}, s{S_W}, 3
    v_add_f32 v{VG}, 1.0, v{VG}
    v_rcp_f32 v{VG}, v{VG}
    s_lshl_b32 s{S_T1}, s{S_TB}, 2
    s_add_u32 s{S_T0}, s{S_T0}, s{S_T1}
    s_lshl_b32 s{S_T1}, s{S_T0}, 17
    s_lshl_b32 s{S_T2}, s{S_GRP}, 10
    s_add_u32 s{S_T1}, s{S_T1}, s{S_T2}
    s_lshr_b32 s{S_T3}, s{S_W}, 2
    s_lshl_b32 s{S_T2}, s{S_T3}, 9
    s_add_u32 s{S_T1}, s{S_T1}, s{S_T2}
    s_add_u32 s{S_X0}, s{S_T1}, {WS_OM}
    s_add_u32 s{S_X1}, s{S_X0}, 0x10000
    v_bfe_u32 v2, v1, 4, 1
    v_lshlrev_b32 v2, 15, v2
    v_lshrrev_b32 v3, 5, v1
    v_lshl_add_u32 v2, v3, 8, v2
    v_and_b32 v3, 15, v1
    v_lshl_add_u32 v2, v3, 4, v2
    s_lshl_b32 s{S_T0}, s{S_T0}, 9
    s_lshl_b32 s{S_T2}, s{S_GRP}, 14
    s_add_u32 s{S_T0}, s{S_T0}, s{S_T2}
    s_lshl_b32 s{S_T3}, s{S_T3}, 2
    s_add_u32 s{S_T0}, s{S_T0}, s{S_T3}
    s_add_u32 s{S_WOFF}, s{S_T0}, {WS_OR}
    v_lshlrev_b32 v3, 3, v1
    """)
    a.label("L_att_norm")
    m = T + 2
    a(f"""
    v_mov_b32 v{T}, v{OA+10}
    v_mov_b32 v{T+1}, v{OA+26}
    s_mov_b32 s{S_T0}, {hex(f32(2.0**-60))}
    s_mov_b32 s{S_T1}, {hex(f32(2.0**60))}
    v_permlane32_swap_b32 v{T}, v{T+1}
    v_add_f32 v{m}, |v{OA}|, |v{OA+16}|
    v_cmp_nle_f32 s[4:5], s{S_T0}, v{T}
    v_cmp_nge_f32 s[6:7], s{S_T1}, v{T}
    v_rcp_f32 v{T}, v{T}
    """)
    for i in range(1, 10): a(f"v_add_f32 v{m}, v{m}, |v{OA+i}|\nv_add_f32 v{m}, v{m}, |v{OA+16+i}|")
    a(f"""
    s_mov_b32 s{S_T0}, 0x7f000000
    v_mul_f32 v{T}, v{T}, v{VG}
    v_cmp_nge_f32 vcc, s{S_T0}, v{m}
    v_mov_b32 v{T+1}, v{T}
    s_or_b64 s[4:5], s[4:5], s[6:7]
    s_or_b64 vcc, vcc, s[4:5]
    s_and_b64 vcc, vcc, {sr(S_OK,2)}
    s_cbranch_vccnz L_att_slow
    v_permlane32_swap_b32 v{T}, v{T+1}
    """)
    for blk in range(2):
        o = OA + 16 * blk; f = T + blk; d = T + 4 + 4 * blk
        for i in range(10): a(f"v_mul_f32 v{o+i}, v{f}, v{o+i}")
        for i in range(4): a(f"v_cvt_pk_bf16_f32 v{d+i}, v{o+2*i}, v{o+2*i+1}")
        a(f"buffer_store_dwordx4 {vr(d,4)}, v2, {sr(SRD_WS,4)}, s{S_X0+blk} offen sc1")
        a(f"v_cvt_pk_bf16_f32 v{T+12+blk}, v{o+8}, v{o+9}")
    a(f"s_nop 1\nv_permlane32_swap_b32 v{T+12}, v{T+13}")
    a(f"buffer_store_dword v{T+12}, v3, {sr(SRD_WS,4)}, s{S_WOFF} offen sc1")

def att_slow(a):
    s0 = SB[0]; T = TMP
    M0, M1, GK = T + 16, T + 17, T + 18
    a.label("L_att_slow")
    a(f"""
    s_mov_b64 {sr(S_OK,2)}, 0
    v_mov_b32 v{QR+1}, 0
    v_mov_b32 v{M0}, 0xff800000
    v_mov_b32 v{M1}, 0xff800000
    s_waitcnt vmcnt(0) lgkmcnt(0)
    """)
    for i in range(32): a(f"v_mov_b32 v{OA+i}, 0")
    for ps in range(2):
        a(f"s_mov_b32 s{S_CNT}, 0")
        a.label(f"L_slow_{ps}")
        a(f"""
        s_lshr_b32 s{S_T0}, s{S_CNT}, 1
        s_bfe_u32 s{S_T1}, s{S_CNT}, 0x30003
        s_lshl_b32 s{S_T1}, s{S_T1}, 2
        s_add_u32 s{S_T0}, s{S_T0}, s{S_T1}
        s_mul_i32 s{S_T0}, s{S_T0}, {PB}
        s_add_u32 s{S_T0}, s{S_T0}, s{S_KVB}
        s_and_b32 s{S_T1}, s{S_CNT}, 1
        s_lshl_b32 s{S_T2}, s{S_T1}, 10
        s_add_u32 s{S_T2}, s{S_T2}, s{S_T0}
        buffer_load_dwordx4 {vr(KM,4)}, v{BKM}, {sr(SRD_WS,4)}, s{S_T2} offen sc1
        s_lshl_b32 s{S_T2}, s{S_T1}, 3
        s_add_u32 s{S_T2}, s{S_T2}, s{S_T0}
        buffer_load_dwordx2 {vr(KR,2)}, v{BKR}, {sr(SRD_WS,4)}, s{S_T2} offen sc1
        s_mul_i32 s{S_T2}, s{S_T1}, {2*VSUB}
        s_add_u32 s{S_T2}, s{S_T2}, s{S_T0}
        buffer_load_dwordx4 {vr(VF,4)}, v{BV}, {sr(SRD_WS,4)}, s{S_T2} offen sc1
        buffer_load_dwordx4 {vr(VF+4,4)}, v{BV}, {sr(SRD_WS,4)}, s{S_T2} offen offset:{VSUB} sc1
        s_waitcnt vmcnt(0)
        v_mfma_f32_32x32x4_2b_bf16 {vr(s0,32)}, {vr(KR,2)}, {vr(QR,2)}, 0
        """)
        a.nop(20)
        a(f"v_mfma_f32_32x32x16_bf16 {vr(s0,16)}, {vr(KM,4)}, {vr(QM,4)}, {vr(s0,16)}")
        a(f"v_mfma_f32_32x32x16_bf16 {vr(s0+16,16)}, {vr(KM,4)}, {vr(QM+4,4)}, {vr(s0+16,16)}")
        a.nop(14)
        if ps == 0:
            for blk, m in enumerate((M0, M1)):
                for i in range(0, 16, 2): a(f"v_max3_f32 v{m}, v{m}, v{s0+16*blk+i}, v{s0+16*blk+i+1}")
        else:
            for i in range(32): a(f"v_sub_f32 v{s0+i}, v{s0+i}, v{M0 if i < 16 else M1}")
            for i in range(32): a(f"v_exp_f32 v{s0+i}, v{s0+i}")
            a.nop(2)
            for i in range(4):
                a(f"v_smfmac_f32_32x32x32_bf16 {vr(OA+16*(i//2),16)}, {vr(VF+4*(i%2),4)}, {vr(s0+8*i,8)}, v{IDX}")
            a.nop(14)
        a(f"s_add_u32 s{S_CNT}, s{S_CNT}, 1\ns_cmp_lt_u32 s{S_CNT}, 64\ns_cbranch_scc1 L_slow_{ps}")
        if ps == 0:
            for m in (M0, M1):
                a(f"v_mov_b32 v{GK}, v{m}\ns_nop 1\nv_permlane32_swap_b32 v{GK}, v{m}\nv_max_f32 v{m}, v{m}, v{GK}")
    a("s_branch L_att_norm")

OACC = 8
OF = OACC + 20
WB = OF + 72
WBUF = (WB, WB + 20, WB + 40)
AM, AM8, AM15, AR, AR3 = range(WB + 60, WB + 65)
P3_END = AR3 + 1
S_TT, S_TOK = S_GRP, S_TB

def phase3(a):
    a(f"""
    s_and_b32 s{S_TT}, s{S_W}, 3
    s_lshr_b32 s{S_B}, s{S_W}, 2
    s_and_b32 s{S_T0}, s2, 7
    s_lshl_b32 s{S_T0}, s{S_T0}, 2
    s_bfe_u32 s{S_T1}, s2, 0x20003
    s_add_u32 s{S_T0}, s{S_T0}, s{S_T1}
    s_lshl_b32 s{S_T0}, s{S_T0}, 2
    s_add_u32 s{S_TOK}, s{S_T0}, s{S_TT}
    v_lshrrev_b32 v2, 4, v1
    v_bfe_u32 v3, v1, 2, 2
    v_and_b32 v4, 3, v1
    v_lshlrev_b32 v4, 3, v4
    s_mul_i32 s{S_T0}, s{S_B}, {576*144}
    v_and_b32 v5, 1, v2
    v_lshl_add_u32 v5, v5, 2, v3
    v_mul_u32_u24 v5, 288, v5
    v_add_u32 v5, v5, v4
    v_lshrrev_b32 v6, 1, v2
    v_mul_u32_u24 v7, 2592, v6
    v_add3_u32 v{AM}, v5, v7, s{S_T0}
    v_add_u32 v{AM8}, {8*5184}, v{AM}
    v_add_u32 v{AM15}, {15*5184}, v{AM}
    v_and_b32 v6, s{S_B}, v6
    v_cmp_eq_u32 vcc, 1, v6
    v_mul_u32_u24 v7, 5184, v2
    v_lshrrev_b32 v6, 1, v3
    v_cndmask_b32 v{AM15}, v{AM15}, v5, vcc
    v_and_b32 v5, 1, v3
    v_add_u32 v5, 16, v5
    v_mul_u32_u24 v5, 144, v5
    v_add_u32 v5, v5, v4
    v_mul_u32_u24 v4, 2592, v6
    v_add3_u32 v7, v7, v4, v5
    v_add_u32 v{AR}, s{S_T0}, v7
    v_add_u32 v{AR3}, {12*5184}, v{AR}
    v_lshrrev_b32 v4, 3, v1
    v_lshl_add_u32 v4, s{S_B}, 3, v4
    v_cmp_eq_u32 vcc, 15, v4
    v_lshlrev_b32 v2, 4, v1
    v_lshrrev_b32 v3, 4, v1
    v_cndmask_b32 v{AR3}, v{AR3}, v5, vcc
    v_lshlrev_b32 v3, 14, v3
    v_and_b32 v4, 15, v1
    v_lshl_add_u32 v3, v4, 3, v3
    s_lshl_b32 s{S_X0}, s{S_TOK}, 15
    s_lshl_b32 s{S_T0}, s{S_B}, 14
    s_add_u32 s{S_X0}, s{S_X0}, s{S_T0}
    s_add_u32 s{S_X0}, s{S_X0}, {WS_OM}
    s_lshl_b32 s{S_X1}, s{S_B}, 18
    s_lshl_b32 s{S_T0}, s{S_TOK}, 7
    s_add_u32 s{S_X1}, s{S_X1}, s{S_T0}
    s_add_u32 s{S_X1}, s{S_X1}, {WS_OR}
    """)
    steps = [16] + list(range(16)) + [17]
    def wreads(k):
        st = steps[k]; wb = WBUF[k % 3]; L = []
        for t in range(5):
            g = []
            for i in range(2):
                if st < 8: ad, off = AM, 5184 * st + 144 * i
                elif st < 15: ad, off = AM8, 5184 * (st - 8) + 144 * i
                elif st == 15: ad, off = AM15, 144 * i
                elif (st, i) == (17, 1): ad, off = AR3, 0
                else: ad, off = AR, 5184 * (8 * (st - 16) + 4 * i)
                g.append(f"ds_read_b64_tr_b16 {vr(wb+4*t+2*i,2)}, v{ad} offset:{off+32*t}")
            L.append(g)
        return L
    a("s_waitcnt vmcnt(0) lgkmcnt(0)\ns_barrier")
    stamp(a, 9)
    a("s_barrier")
    stamp(a, 10)
    nload = []
    for k, st in enumerate(steps):
        if st < 16:
            if st and st % 4 == 0: a(f"s_add_u32 s{S_X0}, s{S_X0}, 4096")
            a(f"buffer_load_dwordx4 {vr(OF+4*k,4)}, v2, {sr(SRD_WS,4)}, s{S_X0} offen offset:{1024*(st%4)} sc1")
            nload.append(1)
        else:
            for i in range(2):
                a(f"buffer_load_dwordx2 {vr(OF+4*k+2*i,2)}, v3, {sr(SRD_WS,4)}, s{S_X1} offen sc1")
                a(f"s_add_u32 s{S_X1}, s{S_X1}, 0x10000")
            nload.append(2)
    for k in range(2):
        for g in wreads(k):
            for x in g: a(x)
    a(f"""
    v_lshlrev_b32 v2, 4, v1
    s_mul_i32 s{S_T0}, s{S_TT}, 5120
    v_add_u32 v2, s{S_T0}, v2
    v_and_b32 v3, 15, v1
    s_lshl_b32 s{S_T0}, s{S_TOK}, 4
    v_add_u32 v3, s{S_T0}, v3
    v_mul_u32_u24 v3, 1152, v3
    v_add_u32 v3, s{S_C0}, v3
    v_lshrrev_b32 v4, 4, v1
    v_lshl_add_u32 v5, v4, 3, v3
    v_and_b32 v6, 1, v4
    v_lshl_add_u32 v3, v6, 5, v3
    v_lshrrev_b32 v4, 1, v4
    v_lshl_add_u32 v3, v4, 4, v3
    s_waitcnt lgkmcnt(0)
    s_barrier
    """)
    for k in range(18):
        if k == 14: a("s_barrier")
        groups = wreads(k + 2) if k + 2 < 18 else []
        lg = 10 if 1 <= k < 17 else 0
        a(f"s_waitcnt vmcnt({sum(nload[k+1:])}) lgkmcnt({lg})")
        wb = WBUF[k % 3]
        for t in range(5):
            c = vr(OACC + 4 * t, 4)
            a(f"v_mfma_f32_16x16x32_bf16 {c}, {vr(wb+4*t,4)}, {vr(OF+4*k,4)}, {'0' if k == 0 else c}")
            if t < len(groups):
                for y in groups[t]: a(y)
    stamp(a, 11)
    T = OF
    a(f"s_barrier\ns_cmp_eq_u32 s{S_B}, 0\ns_cbranch_scc0 L_p3_b")
    def fin(tiles, give, off):
        a.nop(4)
        for t in give: a(f"ds_write_b128 v2, {vr(OACC+4*t,4)} offset:{1024*t}")
        a("s_waitcnt lgkmcnt(0)\ns_barrier")
        for k, t in enumerate(tiles): a(f"ds_read_b128 {vr(T+4*k,4)}, v2 offset:{1024*t}")
        for k, t in enumerate(tiles):
            a(f"s_waitcnt lgkmcnt({len(tiles)-1-k})")
            for e in range(4): a(f"v_add_f32 v{OACC+4*t+e}, v{OACC+4*t+e}, v{T+4*k+e}")
        d = T + 12
        t0, t1 = tiles[0], tiles[1]
        a(f"""
        v_cvt_pk_bf16_f32 v{d}, v{OACC+4*t0}, v{OACC+4*t0+1}
        v_cvt_pk_bf16_f32 v{d+1}, v{OACC+4*t0+2}, v{OACC+4*t0+3}
        v_cvt_pk_bf16_f32 v{d+2}, v{OACC+4*t1}, v{OACC+4*t1+1}
        v_cvt_pk_bf16_f32 v{d+3}, v{OACC+4*t1+2}, v{OACC+4*t1+3}
        s_nop 1
        v_permlane16_swap_b32 v{d}, v{d+2}
        v_permlane16_swap_b32 v{d+1}, v{d+3}
        buffer_store_dwordx4 {vr(d,4)}, v3, {sr(SRD_O,4)}, 0 offen offset:{off}
        """)
        if len(tiles) == 3:
            t2 = tiles[2]
            a(f"""
            v_cvt_pk_bf16_f32 v{d+4}, v{OACC+4*t2}, v{OACC+4*t2+1}
            v_cvt_pk_bf16_f32 v{d+5}, v{OACC+4*t2+2}, v{OACC+4*t2+3}
            s_mov_b32 exec_hi, 0
            buffer_store_dwordx2 {vr(d+4,2)}, v5, {sr(SRD_O,4)}, 0 offen offset:128
            """)
        if PROF: a("s_waitcnt vmcnt(0)")
        stamp(a, 12); stamp(a, 17, True); stamp_out(a)
        a("s_endpgm")
    fin((0, 1, 4), (2, 3), 0)
    a.label("L_p3_b")
    fin((2, 3), (0, 1, 4), 64)

WPIECE = 864
def loader(a):
    AD0, AD1, AX0, AX1, LA, DW, FA, FL, Z = range(8, 17)
    BUF = 24
    sWS, sXS, sWO, sXO = (64, 65, 66), (33, 34, 35), 36, 37
    sM, sS, sN = 38, 40, 41
    a("s_setprio 3")
    def wsrc(dst, hi):
        a(f"""
        v_lshlrev_b32 v4, 1, v2
        v_or_b32 v4, {8*hi}, v4
        v_xor_b32 v4, v4, v3
        v_min_u32 v4, 14, v4
        v_mul_u32_u24 v5, 52, v4
        v_lshrrev_b32 v5, 8, v5
        v_lshlrev_b32 v4, 4, v4
        v_mul_u32_u24 v6, 1072, v5
        v_add_u32 v4, v4, v6
        v_and_b32 v5, 2, v5
        v_lshlrev_b32 v5, 2, v5
        v_sub_u32 v4, v4, v5
        v_mul_u32_u24 v5, 3456, v2
        v_add_u32 v{dst}, v4, v5
        """)
    wsrc(AD0, 0); wsrc(AD1, 1)
    a(f"""
    v_lshrrev_b32 v4, 3, v1
    v_mul_u32_u24 v4, 1152, v4
    v_and_b32 v5, 7, v1
    v_xor_b32 v5, v5, v2
    v_lshl_add_u32 v{AX0}, v5, 4, v4
    v_xor_b32 v5, 4, v5
    v_lshl_add_u32 v4, v5, 4, v4
    v_add_u32 v{AX1}, {8*1152}, v4
    v_lshlrev_b32 v{LA}, 4, v1
    s_mul_i32 s{sWO}, s{S_P}, 72
    s_mul_i32 s{sXO}, s{S_TB}, {256*1152}
    s_mov_b32 m0, {GATE_LDS}
    s_waitcnt lgkmcnt(0)
    s_cmp_eq_u32 s{S_B}, 0
    s_cselect_b32 s{S_PTR+2}, s{S_PTR+2}, s{S_PTR+8}
    s_cselect_b32 s{S_PTR+3}, s{S_PTR+3}, s{S_PTR+9}
    """)
    srd(a, SRD_W, S_PTR + 2, 576 * 3456)
    srd(a, SRD_X, S_PTR, 2048 * 1152)
    srd(a, SRD_G, S_PTR + 12, 1152)
    a(f"buffer_load_dwordx4 v{LA}, {sr(SRD_G,4)}, 0 offen lds")
    a(f"buffer_load_dwordx4 v{LA}, {sr(SRD_G,4)}, 0 offen offset:1024 lds")
    for i in range(3): a(f"s_mov_b32 s{sWS[i]}, {WST[i]}\ns_mov_b32 s{sXS[i]}, {XST[i]}")
    srd(a, SRD_WS, S_DBG + 2, WS_END)
    srd(a, SRD_O, S_DBG, 256)
    a(f"v_mov_b32 v{Z}, 0\nv_lshlrev_b32 v{FA}, 2, v1\ns_mov_b32 s{sN}, 0")
    a(f"s_cmp_eq_u32 s2, 0\ns_cselect_b32 s{S_T3}, 2, 15")
    DW_ = int(OPT.get("dw", 4))
    npc = (0 if OPT.get("now") else 2) + (0 if OPT.get("nox") else 4)
    def part(w0, w1):
        for w in range(w0, w1):
            a("s_waitcnt vmcnt(57)")
            for h in range(0 if OPT.get("now") else 2):
                a(f"""
                s_add_u32 m0, s{sWS[0]}, {h*8192 + w*1024}
                s_add_u32 s{S_T0}, s{sWO}, {(32*h + 4*w)*3456}
                buffer_load_dwordx4 v{AD0 + ((w >> 1) & 1)}, {sr(SRD_W,4)}, s{S_T0} offen lds
                """)
            for u in range(0 if OPT.get("nox") else 4):
                a(f"""
                s_add_u32 m0, s{sXS[0]}, {w*4096 + u*1024}
                s_add_u32 s{S_T0}, s{sXO}, {(32*w + 16*(u >> 1))*1152}
                buffer_load_dwordx4 v{AX0 + (u & 1)}, {sr(SRD_X,4)}, s{S_T0} offen lds
                """)
    a.label("L_ld_pair")
    part(0, DW_)
    a(f"s_cmp_eq_u32 s{sN}, 0\ns_cbranch_scc1 L_ld_first\ns_waitcnt vmcnt({npc*DW_})\ns_barrier")
    a(f"s_cmp_eq_u32 s{sN}, s{S_T3}\ns_cbranch_scc1 L_ld_ready")
    a.label("L_ld_second")
    part(DW_, 8)
    for r in (sWS, sXS):
        a(f"s_mov_b32 s{S_T0}, s{r[0]}\ns_mov_b32 s{r[0]}, s{r[1]}\ns_mov_b32 s{r[1]}, s{r[2]}\ns_mov_b32 s{r[2]}, s{S_T0}")
    a(f"""
    s_add_u32 s{sWO}, s{sWO}, {64*3456}
    s_add_u32 s{sXO}, s{sXO}, 128
    s_add_u32 s{sN}, s{sN}, 1
    s_cmp_lt_u32 s{sN}, 9
    s_cbranch_scc1 L_ld_pair
    s_waitcnt vmcnt(0)
    s_barrier
    """)
    rdy = f"buffer_load_dword v{FL}, v{Z}, {sr(SRD_O,4)}, 0 offen sc1"
    a(f"""
    s_mov_b64 exec, 1
    {rdy}
    s_lshl_b32 s{S_KVB}, s{S_GRP}, 3
    s_add_u32 s{sS}, s{S_KVB}, s{S_TB}
    s_mul_i32 s{sS}, s{sS}, {SLOT}
    s_mul_i32 s{S_KVB}, s{S_KVB}, {SLOT}
    s_lshl_b32 s{S_X1}, s{S_GRP}, 7
    s_add_u32 s{S_X1}, s{S_X1}, {WS_F1}
    s_lshl_b32 s{S_X0}, s{S_TB}, 2
    s_add_u32 s{S_X0}, s{S_X0}, s{S_X1}
    """)
    spin(a, "rdy", rdy, FL)
    a(f"""
    s_mov_b64 exec, -1
    v_mul_u32_u24 v2, 57, v1
    v_lshrrev_b32 v2, 9, v2
    v_mul_u32_u24 v2, {1152 - 144}, v2
    v_lshl_add_u32 v2, v1, 4, v2
    s_lshr_b32 s{S_C0}, s2, 5
    s_mul_i32 s{S_C0}, s{S_C0}, 144
    v_add_u32 v{DW}, s{S_C0}, v2
    s_barrier
    """)
    rd = lambda i: a(f"ds_read_b128 {vr(BUF+4*(i%24),4)}, v{LA} offset:{1024*i}")
    for i in range(12): rd(i)
    for i in range(40):
        if i + 12 < 40: rd(i + 12)
        a(f"s_waitcnt lgkmcnt({min(12, 39 - i)})")
        a(f"buffer_store_dwordx4 {vr(BUF+4*(i%24),4)}, v{LA}, {sr(SRD_WS,4)}, s{sS} offen offset:{1024*(i%4)} sc1")
        if i % 4 == 3: a(f"s_add_u32 s{sS}, s{sS}, 4096")
    def flag(soff):
        a(f"v_mov_b32 v{FL}, 1\ns_mov_b64 exec, 1\nbuffer_store_dword v{FL}, v{Z}, {sr(SRD_WS,4)}, s{soff} offen sc1")
    a("s_waitcnt vmcnt(0)")
    flag(S_X0); stamp(a, 5)
    ld1 = f"buffer_load_dword v{FL}, v{FA}, {sr(SRD_WS,4)}, s{S_X1} offen sc1"
    a(f"s_mov_b64 exec, 0xff\n{ld1}")
    spin(a, "kv", ld1, FL)
    a("s_mov_b64 exec, -1"); stamp(a, 6)
    def kv_setup(c):
        a(f"""
        s_add_u32 s{S_T0}, s{S_TB}, {c}
        s_and_b32 s{S_T0}, s{S_T0}, 7
        s_mul_i32 s{S_T0}, s{S_T0}, {SLOT}
        s_add_u32 s{sS}, s{S_T0}, s{S_KVB}
        s_mov_b32 s{sM}, {(c % 4) * SLOT}
        """)
    def kv_pieces(n):
        lab = a.uid("L_kv")
        a(f"s_mov_b32 s{sN}, {n // 4}")
        a.label(lab)
        a(f"s_waitcnt vmcnt(59)\ns_mov_b32 m0, s{sM}\ns_add_u32 s{sM}, s{sM}, 4096")
        for i in range(4): a(f"buffer_load_dwordx4 v{LA}, {sr(SRD_WS,4)}, s{sS} offen offset:{1024*i} sc1 lds")
        a(f"s_add_u32 s{sS}, s{sS}, 4096\ns_sub_u32 s{sN}, s{sN}, 1\ns_cbranch_scc0 {lab}".replace("s_cbranch_scc0", f"s_cmp_lg_u32 s{sN}, 0\ns_cbranch_scc1"))
    kv_setup(1); kv_pieces(40)
    kv_setup(2); kv_pieces(20)
    a("s_waitcnt vmcnt(20)\ns_barrier")
    kv_pieces(20)
    for c in range(3, 8):
        kv_setup(c); kv_pieces(40)
        a("s_waitcnt vmcnt(40)\ns_barrier")
    def wo(b, n0, n1, dst=None):
        lab = a.uid("L_wo")
        p = S_PTR + 4 + 6 * b
        a(f"""
        s_mov_b32 s{SRD_G}, s{p}
        s_and_b32 s{SRD_G+1}, s{p+1}, 0xffff
        s_mov_b32 s{SRD_G+2}, {576*1152}
        s_mov_b32 s{sS}, {n0*6*1152}
        s_mov_b32 s{sM}, {(96*b + n0)*WPIECE if dst is None else dst}
        """)
        a.label(lab)
        a(f"""
        s_waitcnt vmcnt(60)
        s_mov_b32 m0, s{sM}
        s_add_u32 s{sM}, s{sM}, {WPIECE}
        buffer_load_dwordx4 v{DW}, {sr(SRD_G,4)}, s{sS} offen lds
        s_add_u32 s{sS}, s{sS}, {6*1152}
        s_cmp_lt_u32 s{sS}, {n1*6*1152}
        s_cbranch_scc1 {lab}
        """)
    a("s_mov_b32 exec_hi, 0x3fffff")
    wo(0, 0, 47)
    a("s_waitcnt vmcnt(47)\ns_barrier")
    wo(0, 47, 94)
    a("s_barrier")
    wo(0, 94, 96); wo(1, 0, 46)
    a(f"""
    s_lshl_b32 s{S_X0}, s{S_TB}, 7
    s_lshl_b32 s{S_T0}, s{S_GRP}, 2
    s_add_u32 s{S_X0}, s{S_X0}, s{S_T0}
    s_add_u32 s{S_X0}, s{S_X0}, {WS_F2}
    s_and_b32 s{S_X1}, s2, 7
    s_lshl_b32 s{S_X1}, s{S_X1}, 7
    s_add_u32 s{S_X1}, s{S_X1}, {WS_F2}
    s_barrier
    """)
    flag(S_X0); stamp(a, 9)
    a("s_mov_b32 exec_lo, -1\ns_mov_b32 exec_hi, 0x3fffff")
    wo(1, 46, 93)
    ld2 = f"buffer_load_dword v{FL}, v{FA}, {sr(SRD_WS,4)}, s{S_X1} offen sc1"
    a(f"s_mov_b32 exec_hi, 0\n{ld2}")
    spin(a, "o", ld2, FL)
    stamp(a, 10)
    a("s_barrier\ns_mov_b32 exec_hi, 0x3fffff\ns_barrier")
    wo(1, 93, 96, dst=0)
    a("s_waitcnt vmcnt(0)\ns_barrier")
    stamp_out(a)
    a("s_endpgm")
    a.label("L_ld_first")
    a(f"""
    s_waitcnt vmcnt(56)
    s_cmp_lg_u32 s2, 0
    s_cbranch_scc1 L_ld_second
    v_mov_b32 v{BUF}, 0
    v_mov_b32 v{BUF+1}, 0
    v_mov_b32 v{BUF+2}, 0
    v_mov_b32 v{BUF+3}, 0
    s_mov_b32 s{S_T0}, {WS_F1}
    """)
    for i in range(4): a(f"buffer_store_dwordx4 {vr(BUF,4)}, v{LA}, {sr(SRD_WS,4)}, s{S_T0} offen offset:{1024*i} sc1")
    a(f"""
    s_mov_b32 s{S_T0}, {WS_F2}
    buffer_store_dwordx4 {vr(BUF,4)}, v{LA}, {sr(SRD_WS,4)}, s{S_T0} offen sc1
    s_branch L_ld_second
    """)
    a.label("L_ld_ready")
    a(f"""
    v_mov_b32 v{FL}, 1
    s_mov_b64 exec, 1
    buffer_store_dword v{FL}, v{Z}, {sr(SRD_O,4)}, 0 offen sc1
    s_mov_b64 exec, -1
    s_branch L_ld_second
    """)

def build():
    a = Asm()
    a("s_cmp_ge_u32 s2, 256\ns_cbranch_scc1 L_exit")
    stamp(a, 0); stamp(a, 16, True)
    entry(a)
    a.late = True
    loader(a)
    a.late = False
    a.label("L_compute")
    phase1(a); stamp(a, 4); a.late = True
    att_setup(a)
    stamp(a, 7); stamp(a, 18, True)
    if OPT.get("align"): a(".p2align 6")
    a.label("L_att_loop")
    att_chunk(a)
    a(f"s_add_u32 s{S_CH}, s{S_CH}, 1\ns_cmp_lt_u32 s{S_CH}, 8\ns_cbranch_scc1 L_att_loop")
    stamp(a, 8); stamp(a, 19, True)
    att_finish(a); phase3(a)
    att_slow(a)
    a.label("L_exit"); a("s_endpgm")
    return a, max(P1_END, P2_END, P3_END)

def emit(path):
    a, nv = build()
    label = NAME + "_kernel"
    nv4 = (nv + 3) // 4 * 4
    s = open(f"cdna_kernels/{NAME}.s.ref").read().split("; Override launch")[0]
    s += "; @launch grid=(256,1,1) block=(576,1,1) lds=163840\n"
    s += f""".amdgcn_target "amdgcn-amd-amdhsa--gfx950"
.text
.globl {label}
.p2align 8
.type {label},@function
{label}:
{a.text()}.section .rodata,"a"
.p2align 6
.amdhsa_kernel {label}
  .amdhsa_next_free_vgpr {nv4}
  .amdhsa_next_free_sgpr {102 if PROF else 72}
  .amdhsa_accum_offset {nv4}
  .amdhsa_group_segment_fixed_size 0
  .amdhsa_kernarg_size 80
  .amdhsa_user_sgpr_count 2
  .amdhsa_user_sgpr_kernarg_segment_ptr 1
  .amdhsa_system_sgpr_workgroup_id_x 1
.end_amdhsa_kernel
"""
    errs = check_hazards(a.lines) + check_waits(a.lines)
    for e in errs: print(e)
    open(path, "w").write(s)
    print("wrote", path, "checks", "FAILED" if errs else "OK", len(a.lines), "lines", nv, "vgprs")

if __name__ == "__main__":
    for x in list(sys.argv):
        if x.startswith("-O"):
            k, v = (x[2:].split("=") + ["1"])[:2]; OPT[k] = v.replace("_", " "); sys.argv.remove(x)
    if "--prof" in sys.argv: PROF = True; sys.argv.remove("--prof")
    emit(sys.argv[1] if len(sys.argv) > 1 else f"cdna_kernels/{NAME}.s")
```

```python
import sys, math, struct
from asmlib import Asm, vr, sr, check_hazards, check_waits

NAME = "gated_mix__softmax_full_mha__softmax_full_mha__prompt"
def f32(x): return struct.unpack("<I", struct.pack("<f", x))[0]

VSUB = 640
VOFF, KROFF = 2048, 2048 + 4 * VSUB
PB = KROFF + 512
HS = 4 * PB
SLOT = 2 * HS
QIMG = 3 * SLOT
WST = (8192, 24576, 40960)
XST = (90112, 122880, 57344)
GATE_LDS = 155648
WS_KV = 0
WS_OM = 256 * SLOT
WS_OR = WS_OM + 128 * 32 * 1024
WS_F1 = WS_OR + 32 * 2048 * 8
WS_F2 = WS_F1 + 4096
WS_END = WS_F2 + 1024
QSCALE = math.log2(math.e) / math.sqrt(18.0)
SPIN_MAX = 1 << 18
def vpos_slot(s): return 12 + s if s < 4 else s - 4 if s < 12 else s + 4 if s < 16 else s - 7 if s < 19 else 8
def vslot_dim(d): return 8 * (d & 1) + (d >> 1) if d < 16 else d
def vpos_dim(d): return vpos_slot(vslot_dim(d))

PROF = False
OPT = {}
WS_PROF = WS_END
def stamp(a, i, cyc=False):
    if not PROF: return
    if OPT.get("g1prof") and 5 <= i <= 12 and getattr(a, "late", False): return
    a(f"{'s_memtime' if cyc else 's_memrealtime'} s[70:71]\ns_waitcnt lgkmcnt(0)\ns_mov_b32 s{72+i}, s70")
def stamp_out(a, n=24):
    if not PROF: return
    if OPT.get("dbgprof"):
        lab = a.uid("L_nodbg")
        a(f"s_lshl_b32 s70, s2, 4\ns_add_u32 s70, s70, s{S_W}\ns_cmp_lg_u32 s70, {16*int(OPT['dbgprof'])}\ns_cbranch_scc1 {lab}")
        srd(a, SRD_G, S_DBG, 256)
        a("s_mov_b64 exec, 1\nv_mov_b32 v3, 0")
        for i in range(1, 13):
            a(f"s_sub_u32 s71, s{72+i}, s72\nv_mov_b32 v2, s71\nbuffer_store_dword v2, v3, s[16:19], 0 offen offset:{4*i}")
        a(f"s_sub_u32 s71, s{72+19}, s{72+18}\nv_mov_b32 v2, s71\nbuffer_store_dword v2, v3, s[16:19], 0 offen offset:52")
        a(f"s_sub_u32 s71, s{72+17}, s{72+16}\nv_mov_b32 v2, s71\nbuffer_store_dword v2, v3, s[16:19], 0 offen offset:56")
        a.label(lab)
        return
    a(f"s_getreg_b32 s94, hwreg(HW_REG_HW_ID)\ns_getreg_b32 s95, hwreg(HW_REG_XCC_ID)")
    a(f"s_lshl_b32 s70, s2, 4\ns_add_u32 s70, s70, s{S_W}\ns_lshl_b32 s70, s70, 7\ns_add_u32 s70, s70, {WS_PROF}")
    a("s_mov_b64 exec, 1\ns_mov_b32 s14, 0x10000000\nv_mov_b32 v3, 0")
    for i in range(n):
        a(f"v_mov_b32 v2, s{72+i}\nbuffer_store_dword v2, v3, s[12:15], s70 offen offset:{4*i}")

SRD_X, SRD_W, SRD_WS, SRD_G, SRD_O = 4, 8, 12, 16, 20
S_W, S_TB, S_GRP, S_B, S_P = 24, 25, 26, 27, 28
S_T0, S_T1, S_T2, S_T3 = 29, 30, 31, 32
S_X0, S_X1, S_WOFF, S_QS = 33, 34, 35, 36
S_CH, S_M0, S_KVB, S_SOFF, S_CNT = 37, 38, 39, 40, 41
S_EX = 42
S_PTR = 44
S_DBG = 60
S_MSTEP, S_SSTEP, S_NSL, S_C0 = 64, 65, 66, 67
S_OK = 68

def srd(a, d, ptr, size):
    a(f"s_mov_b32 s{d}, s{ptr}\ns_and_b32 s{d+1}, s{ptr+1}, 0xffff\ns_mov_b32 s{d+2}, {size}\ns_mov_b32 s{d+3}, 0x00020000")

def spin(a, tag, load, reg):
    a(f"s_mov_b32 s{S_CNT}, {SPIN_MAX}")
    a.label(f"L_spin_{tag}")
    a(f"""
    s_waitcnt vmcnt(0)
    v_cmp_eq_u32 vcc, 0, v{reg}
    s_cbranch_vccz L_got_{tag}
    s_sleep 2
    {load}
    s_sub_u32 s{S_CNT}, s{S_CNT}, 1
    s_cmp_lg_u32 s{S_CNT}, 0
    s_cbranch_scc1 L_spin_{tag}
    s_waitcnt vmcnt(0)
    """)
    a.label(f"L_got_{tag}")

ACC = 8
WF = ACC + 56
XF = WF + 56
AW = XF + 16
AG, AXR = AW + 7, AW + 8
EKM, EVA, EVB, EMID, EONE, EKC, ESC = range(AW + 12, AW + 19)
PF = ESC + 1
P1_END = PF + 3
T_QA, T_QB, T_KA, T_KB, T_VA, T_VB, T_MID = range(7)
acc = lambda n, tt: ACC + (2 * n + tt) * 4

def p1_reads(ks):
    wf = WF + 28 * (ks % 2); xf = XF + 8 * (ks % 2)
    st = (ks // 2) % 3
    off = WST[st] - WST[0] + (ks % 2) * 8192
    xa, xo = (AXR + 2, 0) if st == 1 else (AXR, XST[st] - XST[2])
    L = [[f"ds_read_b128 {vr(xf+4*tt,4)}, v{xa+ks%2} offset:{xo + tt*2048}" for tt in range(2)]]
    for n in (T_QA, T_QB, T_KA, T_KB, T_VA, T_VB, T_MID):
        g = [f"ds_read_b64_tr_b16 {vr(wf+4*n,2)}, v{AW+n} offset:{off}",
             f"ds_read_b64_tr_b16 {vr(wf+4*n+2,2)}, v{AW+n} offset:{off+1024}"]
        if n == T_MID:
            g += [f"s_mov_b64 exec, {sr(S_EX,2)}",
                  f"ds_read_b128 {vr(wf+4*n,4)}, v{AG} offset:{64*ks}",
                  "s_mov_b64 exec, -1"]
        L.append(g)
    return L

def byte_table(a, dst, idx, table):
    w = [sum(table[4*i+k] << (8*k) for k in range(4)) for i in range(len(table) // 4)]
    a(f"v_and_b32 v{dst}, 7, v{idx}\nv_or_b32 v{dst}, 0x0c0c0c00, v{dst}")
    a(f"s_mov_b32 s{S_CNT}, {hex(w[1])}\nv_mov_b32 v{ACC+4}, {hex(w[0])}")
    if len(w) == 2:
        a(f"v_perm_b32 v{dst}, s{S_CNT}, v{ACC+4}, v{dst}"); return
    a(f"v_perm_b32 v{ACC+5}, s{S_CNT}, v{ACC+4}, v{dst}")
    a(f"s_mov_b32 s{S_CNT}, {hex(w[3])}\nv_mov_b32 v{ACC+4}, {hex(w[2])}\nv_cmp_gt_u32 vcc, 8, v{idx}")
    a(f"v_perm_b32 v{dst}, s{S_CNT}, v{ACC+4}, v{dst}\ns_nop 0\nv_cndmask_b32 v{dst}, v{dst}, v{ACC+5}, vcc")

MAP = {
 "4": f"""s_and_b32 s{S_T0}, s2, 7
    s_lshl_b32 s{S_T0}, s{S_T0}, 2
    s_bfe_u32 s{S_T1}, s2, 0x20003
    s_or_b32 s{S_GRP}, s{S_T0}, s{S_T1}
    s_lshr_b32 s{S_TB}, s2, 5""",
 "8": f"""s_bfe_u32 s{S_T0}, s2, 0x20001
    s_lshl_b32 s{S_T0}, s{S_T0}, 3
    s_bfe_u32 s{S_T1}, s2, 0x30003
    s_or_b32 s{S_GRP}, s{S_T0}, s{S_T1}
    s_and_b32 s{S_T0}, s2, 1
    s_lshl_b32 s{S_T0}, s{S_T0}, 2
    s_lshr_b32 s{S_TB}, s2, 6
    s_or_b32 s{S_TB}, s{S_TB}, s{S_T0}""",
}
def entry(a):
    a(f"""
    s_load_dwordx16 {sr(S_PTR,16)}, s[0:1], 0
    s_load_dwordx4 {sr(S_DBG,4)}, s[0:1], 64
    v_readfirstlane_b32 s{S_W}, v0
    v_and_b32 v1, 63, v0
    {MAP[OPT.get("map", "4")]}
    s_lshr_b32 s{S_B}, s{S_GRP}, 4
    s_and_b32 s{S_P}, s{S_GRP}, 15
    s_lshr_b32 s{S_W}, s{S_W}, 6
    v_lshrrev_b32 v2, 4, v1
    v_and_b32 v3, 15, v1
    s_cmp_lt_u32 s{S_W}, 8
    s_cbranch_scc1 L_compute
    """)

def prefetch(a):
    nx, nw = 2048 * 9, 576 * 27
    a(f"""
    s_lshl_b32 s{S_T0}, s2, 3
    s_add_u32 s{S_T0}, s{S_T0}, s{S_W}
    s_mul_i32 s{S_T0}, s{S_T0}, 25
    v_add_u32 v4, s{S_T0}, v1
    v_lshlrev_b32 v4, 7, v4
    v_subrev_u32 v5, {nx*128}, v4
    v_subrev_u32 v6, {(nx+nw)*128}, v4
    s_waitcnt lgkmcnt(0)
    """)
    srd(a, SRD_X, S_PTR, 2048 * 1152)
    srd(a, SRD_W, S_PTR + 2, 576 * 3456)
    srd(a, SRD_G, S_PTR + 8, 576 * 3456)
    a(f"""
    s_mov_b64 exec, 0x1ffffff
    buffer_load_dword v{PF}, v4, {sr(SRD_X,4)}, 0 offen
    buffer_load_dword v{PF+1}, v5, {sr(SRD_W,4)}, 0 offen
    buffer_load_dword v{PF+2}, v6, {sr(SRD_G,4)}, 0 offen
    s_mov_b64 exec, -1
    """)

def phase1(a):
    if not OPT.get("nopf"): prefetch(a)
    a(f"""
    s_lshl_b32 s{S_T3}, s{S_W}, 12
    s_add_u32 s{S_T3}, s{S_T3}, {XST[2]}
    v_lshrrev_b32 v4, 1, v3
    v_xor_b32 v4, v4, v2
    v_lshlrev_b32 v5, 7, v3
    v_add_u32 v5, s{S_T3}, v5
    v_lshl_add_u32 v{AXR}, v4, 4, v5
    v_xor_b32 v4, 4, v4
    v_lshl_add_u32 v{AXR+1}, v4, 4, v5
    v_add_u32 v{AXR+2}, {XST[1]-XST[2]}, v{AXR}
    v_add_u32 v{AXR+3}, {XST[1]-XST[2]}, v{AXR+1}
    v_bfe_u32 v4, v1, 2, 2
    v_and_b32 v5, 3, v1
    v_and_b32 v6, 1, v2
    v_lshlrev_b32 v6, 2, v6
    v_or_b32 v6, v6, v4
    v_lshlrev_b32 v6, 1, v6
    v_lshl_add_u32 v7, v2, 3, v4
    v_lshlrev_b32 v7, 8, v7
    v_add_u32 v7, {WST[0]}, v7
    """)
    u, t = ACC, ACC + 1
    def addr(n):
        a(f"""
        v_lshrrev_b32 v{t}, 1, v{u}
        v_xor_b32 v{t}, v{t}, v6
        v_lshl_add_u32 v{t}, v{t}, 4, v7
        v_and_b32 v{u+2}, 1, v{u}
        v_lshl_add_u32 v{AW+n}, v{u+2}, 3, v{t}
        """)
    a(f"v_lshrrev_b32 v{u}, 1, v5\nv_lshl_add_u32 v{u}, v5, 1, v{u}"); addr(T_QA)
    a(f"v_add_u32 v{u}, 1, v{u}"); addr(T_QB)
    a(f"v_add_u32 v{u}, 9, v{u}"); addr(T_KA)
    a(f"v_add_u32 v{u}, 1, v{u}"); addr(T_KB)
    a(f"v_add_u32 v{u}, 21, v5"); addr(T_VA)
    a(f"v_add_u32 v{u}, 25, v5"); addr(T_VB)
    a(f"v_lshlrev_b32 v{u}, 3, v5\ns_mov_b32 s{S_T0}, 0x1b1d0e04\nv_lshrrev_b32 v{u}, v{u}, s{S_T0}\nv_and_b32 v{u}, 0xff, v{u}"); addr(T_MID)
    a(f"v_lshlrev_b32 v{AG}, 4, v2\nv_add_u32 v{AG}, {GATE_LDS}, v{AG}")
    a(f"s_mov_b32 s{S_EX}, 0xf000f000\ns_mov_b32 s{S_EX+1}, 0xf000f000")
    byte_table(a, EVA, 3, [vpos_dim(d) for d in range(16)])
    byte_table(a, EVB, 3, [vpos_dim(16), vpos_dim(17)] + [vpos_dim(d) for d in range(14)])
    a(f"""
    s_lshr_b32 s{S_T0}, s{S_W}, 1
    s_mul_i32 s{S_T0}, s{S_T0}, {PB}
    s_and_b32 s{S_T1}, s{S_W}, 1
    v_lshrrev_b32 v4, 1, v2
    v_and_b32 v5, 1, v2
    v_mul_u32_u24 v6, {HS}, v4
    v_lshl_add_u32 v7, v5, 5, v3
    v_lshl_add_u32 v6, v7, 4, v6
    s_lshl_b32 s{S_QS}, s{S_T1}, 10
    s_add_u32 s{S_QS}, s{S_QS}, s{S_T0}
    v_add_u32 v{EKM}, s{S_QS}, v6
    s_mul_i32 s{S_QS}, s{S_T1}, {2*VSUB}
    s_add_u32 s{S_QS}, s{S_QS}, s{S_T0}
    s_add_u32 s{S_QS}, s{S_QS}, {VOFF}
    v_mul_u32_u24 v6, 320, v4
    v_lshl_add_u32 v6, v5, 3, v6
    v_add_u32 v6, s{S_QS}, v6
    v_lshl_add_u32 v{EVA}, v{EVA}, 4, v6
    v_lshl_add_u32 v{EVB}, v{EVB}, 4, v6
    v_mov_b32 v6, {HS}
    v_cmp_gt_u32 vcc, 2, v3
    v_lshrrev_b32 v4, 3, v3
    v_mul_u32_u24 v4, 320, v4
    v_cndmask_b32 v6, v6, 0, vcc
    v_add_u32 v{EVB}, v{EVB}, v6
    v_and_b32 v5, 7, v3
    v_lshl_add_u32 v4, v5, 1, v4
    s_add_u32 s{S_CNT}, s{S_QS}, {HS}
    v_add_u32 v4, s{S_CNT}, v4
    s_lshl_b32 s{S_T1}, s{S_T1}, 3
    s_add_u32 s{S_T1}, s{S_T1}, s{S_T0}
    s_add_u32 s{S_T1}, s{S_T1}, {KROFF}
    v_lshlrev_b32 v5, 4, v3
    v_add_u32 v5, s{S_T1}, v5
    v_add_u32 v6, {QIMG}, v5
    v_cmp_eq_u32 vcc, 1, v2
    v_add_u32 v7, 4, v6
    s_nop 0
    v_cndmask_b32 v6, v6, v5, vcc
    v_cmp_eq_u32 vcc, 2, v2
    v_mov_b32 v{ESC}, 1.0
    s_nop 0
    v_cndmask_b32 v6, v6, v4, vcc
    v_cmp_eq_u32 vcc, 3, v2
    v_mov_b32 v5, {hex(f32(QSCALE))}
    s_nop 0
    v_cndmask_b32 v{EMID}, v6, v7, vcc
    v_cmp_eq_u32 vcc, 0, v2
    v_bfe_u32 v4, v1, 2, 1
    v_mul_u32_u24 v4, {HS}, v4
    v_cndmask_b32 v{ESC}, v{ESC}, v5, vcc
    v_and_b32 v5, 3, v1
    v_mul_u32_u24 v5, 320, v5
    v_bfe_u32 v6, v1, 3, 1
    v_mul_u32_u24 v6, {16*(vpos_slot(18)-vpos_slot(19))}, v6
    v_add3_u32 v4, v4, v5, v6
    s_add_u32 s{S_QS}, s{S_QS}, {16*vpos_slot(19)}
    v_add_u32 v{EONE}, s{S_QS}, v4
    v_lshrrev_b32 v4, 5, v1
    v_mul_u32_u24 v4, {HS}, v4
    v_and_b32 v5, 31, v1
    v_lshl_add_u32 v4, v5, 4, v4
    s_add_u32 s{S_T1}, s{S_T1}, 4
    v_add_u32 v{EKC}, s{S_T1}, v4
    s_mov_b32 s{S_QS}, {hex(f32(QSCALE))}
    s_waitcnt lgkmcnt(0)
    """)
    srd(a, SRD_WS, S_DBG + 2, WS_END)
    srd(a, SRD_O, S_PTR + 14, 2048 * 1152)
    stamp(a, 1)
    a("s_barrier")
    stamp(a, 2)
    for g in p1_reads(0):
        for x in g: a(x)
    for ks in range(18):
        n = ks // 2
        a("s_waitcnt lgkmcnt(0)")
        if ks % 2 == 1 and n + 1 < 9:
            a("s_barrier")
            if OPT.get("g1prof"): stamp(a, 5 + n)
        groups = p1_reads(ks + 1) if ks + 1 < 18 else []
        if OPT.get("noreads"): groups = []
        if OPT.get("noxreads"): groups = groups[1:]
        wf = WF + 28 * (ks % 2); x = XF + 8 * (ks % 2)
        i = 0
        for nn in (T_QA, T_QB, T_KA, T_KB, T_VA, T_VB, T_MID):
            for tt in range(2):
                c = vr(acc(nn, tt), 4)
                cin = "0" if ks == 0 else c
                if OPT.get("nomfma") and 0 < ks < 17: pass
                elif nn in (T_VA, T_VB):
                    a(f"v_mfma_f32_16x16x32_bf16 {c}, {vr(x+4*tt,4)}, {vr(wf+4*nn,4)}, {cin}")
                else:
                    a(f"v_mfma_f32_16x16x32_bf16 {c}, {vr(wf+4*nn,4)}, {vr(x+4*tt,4)}, {cin}")
                if i < len(groups):
                    for y in groups[i]: a(y)
                i += 1
    stamp(a, 3)
    a("s_waitcnt vmcnt(0)")
    T = WF
    a(f"v_bfe_u32 v{T+16}, v1, 3, 1\ns_mov_b32 s{S_T0}, 0x3f803f80\nv_mul_lo_u32 v{T+16}, v{T+16}, s{S_T0}\nv_mov_b32 v{T+20}, 0x3f80")
    a(f"v_mov_b32 v{T+17}, v{T+16}\nv_mov_b32 v{T+18}, v{T+16}\nv_mov_b32 v{T+19}, v{T+16}")
    a(f"ds_write_b32 v{EKC}, v{T+20}")
    a(f"s_mov_b64 exec, 0xffff\nds_write_b128 v{EONE}, {vr(T+16,4)}\ns_mov_b64 exec, -1")
    a(f"v_add_u32 v{T+21}, {QIMG}, v{EKM}")
    for tt in range(2):
        t = T + 24 + 16 * tt
        for k, n in enumerate((T_KA, T_KB)):
            c = acc(n, tt)
            a(f"v_cvt_pk_bf16_f32 v{t+2*k}, v{c}, v{c+1}\nv_cvt_pk_bf16_f32 v{t+2*k+1}, v{c+2}, v{c+3}")
        a(f"ds_write_b128 v{EKM}, {vr(t,4)} offset:{256*tt}")
        for k, (n, ad) in enumerate(((T_VA, EVA), (T_VB, EVB))):
            c = acc(n, tt)
            a(f"v_cvt_pk_bf16_f32 v{t+4+2*k}, v{c}, v{c+1}\nv_cvt_pk_bf16_f32 v{t+5+2*k}, v{c+2}, v{c+3}")
            a(f"ds_write_b64 v{ad}, {vr(t+4+2*k,2)} offset:{VSUB*tt}")
        c = acc(T_MID, tt)
        for e in range(4): a(f"v_mul_f32 v{c+e}, v{ESC}, v{c+e}")
        a(f"v_cvt_pk_bf16_f32 v{t+12}, v{c}, v{c+1}\nv_cvt_pk_bf16_f32 v{t+13}, v{c+2}, v{c+3}")
        vo = [VSUB * tt + 16 * vpos_dim(14 + e) for e in range(4)]
        a(f"""
        s_mov_b32 exec_lo, 0
        s_mov_b32 exec_hi, 0xffff
        ds_write_b16 v{EMID}, v{t+12} offset:{vo[0]}
        ds_write_b16_d16_hi v{EMID}, v{t+12} offset:{vo[1]}
        ds_write_b16 v{EMID}, v{t+13} offset:{vo[2]}
        ds_write_b16_d16_hi v{EMID}, v{t+13} offset:{vo[3]}
        s_mov_b32 exec_hi, 0xffff0000
        v_mov_b32 v{t+12}, v{c}
        v_mov_b32 v{t+13}, v{c}
        s_mov_b32 exec_lo, -1
        ds_write_b32 v{EMID}, v{t+12} offset:{256*tt}
        ds_write_b32 v{EMID}, v{t+13} offset:{256*tt+HS}
        s_mov_b64 exec, -1
        """)
        for k, n in enumerate((T_QA, T_QB)):
            c = acc(n, tt)
            for e in range(4): a(f"v_mul_f32 v{c+e}, s{S_QS}, v{c+e}")
            a(f"v_cvt_pk_bf16_f32 v{t+8+2*k}, v{c}, v{c+1}\nv_cvt_pk_bf16_f32 v{t+9+2*k}, v{c+2}, v{c+3}")
        a(f"ds_write_b128 v{T+21}, {vr(t+8,4)} offset:{256*tt}")
    a("s_waitcnt lgkmcnt(0)\ns_barrier")

SB = (8, 40); OA = 72; QM = 104; QR = 112; KM = 116; KR = 120; VF = 124
IDX, BKM, BKR, BV, AKM, AKR, AV, VG = range(132, 140)
TMP = 140
P2_END = TMP + 20
ORDER = "E3 s3p lv1 E3 2b lkr E8 w0 s0 E4 s1 E4 m0 E4 s2 lv0 E3 m1 lkm E3"

def att_ops(t):
    par = t % 2
    cur, nxt = SB[par], SB[1 - par]
    pb = lambda x: ((x % 8) // 2) * PB
    return cur, {
     "2b": f"v_mfma_f32_32x32x4_2b_bf16 {vr(nxt,32)}, {vr(KR+2*(1-par),2)}, {vr(QR,2)}, 0",
     "m0": f"v_mfma_f32_32x32x16_bf16 {vr(nxt,16)}, {vr(KM,4)}, {vr(QM,4)}, {vr(nxt,16)}",
     "m1": f"v_mfma_f32_32x32x16_bf16 {vr(nxt+16,16)}, {vr(KM,4)}, {vr(QM+4,4)}, {vr(nxt+16,16)}",
     "s0": f"v_smfmac_f32_32x32x32_bf16 {vr(OA,16)}, {vr(VF,4)}, {vr(cur,8)}, v{IDX}",
     "s1": f"v_smfmac_f32_32x32x32_bf16 {vr(OA,16)}, {vr(VF+4,4)}, {vr(cur+8,8)}, v{IDX}",
     "s2": f"v_smfmac_f32_32x32x32_bf16 {vr(OA+16,16)}, {vr(VF,4)}, {vr(cur+16,8)}, v{IDX}",
     "s3": f"v_smfmac_f32_32x32x32_bf16 {vr(OA+16,16)}, {vr(VF+4,4)}, {vr(cur+24,8)}, v{IDX}",
     "s3p": f"v_smfmac_f32_32x32x32_bf16 {vr(OA+16,16)}, {vr(VF+4,4)}, {vr(nxt+24,8)}, v{IDX}",
     "lkr": f"ds_read_b128 {vr(KR,4)}, v{AKR} offset:{pb(t+2)}" if par == 0 else None,
     "lkm": f"ds_read_b128 {vr(KM,4)}, v{AKM} offset:{pb(t+2)+1024*par}",
     "lv0": f"ds_read_b128 {vr(VF,4)}, v{AV} offset:{pb(t+1)+2*VSUB*(1-par)}",
     "lv1": f"ds_read_b128 {vr(VF+4,4)}, v{AV} offset:{pb(t)+2*VSUB*par+VSUB}",
    }

def att_tile(a, t, hooks=None):
    cur, ops = att_ops(t)
    e = 0
    for tok in ORDER.split():
        if hooks and tok in hooks: hooks[tok]()
        if tok[0] == "E":
            for _ in range(int(tok[1:])):
                a(f"v_exp_f32 v{cur+e}, v{cur+e}"); e += 1
        elif tok[0] == "w": a(f"s_waitcnt lgkmcnt({tok[1:]})")
        elif ops[tok]: a(ops[tok])

def att_setup(a):
    a(f"""
    s_lshr_b32 s{S_T0}, s{S_W}, 2
    s_mul_i32 s{S_T0}, s{S_T0}, {HS}
    v_lshlrev_b32 v2, 4, v1
    v_add_u32 v{BKM}, s{S_T0}, v2
    v_and_b32 v3, 31, v1
    v_lshlrev_b32 v4, 4, v3
    s_add_u32 s{S_T1}, s{S_T0}, {KROFF}
    v_add_u32 v{BKR}, s{S_T1}, v4
    v_lshrrev_b32 v5, 5, v1
    s_and_b32 s{S_T2}, s{S_W}, 3
    s_mul_i32 s{S_T2}, s{S_T2}, {PB}
    s_add_u32 s{S_T2}, s{S_T2}, {QIMG}
    v_add_u32 v6, s{S_T2}, v{BKM}
    v_lshl_add_u32 v7, v5, 3, v{BKR}
    v_add_u32 v7, s{S_T2}, v7
    ds_read_b128 {vr(QM,4)}, v6
    ds_read_b128 {vr(QM+4,4)}, v6 offset:1024
    ds_read_b64 {vr(QR,2)}, v7
    ds_read_b128 {vr(KR,4)}, v{BKR}
    ds_read_b128 {vr(KM,4)}, v{BKM}
    v_min_u32 v3, 19, v3
    v_lshrrev_b32 v4, 2, v3
    v_lshlrev_b32 v4, 3, v4
    s_mov_b32 s{S_T2}, 0x1004000c
    v_lshrrev_b32 v6, v4, s{S_T2}
    v_and_b32 v6, 0xff, v6
    v_and_b32 v7, 3, v3
    v_add_u32 v6, v6, v7
    v_add_u32 v7, 1, v7
    v_and_b32 v7, 3, v7
    v_or_b32 v7, 8, v7
    v_cmp_gt_u32 vcc, 16, v3
    v_mul_u32_u24 v5, 20, v5
    s_add_u32 s{S_T1}, s{S_T0}, {VOFF}
    v_cndmask_b32 v3, v7, v6, vcc
    v_add_u32 v3, v3, v5
    v_lshlrev_b32 v3, 4, v3
    v_add_u32 v{BV}, s{S_T1}, v3
    v_mov_b32 v{IDX}, 0xdddddddd
    v_mov_b32 v{AKM}, v{BKM}
    v_mov_b32 v{AKR}, v{BKR}
    v_mov_b32 v{AV}, v{BV}
    """)
    s0, s1 = SB
    a(f"s_waitcnt lgkmcnt(2)\nv_mov_b32 v{VG}, v{QR+1}\nv_mov_b32 v{QR+1}, 0")
    a(f"ds_read_b128 {vr(VF,4)}, v{AV}\ns_waitcnt lgkmcnt(1)")
    qk = lambda: (a(f"v_mfma_f32_32x32x4_2b_bf16 {vr(s0,32)}, {vr(KR,2)}, {vr(QR,2)}, 0"))
    def mains():
        a(f"v_mfma_f32_32x32x16_bf16 {vr(s0,16)}, {vr(KM,4)}, {vr(QM,4)}, {vr(s0,16)}")
        a(f"v_mfma_f32_32x32x16_bf16 {vr(s0+16,16)}, {vr(KM,4)}, {vr(QM+4,4)}, {vr(s0+16,16)}")
    qk()
    for i in range(20): a(f"v_mov_b32 v{OA+i}, 0")
    mains()
    for i in range(20, 32): a(f"v_mov_b32 v{OA+i}, 0")
    T = TMP
    for blk in range(2):
        b = s0 + 16 * blk; m = T + blk
        a(f"v_max3_f32 v{m}, v{b}, v{b+1}, v{b+2}")
        for i in range(3, 15, 2): a(f"v_max3_f32 v{m}, v{m}, v{b+i}, v{b+i+1}")
        a(f"v_max_f32 v{m}, v{m}, v{b+15}")
    a(f"""
    s_nop 1
    v_permlane32_swap_b32 v{T}, v{T+1}
    v_max_f32 v{T}, v{T}, v{T+1}
    v_cvt_pk_bf16_f32 v{QR+1}, -v{T}, 0
    s_nop 1
    """)
    qk()
    for i in range(8): a(f"v_mov_b32 v{s1+24+i}, 0")
    for i in range(4): a(f"v_mov_b32 v{VF+4+i}, 0")
    a(f"""
    s_lshl_b32 s{S_KVB}, s{S_GRP}, 3
    s_mul_i32 s{S_KVB}, s{S_KVB}, {SLOT}
    s_mov_b64 {sr(S_OK,2)}, -1
    s_mov_b32 s{S_CH}, 0
    s_mov_b32 s{S_NSL}, 0
    s_lshr_b32 s{S_C0}, s2, 5
    s_mul_i32 s{S_C0}, s{S_C0}, 144
    """)
    mains()
    a(f"ds_read_b128 {vr(KM,4)}, v{AKM} offset:1024")
    a.nop(10)

def att_chunk(a):
    def sync():
        a(f"""
        s_add_u32 s{S_NSL}, s{S_NSL}, {SLOT}
        s_cmp_eq_u32 s{S_NSL}, {4*SLOT}
        s_cselect_b32 s{S_NSL}, 0, s{S_NSL}
        s_barrier
        v_add_u32 v{AKR}, s{S_NSL}, v{BKR}
        v_add_u32 v{AKM}, s{S_NSL}, v{BKM}
        """)
    for t in range(8):
        hooks = {}
        if t == 6: hooks["lkr"] = sync
        if t == 7: hooks["lv0"] = lambda: a(f"v_add_u32 v{AV}, s{S_NSL}, v{BV}")
        att_tile(a, t, hooks)

def att_finish(a):
    _, ops = att_ops(7)
    a(f"s_nop 1\n{ops['s3']}")
    T = TMP
    a(f"""
    s_lshl_b32 s{S_T0}, s{S_B}, 31
    s_xor_b32 s{S_T0}, s{S_T0}, {hex(f32(-math.log2(math.e)))}
    v_mul_f32 v{VG}, s{S_T0}, v{VG}
    v_exp_f32 v{VG}, v{VG}
    s_and_b32 s{S_T0}, s{S_W}, 3
    v_add_f32 v{VG}, 1.0, v{VG}
    v_rcp_f32 v{VG}, v{VG}
    s_lshl_b32 s{S_T1}, s{S_TB}, 2
    s_add_u32 s{S_T0}, s{S_T0}, s{S_T1}
    s_lshl_b32 s{S_T1}, s{S_T0}, 17
    s_lshl_b32 s{S_T2}, s{S_GRP}, 10
    s_add_u32 s{S_T1}, s{S_T1}, s{S_T2}
    s_lshr_b32 s{S_T3}, s{S_W}, 2
    s_lshl_b32 s{S_T2}, s{S_T3}, 9
    s_add_u32 s{S_T1}, s{S_T1}, s{S_T2}
    s_add_u32 s{S_X0}, s{S_T1}, {WS_OM}
    s_add_u32 s{S_X1}, s{S_X0}, 0x10000
    v_bfe_u32 v2, v1, 4, 1
    v_lshlrev_b32 v2, 15, v2
    v_lshrrev_b32 v3, 5, v1
    v_lshl_add_u32 v2, v3, 8, v2
    v_and_b32 v3, 15, v1
    v_lshl_add_u32 v2, v3, 4, v2
    s_lshl_b32 s{S_T0}, s{S_T0}, 9
    s_lshl_b32 s{S_T2}, s{S_GRP}, 14
    s_add_u32 s{S_T0}, s{S_T0}, s{S_T2}
    s_lshl_b32 s{S_T3}, s{S_T3}, 2
    s_add_u32 s{S_T0}, s{S_T0}, s{S_T3}
    s_add_u32 s{S_WOFF}, s{S_T0}, {WS_OR}
    v_lshlrev_b32 v3, 3, v1
    """)
    a.label("L_att_norm")
    m = T + 2
    a(f"""
    v_mov_b32 v{T}, v{OA+10}
    v_mov_b32 v{T+1}, v{OA+26}
    s_mov_b32 s{S_T0}, {hex(f32(2.0**-60))}
    s_mov_b32 s{S_T1}, {hex(f32(2.0**60))}
    v_permlane32_swap_b32 v{T}, v{T+1}
    v_add_f32 v{m}, |v{OA}|, |v{OA+16}|
    v_cmp_nle_f32 s[4:5], s{S_T0}, v{T}
    v_cmp_nge_f32 s[6:7], s{S_T1}, v{T}
    v_rcp_f32 v{T}, v{T}
    """)
    for i in range(1, 10): a(f"v_add_f32 v{m}, v{m}, |v{OA+i}|\nv_add_f32 v{m}, v{m}, |v{OA+16+i}|")
    a(f"""
    s_mov_b32 s{S_T0}, 0x7f000000
    v_mul_f32 v{T}, v{T}, v{VG}
    v_cmp_nge_f32 vcc, s{S_T0}, v{m}
    v_mov_b32 v{T+1}, v{T}
    s_or_b64 s[4:5], s[4:5], s[6:7]
    s_or_b64 vcc, vcc, s[4:5]
    s_and_b64 vcc, vcc, {sr(S_OK,2)}
    s_cbranch_vccnz L_att_slow
    v_permlane32_swap_b32 v{T}, v{T+1}
    """)
    for blk in range(2):
        o = OA + 16 * blk; f = T + blk; d = T + 4 + 4 * blk
        for i in range(10): a(f"v_mul_f32 v{o+i}, v{f}, v{o+i}")
        for i in range(4): a(f"v_cvt_pk_bf16_f32 v{d+i}, v{o+2*i}, v{o+2*i+1}")
        a(f"buffer_store_dwordx4 {vr(d,4)}, v2, {sr(SRD_WS,4)}, s{S_X0+blk} offen sc1")
        a(f"v_cvt_pk_bf16_f32 v{T+12+blk}, v{o+8}, v{o+9}")
    a(f"s_nop 1\nv_permlane32_swap_b32 v{T+12}, v{T+13}")
    a(f"buffer_store_dword v{T+12}, v3, {sr(SRD_WS,4)}, s{S_WOFF} offen sc1")

def att_slow(a):
    s0 = SB[0]; T = TMP
    M0, M1, GK = T + 16, T + 17, T + 18
    a.label("L_att_slow")
    a(f"""
    s_mov_b64 {sr(S_OK,2)}, 0
    v_mov_b32 v{QR+1}, 0
    v_mov_b32 v{M0}, 0xff800000
    v_mov_b32 v{M1}, 0xff800000
    s_waitcnt vmcnt(0) lgkmcnt(0)
    """)
    for i in range(32): a(f"v_mov_b32 v{OA+i}, 0")
    for ps in range(2):
        a(f"s_mov_b32 s{S_CNT}, 0")
        a.label(f"L_slow_{ps}")
        a(f"""
        s_lshr_b32 s{S_T0}, s{S_CNT}, 1
        s_bfe_u32 s{S_T1}, s{S_CNT}, 0x30003
        s_lshl_b32 s{S_T1}, s{S_T1}, 2
        s_add_u32 s{S_T0}, s{S_T0}, s{S_T1}
        s_mul_i32 s{S_T0}, s{S_T0}, {PB}
        s_add_u32 s{S_T0}, s{S_T0}, s{S_KVB}
        s_and_b32 s{S_T1}, s{S_CNT}, 1
        s_lshl_b32 s{S_T2}, s{S_T1}, 10
        s_add_u32 s{S_T2}, s{S_T2}, s{S_T0}
        buffer_load_dwordx4 {vr(KM,4)}, v{BKM}, {sr(SRD_WS,4)}, s{S_T2} offen sc1
        s_lshl_b32 s{S_T2}, s{S_T1}, 3
        s_add_u32 s{S_T2}, s{S_T2}, s{S_T0}
        buffer_load_dwordx2 {vr(KR,2)}, v{BKR}, {sr(SRD_WS,4)}, s{S_T2} offen sc1
        s_mul_i32 s{S_T2}, s{S_T1}, {2*VSUB}
        s_add_u32 s{S_T2}, s{S_T2}, s{S_T0}
        buffer_load_dwordx4 {vr(VF,4)}, v{BV}, {sr(SRD_WS,4)}, s{S_T2} offen sc1
        buffer_load_dwordx4 {vr(VF+4,4)}, v{BV}, {sr(SRD_WS,4)}, s{S_T2} offen offset:{VSUB} sc1
        s_waitcnt vmcnt(0)
        v_mfma_f32_32x32x4_2b_bf16 {vr(s0,32)}, {vr(KR,2)}, {vr(QR,2)}, 0
        """)
        a.nop(20)
        a(f"v_mfma_f32_32x32x16_bf16 {vr(s0,16)}, {vr(KM,4)}, {vr(QM,4)}, {vr(s0,16)}")
        a(f"v_mfma_f32_32x32x16_bf16 {vr(s0+16,16)}, {vr(KM,4)}, {vr(QM+4,4)}, {vr(s0+16,16)}")
        a.nop(14)
        if ps == 0:
            for blk, m in enumerate((M0, M1)):
                for i in range(0, 16, 2): a(f"v_max3_f32 v{m}, v{m}, v{s0+16*blk+i}, v{s0+16*blk+i+1}")
        else:
            for i in range(32): a(f"v_sub_f32 v{s0+i}, v{s0+i}, v{M0 if i < 16 else M1}")
            for i in range(32): a(f"v_exp_f32 v{s0+i}, v{s0+i}")
            a.nop(2)
            for i in range(4):
                a(f"v_smfmac_f32_32x32x32_bf16 {vr(OA+16*(i//2),16)}, {vr(VF+4*(i%2),4)}, {vr(s0+8*i,8)}, v{IDX}")
            a.nop(14)
        a(f"s_add_u32 s{S_CNT}, s{S_CNT}, 1\ns_cmp_lt_u32 s{S_CNT}, 64\ns_cbranch_scc1 L_slow_{ps}")
        if ps == 0:
            for m in (M0, M1):
                a(f"v_mov_b32 v{GK}, v{m}\ns_nop 1\nv_permlane32_swap_b32 v{GK}, v{m}\nv_max_f32 v{m}, v{m}, v{GK}")
    a("s_branch L_att_norm")

OACC = 8
OF = OACC + 20
WB = OF + 72
WBUF = (WB, WB + 20, WB + 40)
AM, AM8, AM15, AR, AR3 = range(WB + 60, WB + 65)
P3_END = AR3 + 1
S_TT, S_TOK = S_GRP, S_TB

def phase3(a):
    a(f"""
    s_and_b32 s{S_TT}, s{S_W}, 3
    s_lshr_b32 s{S_B}, s{S_W}, 2
    s_and_b32 s{S_T0}, s2, 7
    s_lshl_b32 s{S_T0}, s{S_T0}, 2
    s_bfe_u32 s{S_T1}, s2, 0x20003
    s_add_u32 s{S_T0}, s{S_T0}, s{S_T1}
    s_lshl_b32 s{S_T0}, s{S_T0}, 2
    s_add_u32 s{S_TOK}, s{S_T0}, s{S_TT}
    v_lshrrev_b32 v2, 4, v1
    v_bfe_u32 v3, v1, 2, 2
    v_and_b32 v4, 3, v1
    v_lshlrev_b32 v4, 3, v4
    s_mul_i32 s{S_T0}, s{S_B}, {576*144}
    v_and_b32 v5, 1, v2
    v_lshl_add_u32 v5, v5, 2, v3
    v_mul_u32_u24 v5, 288, v5
    v_add_u32 v5, v5, v4
    v_lshrrev_b32 v6, 1, v2
    v_mul_u32_u24 v7, 2592, v6
    v_add3_u32 v{AM}, v5, v7, s{S_T0}
    v_add_u32 v{AM8}, {8*5184}, v{AM}
    v_add_u32 v{AM15}, {15*5184}, v{AM}
    v_and_b32 v6, s{S_B}, v6
    v_cmp_eq_u32 vcc, 1, v6
    v_mul_u32_u24 v7, 5184, v2
    v_lshrrev_b32 v6, 1, v3
    v_cndmask_b32 v{AM15}, v{AM15}, v5, vcc
    v_and_b32 v5, 1, v3
    v_add_u32 v5, 16, v5
    v_mul_u32_u24 v5, 144, v5
    v_add_u32 v5, v5, v4
    v_mul_u32_u24 v4, 2592, v6
    v_add3_u32 v7, v7, v4, v5
    v_add_u32 v{AR}, s{S_T0}, v7
    v_add_u32 v{AR3}, {12*5184}, v{AR}
    v_lshrrev_b32 v4, 3, v1
    v_lshl_add_u32 v4, s{S_B}, 3, v4
    v_cmp_eq_u32 vcc, 15, v4
    v_lshlrev_b32 v2, 4, v1
    v_lshrrev_b32 v3, 4, v1
    v_cndmask_b32 v{AR3}, v{AR3}, v5, vcc
    v_lshlrev_b32 v3, 14, v3
    v_and_b32 v4, 15, v1
    v_lshl_add_u32 v3, v4, 3, v3
    s_lshl_b32 s{S_X0}, s{S_TOK}, 15
    s_lshl_b32 s{S_T0}, s{S_B}, 14
    s_add_u32 s{S_X0}, s{S_X0}, s{S_T0}
    s_add_u32 s{S_X0}, s{S_X0}, {WS_OM}
    s_lshl_b32 s{S_X1}, s{S_B}, 18
    s_lshl_b32 s{S_T0}, s{S_TOK}, 7
    s_add_u32 s{S_X1}, s{S_X1}, s{S_T0}
    s_add_u32 s{S_X1}, s{S_X1}, {WS_OR}
    """)
    steps = [16] + list(range(16)) + [17]
    def wreads(k):
        st = steps[k]; wb = WBUF[k % 3]; L = []
        for t in range(5):
            g = []
            for i in range(2):
                if st < 8: ad, off = AM, 5184 * st + 144 * i
                elif st < 15: ad, off = AM8, 5184 * (st - 8) + 144 * i
                elif st == 15: ad, off = AM15, 144 * i
                elif (st, i) == (17, 1): ad, off = AR3, 0
                else: ad, off = AR, 5184 * (8 * (st - 16) + 4 * i)
                g.append(f"ds_read_b64_tr_b16 {vr(wb+4*t+2*i,2)}, v{ad} offset:{off+32*t}")
            L.append(g)
        return L
    a("s_waitcnt vmcnt(0) lgkmcnt(0)\ns_barrier")
    stamp(a, 9)
    a("s_barrier")
    stamp(a, 10)
    nload = []
    for k, st in enumerate(steps):
        if st < 16:
            if st and st % 4 == 0: a(f"s_add_u32 s{S_X0}, s{S_X0}, 4096")
            a(f"buffer_load_dwordx4 {vr(OF+4*k,4)}, v2, {sr(SRD_WS,4)}, s{S_X0} offen offset:{1024*(st%4)} sc1")
            nload.append(1)
        else:
            for i in range(2):
                a(f"buffer_load_dwordx2 {vr(OF+4*k+2*i,2)}, v3, {sr(SRD_WS,4)}, s{S_X1} offen sc1")
                a(f"s_add_u32 s{S_X1}, s{S_X1}, 0x10000")
            nload.append(2)
    for k in range(2):
        for g in wreads(k):
            for x in g: a(x)
    a(f"""
    v_lshlrev_b32 v2, 4, v1
    s_mul_i32 s{S_T0}, s{S_TT}, 5120
    v_add_u32 v2, s{S_T0}, v2
    v_and_b32 v3, 15, v1
    s_lshl_b32 s{S_T0}, s{S_TOK}, 4
    v_add_u32 v3, s{S_T0}, v3
    v_mul_u32_u24 v3, 1152, v3
    v_add_u32 v3, s{S_C0}, v3
    v_lshrrev_b32 v4, 4, v1
    v_lshl_add_u32 v5, v4, 3, v3
    v_and_b32 v6, 1, v4
    v_lshl_add_u32 v3, v6, 5, v3
    v_lshrrev_b32 v4, 1, v4
    v_lshl_add_u32 v3, v4, 4, v3
    s_waitcnt lgkmcnt(0)
    s_barrier
    """)
    for k in range(18):
        if k == 14: a("s_barrier")
        groups = wreads(k + 2) if k + 2 < 18 else []
        lg = 10 if 1 <= k < 17 else 0
        a(f"s_waitcnt vmcnt({sum(nload[k+1:])}) lgkmcnt({lg})")
        wb = WBUF[k % 3]
        for t in range(5):
            c = vr(OACC + 4 * t, 4)
            a(f"v_mfma_f32_16x16x32_bf16 {c}, {vr(wb+4*t,4)}, {vr(OF+4*k,4)}, {'0' if k == 0 else c}")
            if t < len(groups):
                for y in groups[t]: a(y)
    stamp(a, 11)
    T = OF
    a(f"s_barrier\ns_cmp_eq_u32 s{S_B}, 0\ns_cbranch_scc0 L_p3_b")
    def fin(tiles, give, off):
        a.nop(4)
        for t in give: a(f"ds_write_b128 v2, {vr(OACC+4*t,4)} offset:{1024*t}")
        a("s_waitcnt lgkmcnt(0)\ns_barrier")
        for k, t in enumerate(tiles): a(f"ds_read_b128 {vr(T+4*k,4)}, v2 offset:{1024*t}")
        for k, t in enumerate(tiles):
            a(f"s_waitcnt lgkmcnt({len(tiles)-1-k})")
            for e in range(4): a(f"v_add_f32 v{OACC+4*t+e}, v{OACC+4*t+e}, v{T+4*k+e}")
        d = T + 12
        t0, t1 = tiles[0], tiles[1]
        a(f"""
        v_cvt_pk_bf16_f32 v{d}, v{OACC+4*t0}, v{OACC+4*t0+1}
        v_cvt_pk_bf16_f32 v{d+1}, v{OACC+4*t0+2}, v{OACC+4*t0+3}
        v_cvt_pk_bf16_f32 v{d+2}, v{OACC+4*t1}, v{OACC+4*t1+1}
        v_cvt_pk_bf16_f32 v{d+3}, v{OACC+4*t1+2}, v{OACC+4*t1+3}
        s_nop 1
        v_permlane16_swap_b32 v{d}, v{d+2}
        v_permlane16_swap_b32 v{d+1}, v{d+3}
        buffer_store_dwordx4 {vr(d,4)}, v3, {sr(SRD_O,4)}, 0 offen offset:{off}
        """)
        if len(tiles) == 3:
            t2 = tiles[2]
            a(f"""
            v_cvt_pk_bf16_f32 v{d+4}, v{OACC+4*t2}, v{OACC+4*t2+1}
            v_cvt_pk_bf16_f32 v{d+5}, v{OACC+4*t2+2}, v{OACC+4*t2+3}
            s_mov_b32 exec_hi, 0
            buffer_store_dwordx2 {vr(d+4,2)}, v5, {sr(SRD_O,4)}, 0 offen offset:128
            """)
        if PROF: a("s_waitcnt vmcnt(0)")
        stamp(a, 12); stamp(a, 17, True); stamp_out(a)
        a("s_endpgm")
    fin((0, 1, 4), (2, 3), 0)
    a.label("L_p3_b")
    fin((2, 3), (0, 1, 4), 64)

WPIECE = 864
def loader(a):
    AD0, AD1, AX0, AX1, LA, DW, FA, FL, Z = range(8, 17)
    BUF = 24
    sWS, sXS, sWO, sXO = (64, 65, 66), (33, 34, 35), 36, 37
    sM, sS, sN = 38, 40, 41
    a("s_setprio 3")
    def wsrc(dst, hi):
        a(f"""
        v_lshlrev_b32 v4, 1, v2
        v_or_b32 v4, {8*hi}, v4
        v_xor_b32 v4, v4, v3
        v_min_u32 v4, 14, v4
        v_mul_u32_u24 v5, 52, v4
        v_lshrrev_b32 v5, 8, v5
        v_lshlrev_b32 v4, 4, v4
        v_mul_u32_u24 v6, 1072, v5
        v_add_u32 v4, v4, v6
        v_and_b32 v5, 2, v5
        v_lshlrev_b32 v5, 2, v5
        v_sub_u32 v4, v4, v5
        v_mul_u32_u24 v5, 3456, v2
        v_add_u32 v{dst}, v4, v5
        """)
    wsrc(AD0, 0); wsrc(AD1, 1)
    a(f"""
    v_lshrrev_b32 v4, 3, v1
    v_mul_u32_u24 v4, 1152, v4
    v_and_b32 v5, 7, v1
    v_xor_b32 v5, v5, v2
    v_lshl_add_u32 v{AX0}, v5, 4, v4
    v_xor_b32 v5, 4, v5
    v_lshl_add_u32 v4, v5, 4, v4
    v_add_u32 v{AX1}, {8*1152}, v4
    v_lshlrev_b32 v{LA}, 4, v1
    s_mul_i32 s{sWO}, s{S_P}, 72
    s_mul_i32 s{sXO}, s{S_TB}, {256*1152}
    s_mov_b32 m0, {GATE_LDS}
    s_waitcnt lgkmcnt(0)
    s_cmp_eq_u32 s{S_B}, 0
    s_cselect_b32 s{S_PTR+2}, s{S_PTR+2}, s{S_PTR+8}
    s_cselect_b32 s{S_PTR+3}, s{S_PTR+3}, s{S_PTR+9}
    """)
    srd(a, SRD_W, S_PTR + 2, 576 * 3456)
    srd(a, SRD_X, S_PTR, 2048 * 1152)
    srd(a, SRD_G, S_PTR + 12, 1152)
    a(f"buffer_load_dwordx4 v{LA}, {sr(SRD_G,4)}, 0 offen lds")
    a(f"buffer_load_dwordx4 v{LA}, {sr(SRD_G,4)}, 0 offen offset:1024 lds")
    for i in range(3): a(f"s_mov_b32 s{sWS[i]}, {WST[i]}\ns_mov_b32 s{sXS[i]}, {XST[i]}")
    srd(a, SRD_WS, S_DBG + 2, WS_END)
    srd(a, SRD_O, S_DBG, 256)
    a(f"v_mov_b32 v{Z}, 0\nv_lshlrev_b32 v{FA}, 2, v1\ns_mov_b32 s{sN}, 0")
    a(f"s_cmp_eq_u32 s2, 0\ns_cselect_b32 s{S_T3}, 2, 15")
    DW_ = int(OPT.get("dw", 4))
    npc = (0 if OPT.get("now") else 2) + (0 if OPT.get("nox") else 4)
    def part(w0, w1):
        for w in range(w0, w1):
            a("s_waitcnt vmcnt(57)")
            for h in range(0 if OPT.get("now") else 2):
                a(f"""
                s_add_u32 m0, s{sWS[0]}, {h*8192 + w*1024}
                s_add_u32 s{S_T0}, s{sWO}, {(32*h + 4*w)*3456}
                buffer_load_dwordx4 v{AD0 + ((w >> 1) & 1)}, {sr(SRD_W,4)}, s{S_T0} offen lds
                """)
            for u in range(0 if OPT.get("nox") else 4):
                a(f"""
                s_add_u32 m0, s{sXS[0]}, {w*4096 + u*1024}
                s_add_u32 s{S_T0}, s{sXO}, {(32*w + 16*(u >> 1))*1152}
                buffer_load_dwordx4 v{AX0 + (u & 1)}, {sr(SRD_X,4)}, s{S_T0} offen lds
                """)
    a.label("L_ld_pair")
    part(0, DW_)
    a(f"s_cmp_eq_u32 s{sN}, 0\ns_cbranch_scc1 L_ld_first\ns_waitcnt vmcnt({npc*DW_})\ns_barrier")
    a(f"s_cmp_eq_u32 s{sN}, s{S_T3}\ns_cbranch_scc1 L_ld_ready")
    a.label("L_ld_second")
    part(DW_, 8)
    for r in (sWS, sXS):
        a(f"s_mov_b32 s{S_T0}, s{r[0]}\ns_mov_b32 s{r[0]}, s{r[1]}\ns_mov_b32 s{r[1]}, s{r[2]}\ns_mov_b32 s{r[2]}, s{S_T0}")
    a(f"""
    s_add_u32 s{sWO}, s{sWO}, {64*3456}
    s_add_u32 s{sXO}, s{sXO}, 128
    s_add_u32 s{sN}, s{sN}, 1
    s_cmp_lt_u32 s{sN}, 9
    s_cbranch_scc1 L_ld_pair
    s_waitcnt vmcnt(0)
    s_barrier
    """)
    rdy = f"buffer_load_dword v{FL}, v{Z}, {sr(SRD_O,4)}, 0 offen sc1"
    a(f"""
    s_mov_b64 exec, 1
    {rdy}
    s_lshl_b32 s{S_KVB}, s{S_GRP}, 3
    s_add_u32 s{sS}, s{S_KVB}, s{S_TB}
    s_mul_i32 s{sS}, s{sS}, {SLOT}
    s_mul_i32 s{S_KVB}, s{S_KVB}, {SLOT}
    s_lshl_b32 s{S_X1}, s{S_GRP}, 7
    s_add_u32 s{S_X1}, s{S_X1}, {WS_F1}
    s_lshl_b32 s{S_X0}, s{S_TB}, 2
    s_add_u32 s{S_X0}, s{S_X0}, s{S_X1}
    """)
    spin(a, "rdy", rdy, FL)
    a(f"""
    s_mov_b64 exec, -1
    v_mul_u32_u24 v2, 57, v1
    v_lshrrev_b32 v2, 9, v2
    v_mul_u32_u24 v2, {1152 - 144}, v2
    v_lshl_add_u32 v2, v1, 4, v2
    s_lshr_b32 s{S_C0}, s2, 5
    s_mul_i32 s{S_C0}, s{S_C0}, 144
    v_add_u32 v{DW}, s{S_C0}, v2
    s_barrier
    """)
    rd = lambda i: a(f"ds_read_b128 {vr(BUF+4*(i%24),4)}, v{LA} offset:{1024*i}")
    for i in range(12): rd(i)
    for i in range(40):
        if i + 12 < 40: rd(i + 12)
        a(f"s_waitcnt lgkmcnt({min(12, 39 - i)})")
        a(f"buffer_store_dwordx4 {vr(BUF+4*(i%24),4)}, v{LA}, {sr(SRD_WS,4)}, s{sS} offen offset:{1024*(i%4)} sc1")
        if i % 4 == 3: a(f"s_add_u32 s{sS}, s{sS}, 4096")
    def flag(soff):
        a(f"v_mov_b32 v{FL}, 1\ns_mov_b64 exec, 1\nbuffer_store_dword v{FL}, v{Z}, {sr(SRD_WS,4)}, s{soff} offen sc1")
    a("s_waitcnt vmcnt(0)")
    flag(S_X0); stamp(a, 5)
    ld1 = f"buffer_load_dword v{FL}, v{FA}, {sr(SRD_WS,4)}, s{S_X1} offen sc1"
    a(f"s_mov_b64 exec, 0xff\n{ld1}")
    spin(a, "kv", ld1, FL)
    a("s_mov_b64 exec, -1"); stamp(a, 6)
    def kv_setup(c):
        a(f"""
        s_add_u32 s{S_T0}, s{S_TB}, {c}
        s_and_b32 s{S_T0}, s{S_T0}, 7
        s_mul_i32 s{S_T0}, s{S_T0}, {SLOT}
        s_add_u32 s{sS}, s{S_T0}, s{S_KVB}
        s_mov_b32 s{sM}, {(c % 4) * SLOT}
        """)
    def kv_pieces(n):
        lab = a.uid("L_kv")
        a(f"s_mov_b32 s{sN}, {n // 4}")
        a.label(lab)
        a(f"s_waitcnt vmcnt(59)\ns_mov_b32 m0, s{sM}\ns_add_u32 s{sM}, s{sM}, 4096")
        for i in range(4): a(f"buffer_load_dwordx4 v{LA}, {sr(SRD_WS,4)}, s{sS} offen offset:{1024*i} sc1 lds")
        a(f"s_add_u32 s{sS}, s{sS}, 4096\ns_sub_u32 s{sN}, s{sN}, 1\ns_cbranch_scc0 {lab}".replace("s_cbranch_scc0", f"s_cmp_lg_u32 s{sN}, 0\ns_cbranch_scc1"))
    kv_setup(1); kv_pieces(40)
    kv_setup(2); kv_pieces(20)
    a("s_waitcnt vmcnt(20)\ns_barrier")
    kv_pieces(20)
    for c in range(3, int(OPT.get('nch', 8))):
        kv_setup(c); kv_pieces(40)
        a("s_waitcnt vmcnt(40)\ns_barrier")
    def wo(b, n0, n1, dst=None):
        lab = a.uid("L_wo")
        p = S_PTR + 4 + 6 * b
        a(f"""
        s_mov_b32 s{SRD_G}, s{p}
        s_and_b32 s{SRD_G+1}, s{p+1}, 0xffff
        s_mov_b32 s{SRD_G+2}, {576*1152}
        s_mov_b32 s{sS}, {n0*6*1152}
        s_mov_b32 s{sM}, {(96*b + n0)*WPIECE if dst is None else dst}
        """)
        a.label(lab)
        a(f"""
        s_waitcnt vmcnt(60)
        s_mov_b32 m0, s{sM}
        s_add_u32 s{sM}, s{sM}, {WPIECE}
        buffer_load_dwordx4 v{DW}, {sr(SRD_G,4)}, s{sS} offen lds
        s_add_u32 s{sS}, s{sS}, {6*1152}
        s_cmp_lt_u32 s{sS}, {n1*6*1152}
        s_cbranch_scc1 {lab}
        """)
    a("s_mov_b32 exec_hi, 0x3fffff")
    wo(0, 0, 47)
    a("s_waitcnt vmcnt(47)\ns_barrier")
    wo(0, 47, 94)
    a("s_barrier")
    wo(0, 94, 96); wo(1, 0, 46)
    a(f"""
    s_lshl_b32 s{S_X0}, s{S_TB}, 7
    s_lshl_b32 s{S_T0}, s{S_GRP}, 2
    s_add_u32 s{S_X0}, s{S_X0}, s{S_T0}
    s_add_u32 s{S_X0}, s{S_X0}, {WS_F2}
    s_and_b32 s{S_X1}, s2, 7
    s_lshl_b32 s{S_X1}, s{S_X1}, 7
    s_add_u32 s{S_X1}, s{S_X1}, {WS_F2}
    s_barrier
    """)
    flag(S_X0); stamp(a, 9)
    a("s_mov_b32 exec_lo, -1\ns_mov_b32 exec_hi, 0x3fffff")
    wo(1, 46, 93)
    ld2 = f"buffer_load_dword v{FL}, v{FA}, {sr(SRD_WS,4)}, s{S_X1} offen sc1"
    a(f"s_mov_b32 exec_hi, 0\n{ld2}")
    spin(a, "o", ld2, FL)
    stamp(a, 10)
    a("s_barrier\ns_mov_b32 exec_hi, 0x3fffff\ns_barrier")
    wo(1, 93, 96, dst=0)
    a("s_waitcnt vmcnt(0)\ns_barrier")
    stamp_out(a)
    a("s_endpgm")
    a.label("L_ld_first")
    a(f"""
    s_waitcnt vmcnt(56)
    s_cmp_lg_u32 s2, 0
    s_cbranch_scc1 L_ld_second
    v_mov_b32 v{BUF}, 0
    v_mov_b32 v{BUF+1}, 0
    v_mov_b32 v{BUF+2}, 0
    v_mov_b32 v{BUF+3}, 0
    s_mov_b32 s{S_T0}, {WS_F1}
    """)
    for i in range(4): a(f"buffer_store_dwordx4 {vr(BUF,4)}, v{LA}, {sr(SRD_WS,4)}, s{S_T0} offen offset:{1024*i} sc1")
    a(f"""
    s_mov_b32 s{S_T0}, {WS_F2}
    buffer_store_dwordx4 {vr(BUF,4)}, v{LA}, {sr(SRD_WS,4)}, s{S_T0} offen sc1
    s_branch L_ld_second
    """)
    a.label("L_ld_ready")
    a(f"""
    v_mov_b32 v{FL}, 1
    s_mov_b64 exec, 1
    buffer_store_dword v{FL}, v{Z}, {sr(SRD_O,4)}, 0 offen sc1
    s_mov_b64 exec, -1
    s_branch L_ld_second
    """)

def build():
    a = Asm()
    a("s_cmp_ge_u32 s2, 256\ns_cbranch_scc1 L_exit")
    stamp(a, 0); stamp(a, 16, True)
    entry(a)
    a.late = True
    loader(a)
    a.late = False
    a.label("L_compute")
    phase1(a); stamp(a, 4); a.late = True
    att_setup(a)
    stamp(a, 7); stamp(a, 18, True)
    if OPT.get("align"): a(".p2align 6")
    a.label("L_att_loop")
    att_chunk(a)
    a(f"s_add_u32 s{S_CH}, s{S_CH}, 1\ns_cmp_lt_u32 s{S_CH}, {int(OPT.get('nch', 8))}\ns_cbranch_scc1 L_att_loop")
    stamp(a, 8); stamp(a, 19, True)
    att_finish(a); phase3(a)
    att_slow(a)
    a.label("L_exit"); a("s_endpgm")
    return a, max(P1_END, P2_END, P3_END)

def emit(path):
    a, nv = build()
    label = NAME + "_kernel"
    nv4 = (nv + 3) // 4 * 4
    s = open(f"cdna_kernels/{NAME}.s.ref").read().split("; Override launch")[0]
    s += "; @launch grid=(256,1,1) block=(576,1,1) lds=163840\n"
    s += f""".amdgcn_target "amdgcn-amd-amdhsa--gfx950"
.text
.globl {label}
.p2align 8
.type {label},@function
{label}:
{a.text()}.section .rodata,"a"
.p2align 6
.amdhsa_kernel {label}
  .amdhsa_next_free_vgpr {nv4}
  .amdhsa_next_free_sgpr {102 if PROF else 72}
  .amdhsa_accum_offset {nv4}
  .amdhsa_group_segment_fixed_size 0
  .amdhsa_kernarg_size 80
  .amdhsa_user_sgpr_count 2
  .amdhsa_user_sgpr_kernarg_segment_ptr 1
  .amdhsa_system_sgpr_workgroup_id_x 1
.end_amdhsa_kernel
"""
    errs = check_hazards(a.lines) + check_waits(a.lines)
    for e in errs: print(e)
    open(path, "w").write(s)
    print("wrote", path, "checks", "FAILED" if errs else "OK", len(a.lines), "lines", nv, "vgprs")

if __name__ == "__main__":
    for x in list(sys.argv):
        if x.startswith("-O"):
            k, v = (x[2:].split("=") + ["1"])[:2]; OPT[k] = v.replace("_", " "); sys.argv.remove(x)
    if "--prof" in sys.argv: PROF = True; sys.argv.remove("--prof")
    emit(sys.argv[1] if len(sys.argv) > 1 else f"cdna_kernels/{NAME}.s")
```

```python
import sys, math, struct
from asmlib import Asm, vr, sr, check_hazards, check_waits

NAME = "gated_mix__softmax_full_mha__softmax_full_mha__prompt"
def f32(x): return struct.unpack("<I", struct.pack("<f", x))[0]

VSUB = 640
VOFF, KROFF = 2048, 2048 + 4 * VSUB
PB = KROFF + 512
HS = 4 * PB
SLOT = 2 * HS
QIMG = 3 * SLOT
WST = (8192, 24576, 40960)
XST = (90112, 122880, 57344)
GATE_LDS = 155648
WS_KV = 0
WS_OM = 256 * SLOT
WS_OR = WS_OM + 128 * 32 * 1024
WS_F1 = WS_OR + 32 * 2048 * 8
WS_F2 = WS_F1 + 4096
WS_END = WS_F2 + 1024
QSCALE = math.log2(math.e) / math.sqrt(18.0)
SPIN_MAX = 1 << 18
def vpos_slot(s): return 12 + s if s < 4 else s - 4 if s < 12 else s + 4 if s < 16 else s - 7 if s < 19 else 8
def vslot_dim(d): return 8 * (d & 1) + (d >> 1) if d < 16 else d
def vpos_dim(d): return vpos_slot(vslot_dim(d))

PROF = False
OPT = {}
WS_PROF = WS_END
def stamp(a, i, cyc=False):
    if not PROF: return
    if OPT.get("g1prof") and 5 <= i <= 12 and getattr(a, "late", False): return
    a(f"{'s_memtime' if cyc else 's_memrealtime'} s[70:71]\ns_waitcnt lgkmcnt(0)\ns_mov_b32 s{72+i}, s70")
def stamp_out(a, n=24):
    if not PROF: return
    if OPT.get("dbgprof"):
        lab = a.uid("L_nodbg")
        a(f"s_lshl_b32 s70, s2, 4\ns_add_u32 s70, s70, s{S_W}\ns_cmp_lg_u32 s70, {16*int(OPT['dbgprof'])}\ns_cbranch_scc1 {lab}")
        srd(a, SRD_G, S_DBG, 256)
        a("s_mov_b64 exec, 1\nv_mov_b32 v3, 0")
        for i in range(1, 13):
            a(f"s_sub_u32 s71, s{72+i}, s72\nv_mov_b32 v2, s71\nbuffer_store_dword v2, v3, s[16:19], 0 offen offset:{4*i}")
        a(f"s_sub_u32 s71, s{72+19}, s{72+18}\nv_mov_b32 v2, s71\nbuffer_store_dword v2, v3, s[16:19], 0 offen offset:52")
        a(f"s_sub_u32 s71, s{72+17}, s{72+16}\nv_mov_b32 v2, s71\nbuffer_store_dword v2, v3, s[16:19], 0 offen offset:56")
        a.label(lab)
        return
    a(f"s_getreg_b32 s94, hwreg(HW_REG_HW_ID)\ns_getreg_b32 s95, hwreg(HW_REG_XCC_ID)")
    a(f"s_lshl_b32 s70, s2, 4\ns_add_u32 s70, s70, s{S_W}\ns_lshl_b32 s70, s70, 7\ns_add_u32 s70, s70, {WS_PROF}")
    a("s_mov_b64 exec, 1\ns_mov_b32 s14, 0x10000000\nv_mov_b32 v3, 0")
    for i in range(n):
        a(f"v_mov_b32 v2, s{72+i}\nbuffer_store_dword v2, v3, s[12:15], s70 offen offset:{4*i}")

SRD_X, SRD_W, SRD_WS, SRD_G, SRD_O = 4, 8, 12, 16, 20
S_W, S_TB, S_GRP, S_B, S_P = 24, 25, 26, 27, 28
S_T0, S_T1, S_T2, S_T3 = 29, 30, 31, 32
S_X0, S_X1, S_WOFF, S_QS = 33, 34, 35, 36
S_CH, S_M0, S_KVB, S_SOFF, S_CNT = 37, 38, 39, 40, 41
S_EX = 42
S_PTR = 44
S_DBG = 60
S_MSTEP, S_SSTEP, S_NSL, S_C0 = 64, 65, 66, 67
S_OK = 68

def srd(a, d, ptr, size):
    a(f"s_mov_b32 s{d}, s{ptr}\ns_and_b32 s{d+1}, s{ptr+1}, 0xffff\ns_mov_b32 s{d+2}, {size}\ns_mov_b32 s{d+3}, 0x00020000")

def spin(a, tag, load, reg):
    a(f"s_mov_b32 s{S_CNT}, {SPIN_MAX}")
    a.label(f"L_spin_{tag}")
    a(f"""
    s_waitcnt vmcnt(0)
    v_cmp_eq_u32 vcc, 0, v{reg}
    s_cbranch_vccz L_got_{tag}
    s_sleep 2
    {load}
    s_sub_u32 s{S_CNT}, s{S_CNT}, 1
    s_cmp_lg_u32 s{S_CNT}, 0
    s_cbranch_scc1 L_spin_{tag}
    s_waitcnt vmcnt(0)
    """)
    a.label(f"L_got_{tag}")

ACC = 8
WF = ACC + 56
XF = WF + 56
AW = XF + 16
AG, AXR = AW + 7, AW + 8
EKM, EVA, EVB, EMID, EONE, EKC, ESC = range(AW + 12, AW + 19)
PF = ESC + 1
P1_END = PF + 5
T_QA, T_QB, T_KA, T_KB, T_VA, T_VB, T_MID = range(7)
acc = lambda n, tt: ACC + (2 * n + tt) * 4

def p1_reads(ks):
    wf = WF + 28 * (ks % 2); xf = XF + 8 * (ks % 2)
    st = (ks // 2) % 3
    off = WST[st] - WST[0] + (ks % 2) * 8192
    xa, xo = (AXR + 2, 0) if st == 1 else (AXR, XST[st] - XST[2])
    L = [[f"ds_read_b128 {vr(xf+4*tt,4)}, v{xa+ks%2} offset:{xo + tt*2048}" for tt in range(2)]]
    for n in (T_QA, T_QB, T_KA, T_KB, T_VA, T_VB, T_MID):
        g = [f"ds_read_b64_tr_b16 {vr(wf+4*n,2)}, v{AW+n} offset:{off}",
             f"ds_read_b64_tr_b16 {vr(wf+4*n+2,2)}, v{AW+n} offset:{off+1024}"]
        if n == T_MID:
            g += [f"s_mov_b64 exec, {sr(S_EX,2)}",
                  f"ds_read_b128 {vr(wf+4*n,4)}, v{AG} offset:{64*ks}",
                  "s_mov_b64 exec, -1"]
        L.append(g)
    return L

def byte_table(a, dst, idx, table):
    w = [sum(table[4*i+k] << (8*k) for k in range(4)) for i in range(len(table) // 4)]
    a(f"v_and_b32 v{dst}, 7, v{idx}\nv_or_b32 v{dst}, 0x0c0c0c00, v{dst}")
    a(f"s_mov_b32 s{S_CNT}, {hex(w[1])}\nv_mov_b32 v{ACC+4}, {hex(w[0])}")
    if len(w) == 2:
        a(f"v_perm_b32 v{dst}, s{S_CNT}, v{ACC+4}, v{dst}"); return
    a(f"v_perm_b32 v{ACC+5}, s{S_CNT}, v{ACC+4}, v{dst}")
    a(f"s_mov_b32 s{S_CNT}, {hex(w[3])}\nv_mov_b32 v{ACC+4}, {hex(w[2])}\nv_cmp_gt_u32 vcc, 8, v{idx}")
    a(f"v_perm_b32 v{dst}, s{S_CNT}, v{ACC+4}, v{dst}\ns_nop 0\nv_cndmask_b32 v{dst}, v{dst}, v{ACC+5}, vcc")

MAP = {
 "4": f"""s_and_b32 s{S_T0}, s2, 7
    s_lshl_b32 s{S_T0}, s{S_T0}, 2
    s_bfe_u32 s{S_T1}, s2, 0x20003
    s_or_b32 s{S_GRP}, s{S_T0}, s{S_T1}
    s_lshr_b32 s{S_TB}, s2, 5""",
 "8": f"""s_bfe_u32 s{S_T0}, s2, 0x20001
    s_lshl_b32 s{S_T0}, s{S_T0}, 3
    s_bfe_u32 s{S_T1}, s2, 0x30003
    s_or_b32 s{S_GRP}, s{S_T0}, s{S_T1}
    s_and_b32 s{S_T0}, s2, 1
    s_lshl_b32 s{S_T0}, s{S_T0}, 2
    s_lshr_b32 s{S_TB}, s2, 6
    s_or_b32 s{S_TB}, s{S_TB}, s{S_T0}""",
}
def entry(a):
    a(f"""
    s_load_dwordx16 {sr(S_PTR,16)}, s[0:1], 0
    s_load_dwordx4 {sr(S_DBG,4)}, s[0:1], 64
    v_readfirstlane_b32 s{S_W}, v0
    v_and_b32 v1, 63, v0
    {MAP[OPT.get("map", "4")]}
    s_lshr_b32 s{S_B}, s{S_GRP}, 4
    s_and_b32 s{S_P}, s{S_GRP}, 15
    s_lshr_b32 s{S_W}, s{S_W}, 6
    v_lshrrev_b32 v2, 4, v1
    v_and_b32 v3, 15, v1
    """)
    if OPT.get("delay"):
        prefetch(a)
        srd(a, SRD_W, S_PTR + 4, 576 * 1152); srd(a, SRD_G, S_PTR + 10, 576 * 1152); srd(a, SRD_WS, S_DBG + 2, WS_END); srd(a, SRD_O, S_PTR + 14, 2048 * 1152)
        a(f"""
        buffer_load_dword v{PF}, v4, {sr(SRD_W,4)}, 0 offen
        buffer_load_dword v{PF+1}, v4, {sr(SRD_G,4)}, 0 offen
        buffer_load_dword v{PF+2}, v4, {sr(SRD_O,4)}, 0 offen
        s_getpc_b64 s[4:5]
        s_and_b32 s5, s5, 0xffff
        s_mov_b32 s6, 0x6000
        s_mov_b32 s7, 0x00020000
        v_lshlrev_b32 v5, 7, v1
        s_lshl_b32 s{S_T0}, s{S_W}, 13
        buffer_load_dword v{PF+3}, v5, s[4:7], s{S_T0} offen
        v_lshlrev_b32 v5, 18, v1
        buffer_load_dword v{PF+4}, v5, {sr(SRD_WS,4)}, 0 offen
        s_memrealtime s[70:71]
        s_waitcnt lgkmcnt(0)
        s_add_u32 s72, s70, {int(OPT['delay'])}
        """)
        a.label("L_delay")
        a("s_sleep 4\ns_memrealtime s[70:71]\ns_waitcnt lgkmcnt(0)\ns_sub_u32 s71, s72, s70\ns_cmp_gt_i32 s71, 0\ns_cbranch_scc1 L_delay\ns_waitcnt vmcnt(0)")
    a(f"s_cmp_lt_u32 s{S_W}, 8\ns_cbranch_scc1 L_compute")

def prefetch(a):
    nx, nw = 2048 * 9, 576 * 27
    a(f"""
    s_lshl_b32 s{S_T0}, s2, 3
    s_add_u32 s{S_T0}, s{S_T0}, s{S_W}
    s_mul_i32 s{S_T0}, s{S_T0}, 25
    v_add_u32 v4, s{S_T0}, v1
    v_lshlrev_b32 v4, 7, v4
    v_subrev_u32 v5, {nx*128}, v4
    v_subrev_u32 v6, {(nx+nw)*128}, v4
    s_waitcnt lgkmcnt(0)
    """)
    srd(a, SRD_X, S_PTR, 2048 * 1152)
    srd(a, SRD_W, S_PTR + 2, 576 * 3456)
    srd(a, SRD_G, S_PTR + 8, 576 * 3456)
    a(f"""
    s_mov_b64 exec, 0x1ffffff
    buffer_load_dword v{PF}, v4, {sr(SRD_X,4)}, 0 offen
    buffer_load_dword v{PF+1}, v5, {sr(SRD_W,4)}, 0 offen
    buffer_load_dword v{PF+2}, v6, {sr(SRD_G,4)}, 0 offen
    s_mov_b64 exec, -1
    """)

def phase1(a):
    if not OPT.get("nopf"): prefetch(a)
    a(f"""
    s_lshl_b32 s{S_T3}, s{S_W}, 12
    s_add_u32 s{S_T3}, s{S_T3}, {XST[2]}
    v_lshrrev_b32 v4, 1, v3
    v_xor_b32 v4, v4, v2
    v_lshlrev_b32 v5, 7, v3
    v_add_u32 v5, s{S_T3}, v5
    v_lshl_add_u32 v{AXR}, v4, 4, v5
    v_xor_b32 v4, 4, v4
    v_lshl_add_u32 v{AXR+1}, v4, 4, v5
    v_add_u32 v{AXR+2}, {XST[1]-XST[2]}, v{AXR}
    v_add_u32 v{AXR+3}, {XST[1]-XST[2]}, v{AXR+1}
    v_bfe_u32 v4, v1, 2, 2
    v_and_b32 v5, 3, v1
    v_and_b32 v6, 1, v2
    v_lshlrev_b32 v6, 2, v6
    v_or_b32 v6, v6, v4
    v_lshlrev_b32 v6, 1, v6
    v_lshl_add_u32 v7, v2, 3, v4
    v_lshlrev_b32 v7, 8, v7
    v_add_u32 v7, {WST[0]}, v7
    """)
    u, t = ACC, ACC + 1
    def addr(n):
        a(f"""
        v_lshrrev_b32 v{t}, 1, v{u}
        v_xor_b32 v{t}, v{t}, v6
        v_lshl_add_u32 v{t}, v{t}, 4, v7
        v_and_b32 v{u+2}, 1, v{u}
        v_lshl_add_u32 v{AW+n}, v{u+2}, 3, v{t}
        """)
    a(f"v_lshrrev_b32 v{u}, 1, v5\nv_lshl_add_u32 v{u}, v5, 1, v{u}"); addr(T_QA)
    a(f"v_add_u32 v{u}, 1, v{u}"); addr(T_QB)
    a(f"v_add_u32 v{u}, 9, v{u}"); addr(T_KA)
    a(f"v_add_u32 v{u}, 1, v{u}"); addr(T_KB)
    a(f"v_add_u32 v{u}, 21, v5"); addr(T_VA)
    a(f"v_add_u32 v{u}, 25, v5"); addr(T_VB)
    a(f"v_lshlrev_b32 v{u}, 3, v5\ns_mov_b32 s{S_T0}, 0x1b1d0e04\nv_lshrrev_b32 v{u}, v{u}, s{S_T0}\nv_and_b32 v{u}, 0xff, v{u}"); addr(T_MID)
    a(f"v_lshlrev_b32 v{AG}, 4, v2\nv_add_u32 v{AG}, {GATE_LDS}, v{AG}")
    a(f"s_mov_b32 s{S_EX}, 0xf000f000\ns_mov_b32 s{S_EX+1}, 0xf000f000")
    byte_table(a, EVA, 3, [vpos_dim(d) for d in range(16)])
    byte_table(a, EVB, 3, [vpos_dim(16), vpos_dim(17)] + [vpos_dim(d) for d in range(14)])
    a(f"""
    s_lshr_b32 s{S_T0}, s{S_W}, 1
    s_mul_i32 s{S_T0}, s{S_T0}, {PB}
    s_and_b32 s{S_T1}, s{S_W}, 1
    v_lshrrev_b32 v4, 1, v2
    v_and_b32 v5, 1, v2
    v_mul_u32_u24 v6, {HS}, v4
    v_lshl_add_u32 v7, v5, 5, v3
    v_lshl_add_u32 v6, v7, 4, v6
    s_lshl_b32 s{S_QS}, s{S_T1}, 10
    s_add_u32 s{S_QS}, s{S_QS}, s{S_T0}
    v_add_u32 v{EKM}, s{S_QS}, v6
    s_mul_i32 s{S_QS}, s{S_T1}, {2*VSUB}
    s_add_u32 s{S_QS}, s{S_QS}, s{S_T0}
    s_add_u32 s{S_QS}, s{S_QS}, {VOFF}
    v_mul_u32_u24 v6, 320, v4
    v_lshl_add_u32 v6, v5, 3, v6
    v_add_u32 v6, s{S_QS}, v6
    v_lshl_add_u32 v{EVA}, v{EVA}, 4, v6
    v_lshl_add_u32 v{EVB}, v{EVB}, 4, v6
    v_mov_b32 v6, {HS}
    v_cmp_gt_u32 vcc, 2, v3
    v_lshrrev_b32 v4, 3, v3
    v_mul_u32_u24 v4, 320, v4
    v_cndmask_b32 v6, v6, 0, vcc
    v_add_u32 v{EVB}, v{EVB}, v6
    v_and_b32 v5, 7, v3
    v_lshl_add_u32 v4, v5, 1, v4
    s_add_u32 s{S_CNT}, s{S_QS}, {HS}
    v_add_u32 v4, s{S_CNT}, v4
    s_lshl_b32 s{S_T1}, s{S_T1}, 3
    s_add_u32 s{S_T1}, s{S_T1}, s{S_T0}
    s_add_u32 s{S_T1}, s{S_T1}, {KROFF}
    v_lshlrev_b32 v5, 4, v3
    v_add_u32 v5, s{S_T1}, v5
    v_add_u32 v6, {QIMG}, v5
    v_cmp_eq_u32 vcc, 1, v2
    v_add_u32 v7, 4, v6
    s_nop 0
    v_cndmask_b32 v6, v6, v5, vcc
    v_cmp_eq_u32 vcc, 2, v2
    v_mov_b32 v{ESC}, 1.0
    s_nop 0
    v_cndmask_b32 v6, v6, v4, vcc
    v_cmp_eq_u32 vcc, 3, v2
    v_mov_b32 v5, {hex(f32(QSCALE))}
    s_nop 0
    v_cndmask_b32 v{EMID}, v6, v7, vcc
    v_cmp_eq_u32 vcc, 0, v2
    v_bfe_u32 v4, v1, 2, 1
    v_mul_u32_u24 v4, {HS}, v4
    v_cndmask_b32 v{ESC}, v{ESC}, v5, vcc
    v_and_b32 v5, 3, v1
    v_mul_u32_u24 v5, 320, v5
    v_bfe_u32 v6, v1, 3, 1
    v_mul_u32_u24 v6, {16*(vpos_slot(18)-vpos_slot(19))}, v6
    v_add3_u32 v4, v4, v5, v6
    s_add_u32 s{S_QS}, s{S_QS}, {16*vpos_slot(19)}
    v_add_u32 v{EONE}, s{S_QS}, v4
    v_lshrrev_b32 v4, 5, v1
    v_mul_u32_u24 v4, {HS}, v4
    v_and_b32 v5, 31, v1
    v_lshl_add_u32 v4, v5, 4, v4
    s_add_u32 s{S_T1}, s{S_T1}, 4
    v_add_u32 v{EKC}, s{S_T1}, v4
    s_mov_b32 s{S_QS}, {hex(f32(QSCALE))}
    s_waitcnt lgkmcnt(0)
    """)
    srd(a, SRD_WS, S_DBG + 2, WS_END)
    srd(a, SRD_O, S_PTR + 14, 2048 * 1152)
    stamp(a, 1)
    a("s_barrier")
    stamp(a, 2)
    for g in p1_reads(0):
        for x in g: a(x)
    for ks in range(18):
        n = ks // 2
        a("s_waitcnt lgkmcnt(0)")
        if ks % 2 == 1 and n + 1 < 9:
            a("s_barrier")
            if OPT.get("g1prof"): stamp(a, 5 + n)
        groups = p1_reads(ks + 1) if ks + 1 < 18 else []
        if OPT.get("noreads"): groups = []
        if OPT.get("noxreads"): groups = groups[1:]
        wf = WF + 28 * (ks % 2); x = XF + 8 * (ks % 2)
        i = 0
        for nn in (T_QA, T_QB, T_KA, T_KB, T_VA, T_VB, T_MID):
            for tt in range(2):
                c = vr(acc(nn, tt), 4)
                cin = "0" if ks == 0 else c
                if OPT.get("nomfma") and 0 < ks < 17: pass
                elif nn in (T_VA, T_VB):
                    a(f"v_mfma_f32_16x16x32_bf16 {c}, {vr(x+4*tt,4)}, {vr(wf+4*nn,4)}, {cin}")
                else:
                    a(f"v_mfma_f32_16x16x32_bf16 {c}, {vr(wf+4*nn,4)}, {vr(x+4*tt,4)}, {cin}")
                if i < len(groups):
                    for y in groups[i]: a(y)
                i += 1
    stamp(a, 3)
    a("s_waitcnt vmcnt(0)")
    T = WF
    a(f"v_bfe_u32 v{T+16}, v1, 3, 1\ns_mov_b32 s{S_T0}, 0x3f803f80\nv_mul_lo_u32 v{T+16}, v{T+16}, s{S_T0}\nv_mov_b32 v{T+20}, 0x3f80")
    a(f"v_mov_b32 v{T+17}, v{T+16}\nv_mov_b32 v{T+18}, v{T+16}\nv_mov_b32 v{T+19}, v{T+16}")
    a(f"ds_write_b32 v{EKC}, v{T+20}")
    a(f"s_mov_b64 exec, 0xffff\nds_write_b128 v{EONE}, {vr(T+16,4)}\ns_mov_b64 exec, -1")
    a(f"v_add_u32 v{T+21}, {QIMG}, v{EKM}")
    for tt in range(2):
        t = T + 24 + 16 * tt
        for k, n in enumerate((T_KA, T_KB)):
            c = acc(n, tt)
            a(f"v_cvt_pk_bf16_f32 v{t+2*k}, v{c}, v{c+1}\nv_cvt_pk_bf16_f32 v{t+2*k+1}, v{c+2}, v{c+3}")
        a(f"ds_write_b128 v{EKM}, {vr(t,4)} offset:{256*tt}")
        for k, (n, ad) in enumerate(((T_VA, EVA), (T_VB, EVB))):
            c = acc(n, tt)
            a(f"v_cvt_pk_bf16_f32 v{t+4+2*k}, v{c}, v{c+1}\nv_cvt_pk_bf16_f32 v{t+5+2*k}, v{c+2}, v{c+3}")
            a(f"ds_write_b64 v{ad}, {vr(t+4+2*k,2)} offset:{VSUB*tt}")
        c = acc(T_MID, tt)
        for e in range(4): a(f"v_mul_f32 v{c+e}, v{ESC}, v{c+e}")
        a(f"v_cvt_pk_bf16_f32 v{t+12}, v{c}, v{c+1}\nv_cvt_pk_bf16_f32 v{t+13}, v{c+2}, v{c+3}")
        vo = [VSUB * tt + 16 * vpos_dim(14 + e) for e in range(4)]
        a(f"""
        s_mov_b32 exec_lo, 0
        s_mov_b32 exec_hi, 0xffff
        ds_write_b16 v{EMID}, v{t+12} offset:{vo[0]}
        ds_write_b16_d16_hi v{EMID}, v{t+12} offset:{vo[1]}
        ds_write_b16 v{EMID}, v{t+13} offset:{vo[2]}
        ds_write_b16_d16_hi v{EMID}, v{t+13} offset:{vo[3]}
        s_mov_b32 exec_hi, 0xffff0000
        v_mov_b32 v{t+12}, v{c}
        v_mov_b32 v{t+13}, v{c}
        s_mov_b32 exec_lo, -1
        ds_write_b32 v{EMID}, v{t+12} offset:{256*tt}
        ds_write_b32 v{EMID}, v{t+13} offset:{256*tt+HS}
        s_mov_b64 exec, -1
        """)
        for k, n in enumerate((T_QA, T_QB)):
            c = acc(n, tt)
            for e in range(4): a(f"v_mul_f32 v{c+e}, s{S_QS}, v{c+e}")
            a(f"v_cvt_pk_bf16_f32 v{t+8+2*k}, v{c}, v{c+1}\nv_cvt_pk_bf16_f32 v{t+9+2*k}, v{c+2}, v{c+3}")
        a(f"ds_write_b128 v{T+21}, {vr(t+8,4)} offset:{256*tt}")
    a("s_waitcnt lgkmcnt(0)\ns_barrier")

SB = (8, 40); OA = 72; QM = 104; QR = 112; KM = 116; KR = 120; VF = 124
IDX, BKM, BKR, BV, AKM, AKR, AV, VG = range(132, 140)
TMP = 140
P2_END = TMP + 20
ORDER = "E3 s3p lv1 E3 2b lkr E8 w0 s0 E4 s1 E4 m0 E4 s2 lv0 E3 m1 lkm E3"

def att_ops(t):
    par = t % 2
    cur, nxt = SB[par], SB[1 - par]
    pb = lambda x: ((x % 8) // 2) * PB
    return cur, {
     "2b": f"v_mfma_f32_32x32x4_2b_bf16 {vr(nxt,32)}, {vr(KR+2*(1-par),2)}, {vr(QR,2)}, 0",
     "m0": f"v_mfma_f32_32x32x16_bf16 {vr(nxt,16)}, {vr(KM,4)}, {vr(QM,4)}, {vr(nxt,16)}",
     "m1": f"v_mfma_f32_32x32x16_bf16 {vr(nxt+16,16)}, {vr(KM,4)}, {vr(QM+4,4)}, {vr(nxt+16,16)}",
     "s0": f"v_smfmac_f32_32x32x32_bf16 {vr(OA,16)}, {vr(VF,4)}, {vr(cur,8)}, v{IDX}",
     "s1": f"v_smfmac_f32_32x32x32_bf16 {vr(OA,16)}, {vr(VF+4,4)}, {vr(cur+8,8)}, v{IDX}",
     "s2": f"v_smfmac_f32_32x32x32_bf16 {vr(OA+16,16)}, {vr(VF,4)}, {vr(cur+16,8)}, v{IDX}",
     "s3": f"v_smfmac_f32_32x32x32_bf16 {vr(OA+16,16)}, {vr(VF+4,4)}, {vr(cur+24,8)}, v{IDX}",
     "s3p": f"v_smfmac_f32_32x32x32_bf16 {vr(OA+16,16)}, {vr(VF+4,4)}, {vr(nxt+24,8)}, v{IDX}",
     "lkr": f"ds_read_b128 {vr(KR,4)}, v{AKR} offset:{pb(t+2)}" if par == 0 else None,
     "lkm": f"ds_read_b128 {vr(KM,4)}, v{AKM} offset:{pb(t+2)+1024*par}",
     "lv0": f"ds_read_b128 {vr(VF,4)}, v{AV} offset:{pb(t+1)+2*VSUB*(1-par)}",
     "lv1": f"ds_read_b128 {vr(VF+4,4)}, v{AV} offset:{pb(t)+2*VSUB*par+VSUB}",
    }

def att_tile(a, t, hooks=None):
    cur, ops = att_ops(t)
    e = 0
    for tok in ORDER.split():
        if hooks and tok in hooks: hooks[tok]()
        if tok[0] == "E":
            for _ in range(int(tok[1:])):
                a(f"v_exp_f32 v{cur+e}, v{cur+e}"); e += 1
        elif tok[0] == "w": a(f"s_waitcnt lgkmcnt({tok[1:]})")
        elif ops[tok]: a(ops[tok])

def att_setup(a):
    a(f"""
    s_lshr_b32 s{S_T0}, s{S_W}, 2
    s_mul_i32 s{S_T0}, s{S_T0}, {HS}
    v_lshlrev_b32 v2, 4, v1
    v_add_u32 v{BKM}, s{S_T0}, v2
    v_and_b32 v3, 31, v1
    v_lshlrev_b32 v4, 4, v3
    s_add_u32 s{S_T1}, s{S_T0}, {KROFF}
    v_add_u32 v{BKR}, s{S_T1}, v4
    v_lshrrev_b32 v5, 5, v1
    s_and_b32 s{S_T2}, s{S_W}, 3
    s_mul_i32 s{S_T2}, s{S_T2}, {PB}
    s_add_u32 s{S_T2}, s{S_T2}, {QIMG}
    v_add_u32 v6, s{S_T2}, v{BKM}
    v_lshl_add_u32 v7, v5, 3, v{BKR}
    v_add_u32 v7, s{S_T2}, v7
    ds_read_b128 {vr(QM,4)}, v6
    ds_read_b128 {vr(QM+4,4)}, v6 offset:1024
    ds_read_b64 {vr(QR,2)}, v7
    ds_read_b128 {vr(KR,4)}, v{BKR}
    ds_read_b128 {vr(KM,4)}, v{BKM}
    v_min_u32 v3, 19, v3
    v_lshrrev_b32 v4, 2, v3
    v_lshlrev_b32 v4, 3, v4
    s_mov_b32 s{S_T2}, 0x1004000c
    v_lshrrev_b32 v6, v4, s{S_T2}
    v_and_b32 v6, 0xff, v6
    v_and_b32 v7, 3, v3
    v_add_u32 v6, v6, v7
    v_add_u32 v7, 1, v7
    v_and_b32 v7, 3, v7
    v_or_b32 v7, 8, v7
    v_cmp_gt_u32 vcc, 16, v3
    v_mul_u32_u24 v5, 20, v5
    s_add_u32 s{S_T1}, s{S_T0}, {VOFF}
    v_cndmask_b32 v3, v7, v6, vcc
    v_add_u32 v3, v3, v5
    v_lshlrev_b32 v3, 4, v3
    v_add_u32 v{BV}, s{S_T1}, v3
    v_mov_b32 v{IDX}, 0xdddddddd
    v_mov_b32 v{AKM}, v{BKM}
    v_mov_b32 v{AKR}, v{BKR}
    v_mov_b32 v{AV}, v{BV}
    """)
    s0, s1 = SB
    a(f"s_waitcnt lgkmcnt(2)\nv_mov_b32 v{VG}, v{QR+1}\nv_mov_b32 v{QR+1}, 0")
    a(f"ds_read_b128 {vr(VF,4)}, v{AV}\ns_waitcnt lgkmcnt(1)")
    qk = lambda: (a(f"v_mfma_f32_32x32x4_2b_bf16 {vr(s0,32)}, {vr(KR,2)}, {vr(QR,2)}, 0"))
    def mains():
        a(f"v_mfma_f32_32x32x16_bf16 {vr(s0,16)}, {vr(KM,4)}, {vr(QM,4)}, {vr(s0,16)}")
        a(f"v_mfma_f32_32x32x16_bf16 {vr(s0+16,16)}, {vr(KM,4)}, {vr(QM+4,4)}, {vr(s0+16,16)}")
    qk()
    for i in range(20): a(f"v_mov_b32 v{OA+i}, 0")
    mains()
    for i in range(20, 32): a(f"v_mov_b32 v{OA+i}, 0")
    T = TMP
    for blk in range(2):
        b = s0 + 16 * blk; m = T + blk
        a(f"v_max3_f32 v{m}, v{b}, v{b+1}, v{b+2}")
        for i in range(3, 15, 2): a(f"v_max3_f32 v{m}, v{m}, v{b+i}, v{b+i+1}")
        a(f"v_max_f32 v{m}, v{m}, v{b+15}")
    a(f"""
    s_nop 1
    v_permlane32_swap_b32 v{T}, v{T+1}
    v_max_f32 v{T}, v{T}, v{T+1}
    v_cvt_pk_bf16_f32 v{QR+1}, -v{T}, 0
    s_nop 1
    """)
    qk()
    for i in range(8): a(f"v_mov_b32 v{s1+24+i}, 0")
    for i in range(4): a(f"v_mov_b32 v{VF+4+i}, 0")
    a(f"""
    s_lshl_b32 s{S_KVB}, s{S_GRP}, 3
    s_mul_i32 s{S_KVB}, s{S_KVB}, {SLOT}
    s_mov_b64 {sr(S_OK,2)}, -1
    s_mov_b32 s{S_CH}, 0
    s_mov_b32 s{S_NSL}, 0
    s_lshr_b32 s{S_C0}, s2, 5
    s_mul_i32 s{S_C0}, s{S_C0}, 144
    """)
    mains()
    a(f"ds_read_b128 {vr(KM,4)}, v{AKM} offset:1024")
    a.nop(10)

def att_chunk(a):
    def sync():
        a(f"""
        s_add_u32 s{S_NSL}, s{S_NSL}, {SLOT}
        s_cmp_eq_u32 s{S_NSL}, {4*SLOT}
        s_cselect_b32 s{S_NSL}, 0, s{S_NSL}
        s_barrier
        v_add_u32 v{AKR}, s{S_NSL}, v{BKR}
        v_add_u32 v{AKM}, s{S_NSL}, v{BKM}
        """)
    for t in range(8):
        hooks = {}
        if t == 6: hooks["lkr"] = sync
        if t == 7: hooks["lv0"] = lambda: a(f"v_add_u32 v{AV}, s{S_NSL}, v{BV}")
        att_tile(a, t, hooks)

def att_finish(a):
    _, ops = att_ops(7)
    a(f"s_nop 1\n{ops['s3']}")
    T = TMP
    a(f"""
    s_lshl_b32 s{S_T0}, s{S_B}, 31
    s_xor_b32 s{S_T0}, s{S_T0}, {hex(f32(-math.log2(math.e)))}
    v_mul_f32 v{VG}, s{S_T0}, v{VG}
    v_exp_f32 v{VG}, v{VG}
    s_and_b32 s{S_T0}, s{S_W}, 3
    v_add_f32 v{VG}, 1.0, v{VG}
    v_rcp_f32 v{VG}, v{VG}
    s_lshl_b32 s{S_T1}, s{S_TB}, 2
    s_add_u32 s{S_T0}, s{S_T0}, s{S_T1}
    s_lshl_b32 s{S_T1}, s{S_T0}, 17
    s_lshl_b32 s{S_T2}, s{S_GRP}, 10
    s_add_u32 s{S_T1}, s{S_T1}, s{S_T2}
    s_lshr_b32 s{S_T3}, s{S_W}, 2
    s_lshl_b32 s{S_T2}, s{S_T3}, 9
    s_add_u32 s{S_T1}, s{S_T1}, s{S_T2}
    s_add_u32 s{S_X0}, s{S_T1}, {WS_OM}
    s_add_u32 s{S_X1}, s{S_X0}, 0x10000
    v_bfe_u32 v2, v1, 4, 1
    v_lshlrev_b32 v2, 15, v2
    v_lshrrev_b32 v3, 5, v1
    v_lshl_add_u32 v2, v3, 8, v2
    v_and_b32 v3, 15, v1
    v_lshl_add_u32 v2, v3, 4, v2
    s_lshl_b32 s{S_T0}, s{S_T0}, 9
    s_lshl_b32 s{S_T2}, s{S_GRP}, 14
    s_add_u32 s{S_T0}, s{S_T0}, s{S_T2}
    s_lshl_b32 s{S_T3}, s{S_T3}, 2
    s_add_u32 s{S_T0}, s{S_T0}, s{S_T3}
    s_add_u32 s{S_WOFF}, s{S_T0}, {WS_OR}
    v_lshlrev_b32 v3, 3, v1
    """)
    a.label("L_att_norm")
    m = T + 2
    a(f"""
    v_mov_b32 v{T}, v{OA+10}
    v_mov_b32 v{T+1}, v{OA+26}
    s_mov_b32 s{S_T0}, {hex(f32(2.0**-60))}
    s_mov_b32 s{S_T1}, {hex(f32(2.0**60))}
    v_permlane32_swap_b32 v{T}, v{T+1}
    v_add_f32 v{m}, |v{OA}|, |v{OA+16}|
    v_cmp_nle_f32 s[4:5], s{S_T0}, v{T}
    v_cmp_nge_f32 s[6:7], s{S_T1}, v{T}
    v_rcp_f32 v{T}, v{T}
    """)
    for i in range(1, 10): a(f"v_add_f32 v{m}, v{m}, |v{OA+i}|\nv_add_f32 v{m}, v{m}, |v{OA+16+i}|")
    a(f"""
    s_mov_b32 s{S_T0}, 0x7f000000
    v_mul_f32 v{T}, v{T}, v{VG}
    v_cmp_nge_f32 vcc, s{S_T0}, v{m}
    v_mov_b32 v{T+1}, v{T}
    s_or_b64 s[4:5], s[4:5], s[6:7]
    s_or_b64 vcc, vcc, s[4:5]
    s_and_b64 vcc, vcc, {sr(S_OK,2)}
    s_cbranch_vccnz L_att_slow
    v_permlane32_swap_b32 v{T}, v{T+1}
    """)
    for blk in range(2):
        o = OA + 16 * blk; f = T + blk; d = T + 4 + 4 * blk
        for i in range(10): a(f"v_mul_f32 v{o+i}, v{f}, v{o+i}")
        for i in range(4): a(f"v_cvt_pk_bf16_f32 v{d+i}, v{o+2*i}, v{o+2*i+1}")
        a(f"buffer_store_dwordx4 {vr(d,4)}, v2, {sr(SRD_WS,4)}, s{S_X0+blk} offen sc1")
        a(f"v_cvt_pk_bf16_f32 v{T+12+blk}, v{o+8}, v{o+9}")
    a(f"s_nop 1\nv_permlane32_swap_b32 v{T+12}, v{T+13}")
    a(f"buffer_store_dword v{T+12}, v3, {sr(SRD_WS,4)}, s{S_WOFF} offen sc1")

def att_slow(a):
    s0 = SB[0]; T = TMP
    M0, M1, GK = T + 16, T + 17, T + 18
    a.label("L_att_slow")
    a(f"""
    s_mov_b64 {sr(S_OK,2)}, 0
    v_mov_b32 v{QR+1}, 0
    v_mov_b32 v{M0}, 0xff800000
    v_mov_b32 v{M1}, 0xff800000
    s_waitcnt vmcnt(0) lgkmcnt(0)
    """)
    for i in range(32): a(f"v_mov_b32 v{OA+i}, 0")
    for ps in range(2):
        a(f"s_mov_b32 s{S_CNT}, 0")
        a.label(f"L_slow_{ps}")
        a(f"""
        s_lshr_b32 s{S_T0}, s{S_CNT}, 1
        s_bfe_u32 s{S_T1}, s{S_CNT}, 0x30003
        s_lshl_b32 s{S_T1}, s{S_T1}, 2
        s_add_u32 s{S_T0}, s{S_T0}, s{S_T1}
        s_mul_i32 s{S_T0}, s{S_T0}, {PB}
        s_add_u32 s{S_T0}, s{S_T0}, s{S_KVB}
        s_and_b32 s{S_T1}, s{S_CNT}, 1
        s_lshl_b32 s{S_T2}, s{S_T1}, 10
        s_add_u32 s{S_T2}, s{S_T2}, s{S_T0}
        buffer_load_dwordx4 {vr(KM,4)}, v{BKM}, {sr(SRD_WS,4)}, s{S_T2} offen sc1
        s_lshl_b32 s{S_T2}, s{S_T1}, 3
        s_add_u32 s{S_T2}, s{S_T2}, s{S_T0}
        buffer_load_dwordx2 {vr(KR,2)}, v{BKR}, {sr(SRD_WS,4)}, s{S_T2} offen sc1
        s_mul_i32 s{S_T2}, s{S_T1}, {2*VSUB}
        s_add_u32 s{S_T2}, s{S_T2}, s{S_T0}
        buffer_load_dwordx4 {vr(VF,4)}, v{BV}, {sr(SRD_WS,4)}, s{S_T2} offen sc1
        buffer_load_dwordx4 {vr(VF+4,4)}, v{BV}, {sr(SRD_WS,4)}, s{S_T2} offen offset:{VSUB} sc1
        s_waitcnt vmcnt(0)
        v_mfma_f32_32x32x4_2b_bf16 {vr(s0,32)}, {vr(KR,2)}, {vr(QR,2)}, 0
        """)
        a.nop(20)
        a(f"v_mfma_f32_32x32x16_bf16 {vr(s0,16)}, {vr(KM,4)}, {vr(QM,4)}, {vr(s0,16)}")
        a(f"v_mfma_f32_32x32x16_bf16 {vr(s0+16,16)}, {vr(KM,4)}, {vr(QM+4,4)}, {vr(s0+16,16)}")
        a.nop(14)
        if ps == 0:
            for blk, m in enumerate((M0, M1)):
                for i in range(0, 16, 2): a(f"v_max3_f32 v{m}, v{m}, v{s0+16*blk+i}, v{s0+16*blk+i+1}")
        else:
            for i in range(32): a(f"v_sub_f32 v{s0+i}, v{s0+i}, v{M0 if i < 16 else M1}")
            for i in range(32): a(f"v_exp_f32 v{s0+i}, v{s0+i}")
            a.nop(2)
            for i in range(4):
                a(f"v_smfmac_f32_32x32x32_bf16 {vr(OA+16*(i//2),16)}, {vr(VF+4*(i%2),4)}, {vr(s0+8*i,8)}, v{IDX}")
            a.nop(14)
        a(f"s_add_u32 s{S_CNT}, s{S_CNT}, 1\ns_cmp_lt_u32 s{S_CNT}, 64\ns_cbranch_scc1 L_slow_{ps}")
        if ps == 0:
            for m in (M0, M1):
                a(f"v_mov_b32 v{GK}, v{m}\ns_nop 1\nv_permlane32_swap_b32 v{GK}, v{m}\nv_max_f32 v{m}, v{m}, v{GK}")
    a("s_branch L_att_norm")

OACC = 8
OF = OACC + 20
WB = OF + 72
WBUF = (WB, WB + 20, WB + 40)
AM, AM8, AM15, AR, AR3 = range(WB + 60, WB + 65)
P3_END = AR3 + 1
S_TT, S_TOK = S_GRP, S_TB

def phase3(a):
    a(f"""
    s_and_b32 s{S_TT}, s{S_W}, 3
    s_lshr_b32 s{S_B}, s{S_W}, 2
    s_and_b32 s{S_T0}, s2, 7
    s_lshl_b32 s{S_T0}, s{S_T0}, 2
    s_bfe_u32 s{S_T1}, s2, 0x20003
    s_add_u32 s{S_T0}, s{S_T0}, s{S_T1}
    s_lshl_b32 s{S_T0}, s{S_T0}, 2
    s_add_u32 s{S_TOK}, s{S_T0}, s{S_TT}
    v_lshrrev_b32 v2, 4, v1
    v_bfe_u32 v3, v1, 2, 2
    v_and_b32 v4, 3, v1
    v_lshlrev_b32 v4, 3, v4
    s_mul_i32 s{S_T0}, s{S_B}, {576*144}
    v_and_b32 v5, 1, v2
    v_lshl_add_u32 v5, v5, 2, v3
    v_mul_u32_u24 v5, 288, v5
    v_add_u32 v5, v5, v4
    v_lshrrev_b32 v6, 1, v2
    v_mul_u32_u24 v7, 2592, v6
    v_add3_u32 v{AM}, v5, v7, s{S_T0}
    v_add_u32 v{AM8}, {8*5184}, v{AM}
    v_add_u32 v{AM15}, {15*5184}, v{AM}
    v_and_b32 v6, s{S_B}, v6
    v_cmp_eq_u32 vcc, 1, v6
    v_mul_u32_u24 v7, 5184, v2
    v_lshrrev_b32 v6, 1, v3
    v_cndmask_b32 v{AM15}, v{AM15}, v5, vcc
    v_and_b32 v5, 1, v3
    v_add_u32 v5, 16, v5
    v_mul_u32_u24 v5, 144, v5
    v_add_u32 v5, v5, v4
    v_mul_u32_u24 v4, 2592, v6
    v_add3_u32 v7, v7, v4, v5
    v_add_u32 v{AR}, s{S_T0}, v7
    v_add_u32 v{AR3}, {12*5184}, v{AR}
    v_lshrrev_b32 v4, 3, v1
    v_lshl_add_u32 v4, s{S_B}, 3, v4
    v_cmp_eq_u32 vcc, 15, v4
    v_lshlrev_b32 v2, 4, v1
    v_lshrrev_b32 v3, 4, v1
    v_cndmask_b32 v{AR3}, v{AR3}, v5, vcc
    v_lshlrev_b32 v3, 14, v3
    v_and_b32 v4, 15, v1
    v_lshl_add_u32 v3, v4, 3, v3
    s_lshl_b32 s{S_X0}, s{S_TOK}, 15
    s_lshl_b32 s{S_T0}, s{S_B}, 14
    s_add_u32 s{S_X0}, s{S_X0}, s{S_T0}
    s_add_u32 s{S_X0}, s{S_X0}, {WS_OM}
    s_lshl_b32 s{S_X1}, s{S_B}, 18
    s_lshl_b32 s{S_T0}, s{S_TOK}, 7
    s_add_u32 s{S_X1}, s{S_X1}, s{S_T0}
    s_add_u32 s{S_X1}, s{S_X1}, {WS_OR}
    """)
    steps = [16] + list(range(16)) + [17]
    def wreads(k):
        st = steps[k]; wb = WBUF[k % 3]; L = []
        for t in range(5):
            g = []
            for i in range(2):
                if st < 8: ad, off = AM, 5184 * st + 144 * i
                elif st < 15: ad, off = AM8, 5184 * (st - 8) + 144 * i
                elif st == 15: ad, off = AM15, 144 * i
                elif (st, i) == (17, 1): ad, off = AR3, 0
                else: ad, off = AR, 5184 * (8 * (st - 16) + 4 * i)
                g.append(f"ds_read_b64_tr_b16 {vr(wb+4*t+2*i,2)}, v{ad} offset:{off+32*t}")
            L.append(g)
        return L
    a("s_waitcnt vmcnt(0) lgkmcnt(0)\ns_barrier")
    stamp(a, 9)
    a("s_barrier")
    stamp(a, 10)
    nload = []
    for k, st in enumerate(steps):
        if st < 16:
            if st and st % 4 == 0: a(f"s_add_u32 s{S_X0}, s{S_X0}, 4096")
            a(f"buffer_load_dwordx4 {vr(OF+4*k,4)}, v2, {sr(SRD_WS,4)}, s{S_X0} offen offset:{1024*(st%4)} sc1")
            nload.append(1)
        else:
            for i in range(2):
                a(f"buffer_load_dwordx2 {vr(OF+4*k+2*i,2)}, v3, {sr(SRD_WS,4)}, s{S_X1} offen sc1")
                a(f"s_add_u32 s{S_X1}, s{S_X1}, 0x10000")
            nload.append(2)
    for k in range(2):
        for g in wreads(k):
            for x in g: a(x)
    a(f"""
    v_lshlrev_b32 v2, 4, v1
    s_mul_i32 s{S_T0}, s{S_TT}, 5120
    v_add_u32 v2, s{S_T0}, v2
    v_and_b32 v3, 15, v1
    s_lshl_b32 s{S_T0}, s{S_TOK}, 4
    v_add_u32 v3, s{S_T0}, v3
    v_mul_u32_u24 v3, 1152, v3
    v_add_u32 v3, s{S_C0}, v3
    v_lshrrev_b32 v4, 4, v1
    v_lshl_add_u32 v5, v4, 3, v3
    v_and_b32 v6, 1, v4
    v_lshl_add_u32 v3, v6, 5, v3
    v_lshrrev_b32 v4, 1, v4
    v_lshl_add_u32 v3, v4, 4, v3
    s_waitcnt lgkmcnt(0)
    s_barrier
    """)
    for k in range(18):
        if k == 14: a("s_barrier")
        groups = wreads(k + 2) if k + 2 < 18 else []
        lg = 10 if 1 <= k < 17 else 0
        a(f"s_waitcnt vmcnt({sum(nload[k+1:])}) lgkmcnt({lg})")
        wb = WBUF[k % 3]
        for t in range(5):
            c = vr(OACC + 4 * t, 4)
            a(f"v_mfma_f32_16x16x32_bf16 {c}, {vr(wb+4*t,4)}, {vr(OF+4*k,4)}, {'0' if k == 0 else c}")
            if t < len(groups):
                for y in groups[t]: a(y)
    stamp(a, 11)
    T = OF
    a(f"s_barrier\ns_cmp_eq_u32 s{S_B}, 0\ns_cbranch_scc0 L_p3_b")
    def fin(tiles, give, off):
        a.nop(4)
        for t in give: a(f"ds_write_b128 v2, {vr(OACC+4*t,4)} offset:{1024*t}")
        a("s_waitcnt lgkmcnt(0)\ns_barrier")
        for k, t in enumerate(tiles): a(f"ds_read_b128 {vr(T+4*k,4)}, v2 offset:{1024*t}")
        for k, t in enumerate(tiles):
            a(f"s_waitcnt lgkmcnt({len(tiles)-1-k})")
            for e in range(4): a(f"v_add_f32 v{OACC+4*t+e}, v{OACC+4*t+e}, v{T+4*k+e}")
        d = T + 12
        t0, t1 = tiles[0], tiles[1]
        a(f"""
        v_cvt_pk_bf16_f32 v{d}, v{OACC+4*t0}, v{OACC+4*t0+1}
        v_cvt_pk_bf16_f32 v{d+1}, v{OACC+4*t0+2}, v{OACC+4*t0+3}
        v_cvt_pk_bf16_f32 v{d+2}, v{OACC+4*t1}, v{OACC+4*t1+1}
        v_cvt_pk_bf16_f32 v{d+3}, v{OACC+4*t1+2}, v{OACC+4*t1+3}
        s_nop 1
        v_permlane16_swap_b32 v{d}, v{d+2}
        v_permlane16_swap_b32 v{d+1}, v{d+3}
        buffer_store_dwordx4 {vr(d,4)}, v3, {sr(SRD_O,4)}, 0 offen offset:{off}
        """)
        if len(tiles) == 3:
            t2 = tiles[2]
            a(f"""
            v_cvt_pk_bf16_f32 v{d+4}, v{OACC+4*t2}, v{OACC+4*t2+1}
            v_cvt_pk_bf16_f32 v{d+5}, v{OACC+4*t2+2}, v{OACC+4*t2+3}
            s_mov_b32 exec_hi, 0
            buffer_store_dwordx2 {vr(d+4,2)}, v5, {sr(SRD_O,4)}, 0 offen offset:128
            """)
        if PROF: a("s_waitcnt vmcnt(0)")
        stamp(a, 12); stamp(a, 17, True); stamp_out(a)
        a("s_endpgm")
    fin((0, 1, 4), (2, 3), 0)
    a.label("L_p3_b")
    fin((2, 3), (0, 1, 4), 64)

WPIECE = 864
def loader(a):
    AD0, AD1, AX0, AX1, LA, DW, FA, FL, Z = range(8, 17)
    BUF = 24
    sWS, sXS, sWO, sXO = (64, 65, 66), (33, 34, 35), 36, 37
    sM, sS, sN = 38, 40, 41
    a("s_setprio 3")
    def wsrc(dst, hi):
        a(f"""
        v_lshlrev_b32 v4, 1, v2
        v_or_b32 v4, {8*hi}, v4
        v_xor_b32 v4, v4, v3
        v_min_u32 v4, 14, v4
        v_mul_u32_u24 v5, 52, v4
        v_lshrrev_b32 v5, 8, v5
        v_lshlrev_b32 v4, 4, v4
        v_mul_u32_u24 v6, 1072, v5
        v_add_u32 v4, v4, v6
        v_and_b32 v5, 2, v5
        v_lshlrev_b32 v5, 2, v5
        v_sub_u32 v4, v4, v5
        v_mul_u32_u24 v5, 3456, v2
        v_add_u32 v{dst}, v4, v5
        """)
    wsrc(AD0, 0); wsrc(AD1, 1)
    a(f"""
    v_lshrrev_b32 v4, 3, v1
    v_mul_u32_u24 v4, 1152, v4
    v_and_b32 v5, 7, v1
    v_xor_b32 v5, v5, v2
    v_lshl_add_u32 v{AX0}, v5, 4, v4
    v_xor_b32 v5, 4, v5
    v_lshl_add_u32 v4, v5, 4, v4
    v_add_u32 v{AX1}, {8*1152}, v4
    v_lshlrev_b32 v{LA}, 4, v1
    s_mul_i32 s{sWO}, s{S_P}, 72
    s_mul_i32 s{sXO}, s{S_TB}, {256*1152}
    s_mov_b32 m0, {GATE_LDS}
    s_waitcnt lgkmcnt(0)
    s_cmp_eq_u32 s{S_B}, 0
    s_cselect_b32 s{S_PTR+2}, s{S_PTR+2}, s{S_PTR+8}
    s_cselect_b32 s{S_PTR+3}, s{S_PTR+3}, s{S_PTR+9}
    """)
    srd(a, SRD_W, S_PTR + 2, 576 * 3456)
    srd(a, SRD_X, S_PTR, 2048 * 1152)
    srd(a, SRD_G, S_PTR + 12, 1152)
    a(f"buffer_load_dwordx4 v{LA}, {sr(SRD_G,4)}, 0 offen lds")
    a(f"buffer_load_dwordx4 v{LA}, {sr(SRD_G,4)}, 0 offen offset:1024 lds")
    for i in range(3): a(f"s_mov_b32 s{sWS[i]}, {WST[i]}\ns_mov_b32 s{sXS[i]}, {XST[i]}")
    srd(a, SRD_WS, S_DBG + 2, WS_END)
    srd(a, SRD_O, S_DBG, 256)
    a(f"v_mov_b32 v{Z}, 0\nv_lshlrev_b32 v{FA}, 2, v1\ns_mov_b32 s{sN}, 0")
    a(f"s_cmp_eq_u32 s2, 0\ns_cselect_b32 s{S_T3}, 2, 15")
    DW_ = int(OPT.get("dw", 4))
    npc = (0 if OPT.get("now") else 2) + (0 if OPT.get("nox") else 4)
    def part(w0, w1):
        for w in range(w0, w1):
            a("s_waitcnt vmcnt(57)")
            for h in range(0 if OPT.get("now") else 2):
                a(f"""
                s_add_u32 m0, s{sWS[0]}, {h*8192 + w*1024}
                s_add_u32 s{S_T0}, s{sWO}, {(32*h + 4*w)*3456}
                buffer_load_dwordx4 v{AD0 + ((w >> 1) & 1)}, {sr(SRD_W,4)}, s{S_T0} offen lds
                """)
            for u in range(0 if OPT.get("nox") else 4):
                a(f"""
                s_add_u32 m0, s{sXS[0]}, {w*4096 + u*1024}
                s_add_u32 s{S_T0}, s{sXO}, {(32*w + 16*(u >> 1))*1152}
                buffer_load_dwordx4 v{AX0 + (u & 1)}, {sr(SRD_X,4)}, s{S_T0} offen lds
                """)
    a.label("L_ld_pair")
    part(0, DW_)
    a(f"s_cmp_eq_u32 s{sN}, 0\ns_cbranch_scc1 L_ld_first\ns_waitcnt vmcnt({npc*DW_})\ns_barrier")
    a(f"s_cmp_eq_u32 s{sN}, s{S_T3}\ns_cbranch_scc1 L_ld_ready")
    a.label("L_ld_second")
    part(DW_, 8)
    for r in (sWS, sXS):
        a(f"s_mov_b32 s{S_T0}, s{r[0]}\ns_mov_b32 s{r[0]}, s{r[1]}\ns_mov_b32 s{r[1]}, s{r[2]}\ns_mov_b32 s{r[2]}, s{S_T0}")
    a(f"""
    s_add_u32 s{sWO}, s{sWO}, {64*3456}
    s_add_u32 s{sXO}, s{sXO}, 128
    s_add_u32 s{sN}, s{sN}, 1
    s_cmp_lt_u32 s{sN}, 9
    s_cbranch_scc1 L_ld_pair
    s_waitcnt vmcnt(0)
    s_barrier
    """)
    rdy = f"buffer_load_dword v{FL}, v{Z}, {sr(SRD_O,4)}, 0 offen sc1"
    a(f"""
    s_mov_b64 exec, 1
    {rdy}
    s_lshl_b32 s{S_KVB}, s{S_GRP}, 3
    s_add_u32 s{sS}, s{S_KVB}, s{S_TB}
    s_mul_i32 s{sS}, s{sS}, {SLOT}
    s_mul_i32 s{S_KVB}, s{S_KVB}, {SLOT}
    s_lshl_b32 s{S_X1}, s{S_GRP}, 7
    s_add_u32 s{S_X1}, s{S_X1}, {WS_F1}
    s_lshl_b32 s{S_X0}, s{S_TB}, 2
    s_add_u32 s{S_X0}, s{S_X0}, s{S_X1}
    """)
    spin(a, "rdy", rdy, FL)
    a(f"""
    s_mov_b64 exec, -1
    v_mul_u32_u24 v2, 57, v1
    v_lshrrev_b32 v2, 9, v2
    v_mul_u32_u24 v2, {1152 - 144}, v2
    v_lshl_add_u32 v2, v1, 4, v2
    s_lshr_b32 s{S_C0}, s2, 5
    s_mul_i32 s{S_C0}, s{S_C0}, 144
    v_add_u32 v{DW}, s{S_C0}, v2
    s_barrier
    """)
    rd = lambda i: a(f"ds_read_b128 {vr(BUF+4*(i%24),4)}, v{LA} offset:{1024*i}")
    for i in range(12): rd(i)
    for i in range(40):
        if i + 12 < 40: rd(i + 12)
        a(f"s_waitcnt lgkmcnt({min(12, 39 - i)})")
        a(f"buffer_store_dwordx4 {vr(BUF+4*(i%24),4)}, v{LA}, {sr(SRD_WS,4)}, s{sS} offen offset:{1024*(i%4)} sc1")
        if i % 4 == 3: a(f"s_add_u32 s{sS}, s{sS}, 4096")
    def flag(soff):
        a(f"v_mov_b32 v{FL}, 1\ns_mov_b64 exec, 1\nbuffer_store_dword v{FL}, v{Z}, {sr(SRD_WS,4)}, s{soff} offen sc1")
    a("s_waitcnt vmcnt(0)")
    flag(S_X0); stamp(a, 5)
    ld1 = f"buffer_load_dword v{FL}, v{FA}, {sr(SRD_WS,4)}, s{S_X1} offen sc1"
    a(f"s_mov_b64 exec, 0xff\n{ld1}")
    spin(a, "kv", ld1, FL)
    a("s_mov_b64 exec, -1"); stamp(a, 6)
    def kv_setup(c):
        a(f"""
        s_add_u32 s{S_T0}, s{S_TB}, {c}
        s_and_b32 s{S_T0}, s{S_T0}, 7
        s_mul_i32 s{S_T0}, s{S_T0}, {SLOT}
        s_add_u32 s{sS}, s{S_T0}, s{S_KVB}
        s_mov_b32 s{sM}, {(c % 4) * SLOT}
        """)
    def kv_pieces(n):
        lab = a.uid("L_kv")
        a(f"s_mov_b32 s{sN}, {n // 4}")
        a.label(lab)
        a(f"s_waitcnt vmcnt(59)\ns_mov_b32 m0, s{sM}\ns_add_u32 s{sM}, s{sM}, 4096")
        for i in range(4): a(f"buffer_load_dwordx4 v{LA}, {sr(SRD_WS,4)}, s{sS} offen offset:{1024*i} sc1 lds")
        a(f"s_add_u32 s{sS}, s{sS}, 4096\ns_sub_u32 s{sN}, s{sN}, 1\ns_cbranch_scc0 {lab}".replace("s_cbranch_scc0", f"s_cmp_lg_u32 s{sN}, 0\ns_cbranch_scc1"))
    kv_setup(1); kv_pieces(40)
    kv_setup(2); kv_pieces(20)
    a("s_waitcnt vmcnt(20)\ns_barrier")
    kv_pieces(20)
    for c in range(3, int(OPT.get('nch', 8))):
        kv_setup(c); kv_pieces(40)
        a("s_waitcnt vmcnt(40)\ns_barrier")
    def wo(b, n0, n1, dst=None):
        lab = a.uid("L_wo")
        p = S_PTR + 4 + 6 * b
        a(f"""
        s_mov_b32 s{SRD_G}, s{p}
        s_and_b32 s{SRD_G+1}, s{p+1}, 0xffff
        s_mov_b32 s{SRD_G+2}, {576*1152}
        s_mov_b32 s{sS}, {n0*6*1152}
        s_mov_b32 s{sM}, {(96*b + n0)*WPIECE if dst is None else dst}
        """)
        a.label(lab)
        a(f"""
        s_waitcnt vmcnt(60)
        s_mov_b32 m0, s{sM}
        s_add_u32 s{sM}, s{sM}, {WPIECE}
        buffer_load_dwordx4 v{DW}, {sr(SRD_G,4)}, s{sS} offen lds
        s_add_u32 s{sS}, s{sS}, {6*1152}
        s_cmp_lt_u32 s{sS}, {n1*6*1152}
        s_cbranch_scc1 {lab}
        """)
    a("s_mov_b32 exec_hi, 0x3fffff")
    wo(0, 0, 47)
    a("s_waitcnt vmcnt(47)\ns_barrier")
    wo(0, 47, 94)
    a("s_barrier")
    wo(0, 94, 96); wo(1, 0, 46)
    a(f"""
    s_lshl_b32 s{S_X0}, s{S_TB}, 7
    s_lshl_b32 s{S_T0}, s{S_GRP}, 2
    s_add_u32 s{S_X0}, s{S_X0}, s{S_T0}
    s_add_u32 s{S_X0}, s{S_X0}, {WS_F2}
    s_and_b32 s{S_X1}, s2, 7
    s_lshl_b32 s{S_X1}, s{S_X1}, 7
    s_add_u32 s{S_X1}, s{S_X1}, {WS_F2}
    s_barrier
    """)
    flag(S_X0); stamp(a, 9)
    a("s_mov_b32 exec_lo, -1\ns_mov_b32 exec_hi, 0x3fffff")
    wo(1, 46, 93)
    ld2 = f"buffer_load_dword v{FL}, v{FA}, {sr(SRD_WS,4)}, s{S_X1} offen sc1"
    a(f"s_mov_b32 exec_hi, 0\n{ld2}")
    spin(a, "o", ld2, FL)
    stamp(a, 10)
    a("s_barrier\ns_mov_b32 exec_hi, 0x3fffff\ns_barrier")
    wo(1, 93, 96, dst=0)
    a("s_waitcnt vmcnt(0)\ns_barrier")
    stamp_out(a)
    a("s_endpgm")
    a.label("L_ld_first")
    a(f"""
    s_waitcnt vmcnt(56)
    s_cmp_lg_u32 s2, 0
    s_cbranch_scc1 L_ld_second
    v_mov_b32 v{BUF}, 0
    v_mov_b32 v{BUF+1}, 0
    v_mov_b32 v{BUF+2}, 0
    v_mov_b32 v{BUF+3}, 0
    s_mov_b32 s{S_T0}, {WS_F1}
    """)
    for i in range(4): a(f"buffer_store_dwordx4 {vr(BUF,4)}, v{LA}, {sr(SRD_WS,4)}, s{S_T0} offen offset:{1024*i} sc1")
    a(f"""
    s_mov_b32 s{S_T0}, {WS_F2}
    buffer_store_dwordx4 {vr(BUF,4)}, v{LA}, {sr(SRD_WS,4)}, s{S_T0} offen sc1
    s_branch L_ld_second
    """)
    a.label("L_ld_ready")
    a(f"""
    v_mov_b32 v{FL}, 1
    s_mov_b64 exec, 1
    buffer_store_dword v{FL}, v{Z}, {sr(SRD_O,4)}, 0 offen sc1
    s_mov_b64 exec, -1
    s_branch L_ld_second
    """)

def build():
    a = Asm()
    a("s_cmp_ge_u32 s2, 256\ns_cbranch_scc1 L_exit")
    stamp(a, 0); stamp(a, 16, True)
    entry(a)
    a.late = True
    loader(a)
    a.late = False
    a.label("L_compute")
    phase1(a); stamp(a, 4); a.late = True
    att_setup(a)
    stamp(a, 7); stamp(a, 18, True)
    if OPT.get("align"): a(".p2align 6")
    a.label("L_att_loop")
    att_chunk(a)
    a(f"s_add_u32 s{S_CH}, s{S_CH}, 1\ns_cmp_lt_u32 s{S_CH}, {int(OPT.get('nch', 8))}\ns_cbranch_scc1 L_att_loop")
    stamp(a, 8); stamp(a, 19, True)
    att_finish(a); phase3(a)
    att_slow(a)
    a.label("L_exit"); a("s_endpgm")
    return a, max(P1_END, P2_END, P3_END)

def emit(path):
    a, nv = build()
    label = NAME + "_kernel"
    nv4 = (nv + 3) // 4 * 4
    s = open(f"cdna_kernels/{NAME}.s.ref").read().split("; Override launch")[0]
    s += "; @launch grid=(256,1,1) block=(576,1,1) lds=163840\n"
    s += f""".amdgcn_target "amdgcn-amd-amdhsa--gfx950"
.text
.globl {label}
.p2align 8
.type {label},@function
{label}:
{a.text()}.section .rodata,"a"
.p2align 6
.amdhsa_kernel {label}
  .amdhsa_next_free_vgpr {nv4}
  .amdhsa_next_free_sgpr {102 if PROF or OPT.get('delay') else 72}
  .amdhsa_accum_offset {nv4}
  .amdhsa_group_segment_fixed_size 0
  .amdhsa_kernarg_size 80
  .amdhsa_user_sgpr_count 2
  .amdhsa_user_sgpr_kernarg_segment_ptr 1
  .amdhsa_system_sgpr_workgroup_id_x 1
.end_amdhsa_kernel
"""
    errs = check_hazards(a.lines) + check_waits(a.lines)
    for e in errs: print(e)
    open(path, "w").write(s)
    print("wrote", path, "checks", "FAILED" if errs else "OK", len(a.lines), "lines", nv, "vgprs")

if __name__ == "__main__":
    for x in list(sys.argv):
        if x.startswith("-O"):
            k, v = (x[2:].split("=") + ["1"])[:2]; OPT[k] = v.replace("_", " "); sys.argv.remove(x)
    if "--prof" in sys.argv: PROF = True; sys.argv.remove("--prof")
    emit(sys.argv[1] if len(sys.argv) > 1 else f"cdna_kernels/{NAME}.s")
```

```python
import sys, math, struct
from asmlib import Asm, vr, sr, check_hazards, check_waits

NAME = "gated_mix__softmax_full_mha__softmax_full_mha__prompt"
def f32(x): return struct.unpack("<I", struct.pack("<f", x))[0]

VSUB = 640
VOFF, KROFF = 2048, 2048 + 4 * VSUB
PB = KROFF + 512
HS = 4 * PB
SLOT = 2 * HS
QIMG = 3 * SLOT
WST = (8192, 24576, 40960)
XST = (90112, 122880, 57344)
GATE_LDS = 155648
WS_KV = 0
WS_OM = 256 * SLOT
WS_OR = WS_OM + 128 * 32 * 1024
WS_F1 = WS_OR + 32 * 2048 * 8
WS_F2 = WS_F1 + 4096
WS_END = WS_F2 + 1024
QSCALE = math.log2(math.e) / math.sqrt(18.0)
SPIN_MAX = 1 << 18
def vpos_slot(s): return 12 + s if s < 4 else s - 4 if s < 12 else s + 4 if s < 16 else s - 7 if s < 19 else 8
def vslot_dim(d): return 8 * (d & 1) + (d >> 1) if d < 16 else d
def vpos_dim(d): return vpos_slot(vslot_dim(d))

PROF = False
OPT = {}
WS_PROF = WS_END
def stamp(a, i, cyc=False):
    if not PROF: return
    if OPT.get("g1prof") and 5 <= i <= 12 and getattr(a, "late", False): return
    a(f"{'s_memtime' if cyc else 's_memrealtime'} s[70:71]\ns_waitcnt lgkmcnt(0)\ns_mov_b32 s{72+i}, s70")
def stamp_out(a, n=24):
    if not PROF: return
    if OPT.get("dbgprof"):
        lab = a.uid("L_nodbg")
        a(f"s_lshl_b32 s70, s2, 4\ns_add_u32 s70, s70, s{S_W}\ns_cmp_lg_u32 s70, {16*int(OPT['dbgprof'])}\ns_cbranch_scc1 {lab}")
        srd(a, SRD_G, S_DBG, 256)
        a("s_mov_b64 exec, 1\nv_mov_b32 v3, 0")
        for i in range(1, 13):
            a(f"s_sub_u32 s71, s{72+i}, s72\nv_mov_b32 v2, s71\nbuffer_store_dword v2, v3, s[16:19], 0 offen offset:{4*i}")
        a(f"s_sub_u32 s71, s{72+19}, s{72+18}\nv_mov_b32 v2, s71\nbuffer_store_dword v2, v3, s[16:19], 0 offen offset:52")
        a(f"s_sub_u32 s71, s{72+17}, s{72+16}\nv_mov_b32 v2, s71\nbuffer_store_dword v2, v3, s[16:19], 0 offen offset:56")
        a.label(lab)
        return
    a(f"s_getreg_b32 s94, hwreg(HW_REG_HW_ID)\ns_getreg_b32 s95, hwreg(HW_REG_XCC_ID)")
    a(f"s_lshl_b32 s70, s2, 4\ns_add_u32 s70, s70, s{S_W}\ns_lshl_b32 s70, s70, 7\ns_add_u32 s70, s70, {WS_PROF}")
    a("s_mov_b64 exec, 1\ns_mov_b32 s14, 0x10000000\nv_mov_b32 v3, 0")
    for i in range(n):
        a(f"v_mov_b32 v2, s{72+i}\nbuffer_store_dword v2, v3, s[12:15], s70 offen offset:{4*i}")

SRD_X, SRD_W, SRD_WS, SRD_G, SRD_O = 4, 8, 12, 16, 20
S_W, S_TB, S_GRP, S_B, S_P = 24, 25, 26, 27, 28
S_T0, S_T1, S_T2, S_T3 = 29, 30, 31, 32
S_X0, S_X1, S_WOFF, S_QS = 33, 34, 35, 36
S_CH, S_M0, S_KVB, S_SOFF, S_CNT = 37, 38, 39, 40, 41
S_EX = 42
S_PTR = 44
S_DBG = 60
S_MSTEP, S_SSTEP, S_NSL, S_C0 = 64, 65, 66, 67
S_OK = 68

def srd(a, d, ptr, size):
    a(f"s_mov_b32 s{d}, s{ptr}\ns_and_b32 s{d+1}, s{ptr+1}, 0xffff\ns_mov_b32 s{d+2}, {size}\ns_mov_b32 s{d+3}, 0x00020000")

def spin(a, tag, load, reg):
    a(f"s_mov_b32 s{S_CNT}, {SPIN_MAX}")
    a.label(f"L_spin_{tag}")
    a(f"""
    s_waitcnt vmcnt(0)
    v_cmp_eq_u32 vcc, 0, v{reg}
    s_cbranch_vccz L_got_{tag}
    s_sleep {OPT.get('slp', 1)}
    {load}
    s_sub_u32 s{S_CNT}, s{S_CNT}, 1
    s_cmp_lg_u32 s{S_CNT}, 0
    s_cbranch_scc1 L_spin_{tag}
    s_waitcnt vmcnt(0)
    """)
    a.label(f"L_got_{tag}")

ACC = 8
WF = ACC + 56
XF = WF + 56
AW = XF + 16
AG, AXR = AW + 7, AW + 8
EKM, EVA, EVB, EMID, EONE, EKC, ESC = range(AW + 12, AW + 19)
PF = ESC + 1
P1_END = PF + 5
T_QA, T_QB, T_KA, T_KB, T_VA, T_VB, T_MID = range(7)
acc = lambda n, tt: ACC + (2 * n + tt) * 4

def p1_reads(ks):
    wf = WF + 28 * (ks % 2); xf = XF + 8 * (ks % 2)
    st = (ks // 2) % 3
    off = WST[st] - WST[0] + (ks % 2) * 8192
    xa, xo = (AXR + 2, 0) if st == 1 else (AXR, XST[st] - XST[2])
    L = [[f"ds_read_b128 {vr(xf+4*tt,4)}, v{xa+ks%2} offset:{xo + tt*2048}" for tt in range(2)]]
    for n in (T_QA, T_QB, T_KA, T_KB, T_VA, T_VB, T_MID):
        g = [f"ds_read_b64_tr_b16 {vr(wf+4*n,2)}, v{AW+n} offset:{off}",
             f"ds_read_b64_tr_b16 {vr(wf+4*n+2,2)}, v{AW+n} offset:{off+1024}"]
        if n == T_MID:
            g += [f"s_mov_b64 exec, {sr(S_EX,2)}",
                  f"ds_read_b128 {vr(wf+4*n,4)}, v{AG} offset:{64*ks}",
                  "s_mov_b64 exec, -1"]
        L.append(g)
    return L

def byte_table(a, dst, idx, table):
    w = [sum(table[4*i+k] << (8*k) for k in range(4)) for i in range(len(table) // 4)]
    a(f"v_and_b32 v{dst}, 7, v{idx}\nv_or_b32 v{dst}, 0x0c0c0c00, v{dst}")
    a(f"s_mov_b32 s{S_CNT}, {hex(w[1])}\nv_mov_b32 v{ACC+4}, {hex(w[0])}")
    if len(w) == 2:
        a(f"v_perm_b32 v{dst}, s{S_CNT}, v{ACC+4}, v{dst}"); return
    a(f"v_perm_b32 v{ACC+5}, s{S_CNT}, v{ACC+4}, v{dst}")
    a(f"s_mov_b32 s{S_CNT}, {hex(w[3])}\nv_mov_b32 v{ACC+4}, {hex(w[2])}\nv_cmp_gt_u32 vcc, 8, v{idx}")
    a(f"v_perm_b32 v{dst}, s{S_CNT}, v{ACC+4}, v{dst}\ns_nop 0\nv_cndmask_b32 v{dst}, v{dst}, v{ACC+5}, vcc")

MAP = {
 "4": f"""s_and_b32 s{S_T0}, s2, 7
    s_lshl_b32 s{S_T0}, s{S_T0}, 2
    s_bfe_u32 s{S_T1}, s2, 0x20003
    s_or_b32 s{S_GRP}, s{S_T0}, s{S_T1}
    s_lshr_b32 s{S_TB}, s2, 5""",
 "s": f"""s_and_b32 s{S_T0}, s2, 7
    s_lshl_b32 s{S_T0}, s{S_T0}, 2
    s_bfe_u32 s{S_T1}, s2, 0x10006
    s_lshl_b32 s{S_T1}, s{S_T1}, 1
    s_or_b32 s{S_GRP}, s{S_T0}, s{S_T1}
    s_lshr_b32 s{S_T0}, s2, 7
    s_bfe_u32 s{S_T1}, s2, 0x10001
    s_xor_b32 s{S_T0}, s{S_T0}, s{S_T1}
    s_xor_b32 s{S_T0}, s{S_T0}, 1
    s_or_b32 s{S_GRP}, s{S_GRP}, s{S_T0}
    s_bfe_u32 s{S_TB}, s2, 0x30003""",
 "8": f"""s_bfe_u32 s{S_T0}, s2, 0x20001
    s_lshl_b32 s{S_T0}, s{S_T0}, 3
    s_bfe_u32 s{S_T1}, s2, 0x30003
    s_or_b32 s{S_GRP}, s{S_T0}, s{S_T1}
    s_and_b32 s{S_T0}, s2, 1
    s_lshl_b32 s{S_T0}, s{S_T0}, 2
    s_lshr_b32 s{S_TB}, s2, 6
    s_or_b32 s{S_TB}, s{S_TB}, s{S_T0}""",
}
def entry(a):
    a(f"""
    s_load_dwordx16 {sr(S_PTR,16)}, s[0:1], 0
    s_load_dwordx4 {sr(S_DBG,4)}, s[0:1], 64
    v_readfirstlane_b32 s{S_W}, v0
    v_and_b32 v1, 63, v0
    {MAP[OPT.get("map", "s")]}
    s_lshr_b32 s{S_B}, s{S_GRP}, 4
    s_and_b32 s{S_P}, s{S_GRP}, 15
    s_lshr_b32 s{S_W}, s{S_W}, 6
    v_lshrrev_b32 v2, 4, v1
    v_and_b32 v3, 15, v1
    """)
    if OPT.get("delay"):
        prefetch(a)
        srd(a, SRD_W, S_PTR + 4, 576 * 1152); srd(a, SRD_G, S_PTR + 10, 576 * 1152); srd(a, SRD_WS, S_DBG + 2, WS_END); srd(a, SRD_O, S_PTR + 14, 2048 * 1152)
        a(f"""
        buffer_load_dword v{PF}, v4, {sr(SRD_W,4)}, 0 offen
        buffer_load_dword v{PF+1}, v4, {sr(SRD_G,4)}, 0 offen
        buffer_load_dword v{PF+2}, v4, {sr(SRD_O,4)}, 0 offen
        s_getpc_b64 s[4:5]
        s_and_b32 s5, s5, 0xffff
        s_mov_b32 s6, 0x6000
        s_mov_b32 s7, 0x00020000
        v_lshlrev_b32 v5, 7, v1
        s_lshl_b32 s{S_T0}, s{S_W}, 13
        buffer_load_dword v{PF+3}, v5, s[4:7], s{S_T0} offen
        v_lshlrev_b32 v5, 18, v1
        buffer_load_dword v{PF+4}, v5, {sr(SRD_WS,4)}, 0 offen
        s_memrealtime s[70:71]
        s_waitcnt lgkmcnt(0)
        s_add_u32 s72, s70, {int(OPT['delay'])}
        """)
        a.label("L_delay")
        a("s_sleep 4\ns_memrealtime s[70:71]\ns_waitcnt lgkmcnt(0)\ns_sub_u32 s71, s72, s70\ns_cmp_gt_i32 s71, 0\ns_cbranch_scc1 L_delay\ns_waitcnt vmcnt(0)")
    a(f"s_cmp_lt_u32 s{S_W}, 8\ns_cbranch_scc1 L_compute")

def prefetch(a):
    a(f"""
    s_cmp_lt_u32 s2, 128
    s_cbranch_scc1 L_nopf
    s_and_b32 s{S_T0}, s2, 127
    s_lshl_b32 s{S_T0}, s{S_T0}, 3
    s_add_u32 s{S_T0}, s{S_T0}, s{S_W}
    s_mul_i32 s{S_T1}, s{S_T0}, {12*128}
    s_add_u32 s{S_T1}, s{S_T1}, {128*3456}
    s_mul_i32 s{S_T0}, s{S_T0}, {18*128}
    v_lshlrev_b32 v4, 7, v1
    s_waitcnt lgkmcnt(0)
    """)
    srd(a, SRD_X, S_PTR, 2048 * 1152)
    srd(a, SRD_W, S_PTR + 2, 576 * 3456)
    srd(a, SRD_G, S_PTR + 8, 576 * 3456)
    a(f"""
    s_mov_b64 exec, 0xfff
    buffer_load_dword v{PF+1}, v4, {sr(SRD_W,4)}, s{S_T1} offen
    buffer_load_dword v{PF+2}, v4, {sr(SRD_G,4)}, s{S_T1} offen
    s_mov_b64 exec, 0x3ffff
    buffer_load_dword v{PF}, v4, {sr(SRD_X,4)}, s{S_T0} offen
    s_mov_b64 exec, -1
    """)
    a.label("L_nopf")

def phase1(a):
    if OPT.get("pf", "late") == "early": prefetch(a)
    a(f"""
    s_lshl_b32 s{S_T3}, s{S_W}, 12
    s_add_u32 s{S_T3}, s{S_T3}, {XST[2]}
    v_lshrrev_b32 v4, 1, v3
    v_xor_b32 v4, v4, v2
    v_lshlrev_b32 v5, 7, v3
    v_add_u32 v5, s{S_T3}, v5
    v_lshl_add_u32 v{AXR}, v4, 4, v5
    v_xor_b32 v4, 4, v4
    v_lshl_add_u32 v{AXR+1}, v4, 4, v5
    v_add_u32 v{AXR+2}, {XST[1]-XST[2]}, v{AXR}
    v_add_u32 v{AXR+3}, {XST[1]-XST[2]}, v{AXR+1}
    v_bfe_u32 v4, v1, 2, 2
    v_and_b32 v5, 3, v1
    v_and_b32 v6, 1, v2
    v_lshlrev_b32 v6, 2, v6
    v_or_b32 v6, v6, v4
    v_lshlrev_b32 v6, 1, v6
    v_lshl_add_u32 v7, v2, 3, v4
    v_lshlrev_b32 v7, 8, v7
    v_add_u32 v7, {WST[0]}, v7
    """)
    u, t = ACC, ACC + 1
    def addr(n):
        a(f"""
        v_lshrrev_b32 v{t}, 1, v{u}
        v_xor_b32 v{t}, v{t}, v6
        v_lshl_add_u32 v{t}, v{t}, 4, v7
        v_and_b32 v{u+2}, 1, v{u}
        v_lshl_add_u32 v{AW+n}, v{u+2}, 3, v{t}
        """)
    a(f"v_lshrrev_b32 v{u}, 1, v5\nv_lshl_add_u32 v{u}, v5, 1, v{u}"); addr(T_QA)
    a(f"v_add_u32 v{u}, 1, v{u}"); addr(T_QB)
    a(f"v_add_u32 v{u}, 9, v{u}"); addr(T_KA)
    a(f"v_add_u32 v{u}, 1, v{u}"); addr(T_KB)
    a(f"v_add_u32 v{u}, 21, v5"); addr(T_VA)
    a(f"v_add_u32 v{u}, 25, v5"); addr(T_VB)
    a(f"v_lshlrev_b32 v{u}, 3, v5\ns_mov_b32 s{S_T0}, 0x1b1d0e04\nv_lshrrev_b32 v{u}, v{u}, s{S_T0}\nv_and_b32 v{u}, 0xff, v{u}"); addr(T_MID)
    a(f"v_lshlrev_b32 v{AG}, 4, v2\nv_add_u32 v{AG}, {GATE_LDS}, v{AG}")
    a(f"s_mov_b32 s{S_EX}, 0xf000f000\ns_mov_b32 s{S_EX+1}, 0xf000f000")
    byte_table(a, EVA, 3, [vpos_dim(d) for d in range(16)])
    byte_table(a, EVB, 3, [vpos_dim(16), vpos_dim(17)] + [vpos_dim(d) for d in range(14)])
    a(f"""
    s_lshr_b32 s{S_T0}, s{S_W}, 1
    s_mul_i32 s{S_T0}, s{S_T0}, {PB}
    s_and_b32 s{S_T1}, s{S_W}, 1
    v_lshrrev_b32 v4, 1, v2
    v_and_b32 v5, 1, v2
    v_mul_u32_u24 v6, {HS}, v4
    v_lshl_add_u32 v7, v5, 5, v3
    v_lshl_add_u32 v6, v7, 4, v6
    s_lshl_b32 s{S_QS}, s{S_T1}, 10
    s_add_u32 s{S_QS}, s{S_QS}, s{S_T0}
    v_add_u32 v{EKM}, s{S_QS}, v6
    s_mul_i32 s{S_QS}, s{S_T1}, {2*VSUB}
    s_add_u32 s{S_QS}, s{S_QS}, s{S_T0}
    s_add_u32 s{S_QS}, s{S_QS}, {VOFF}
    v_mul_u32_u24 v6, 320, v4
    v_lshl_add_u32 v6, v5, 3, v6
    v_add_u32 v6, s{S_QS}, v6
    v_lshl_add_u32 v{EVA}, v{EVA}, 4, v6
    v_lshl_add_u32 v{EVB}, v{EVB}, 4, v6
    v_mov_b32 v6, {HS}
    v_cmp_gt_u32 vcc, 2, v3
    v_lshrrev_b32 v4, 3, v3
    v_mul_u32_u24 v4, 320, v4
    v_cndmask_b32 v6, v6, 0, vcc
    v_add_u32 v{EVB}, v{EVB}, v6
    v_and_b32 v5, 7, v3
    v_lshl_add_u32 v4, v5, 1, v4
    s_add_u32 s{S_CNT}, s{S_QS}, {HS}
    v_add_u32 v4, s{S_CNT}, v4
    s_lshl_b32 s{S_T1}, s{S_T1}, 3
    s_add_u32 s{S_T1}, s{S_T1}, s{S_T0}
    s_add_u32 s{S_T1}, s{S_T1}, {KROFF}
    v_lshlrev_b32 v5, 4, v3
    v_add_u32 v5, s{S_T1}, v5
    v_add_u32 v6, {QIMG}, v5
    v_cmp_eq_u32 vcc, 1, v2
    v_add_u32 v7, 4, v6
    s_nop 0
    v_cndmask_b32 v6, v6, v5, vcc
    v_cmp_eq_u32 vcc, 2, v2
    v_mov_b32 v{ESC}, 1.0
    s_nop 0
    v_cndmask_b32 v6, v6, v4, vcc
    v_cmp_eq_u32 vcc, 3, v2
    v_mov_b32 v5, {hex(f32(QSCALE))}
    s_nop 0
    v_cndmask_b32 v{EMID}, v6, v7, vcc
    v_cmp_eq_u32 vcc, 0, v2
    v_bfe_u32 v4, v1, 2, 1
    v_mul_u32_u24 v4, {HS}, v4
    v_cndmask_b32 v{ESC}, v{ESC}, v5, vcc
    v_and_b32 v5, 3, v1
    v_mul_u32_u24 v5, 320, v5
    v_bfe_u32 v6, v1, 3, 1
    v_mul_u32_u24 v6, {16*(vpos_slot(18)-vpos_slot(19))}, v6
    v_add3_u32 v4, v4, v5, v6
    s_add_u32 s{S_QS}, s{S_QS}, {16*vpos_slot(19)}
    v_add_u32 v{EONE}, s{S_QS}, v4
    v_lshrrev_b32 v4, 5, v1
    v_mul_u32_u24 v4, {HS}, v4
    v_and_b32 v5, 31, v1
    v_lshl_add_u32 v4, v5, 4, v4
    s_add_u32 s{S_T1}, s{S_T1}, 4
    v_add_u32 v{EKC}, s{S_T1}, v4
    s_mov_b32 s{S_QS}, {hex(f32(QSCALE))}
    s_waitcnt lgkmcnt(0)
    """)
    srd(a, SRD_WS, S_DBG + 2, WS_END)
    srd(a, SRD_O, S_PTR + 14, 2048 * 1152)
    att_addr(a)
    if OPT.get("pf", "late") == "late": prefetch(a)
    if OPT.get("tlb"):
        a(f"""
        v_lshlrev_b32 v4, 18, v1
        buffer_load_dword v{PF+3}, v4, {sr(SRD_WS,4)}, 0 offen
        buffer_load_dword v{PF+4}, v4, {sr(SRD_O,4)}, 0 offen
        """)
    stamp(a, 1)
    a("s_barrier")
    stamp(a, 2)
    for g in p1_reads(0):
        for x in g: a(x)
    for ks in range(18):
        n = ks // 2
        a("s_waitcnt lgkmcnt(0)")
        if ks % 2 == 1 and n + 1 < 9:
            a("s_barrier")
            if OPT.get("g1prof"): stamp(a, 5 + n)
        groups = p1_reads(ks + 1) if ks + 1 < 18 else []
        if OPT.get("noreads"): groups = []
        if OPT.get("noxreads"): groups = groups[1:]
        wf = WF + 28 * (ks % 2); x = XF + 8 * (ks % 2)
        i = 0
        for nn in (T_QA, T_QB, T_KA, T_KB, T_VA, T_VB, T_MID):
            for tt in range(2):
                c = vr(acc(nn, tt), 4)
                cin = "0" if ks == 0 else c
                if OPT.get("nomfma") and 0 < ks < 17: pass
                elif nn in (T_VA, T_VB):
                    a(f"v_mfma_f32_16x16x32_bf16 {c}, {vr(x+4*tt,4)}, {vr(wf+4*nn,4)}, {cin}")
                else:
                    a(f"v_mfma_f32_16x16x32_bf16 {c}, {vr(wf+4*nn,4)}, {vr(x+4*tt,4)}, {cin}")
                if i < len(groups):
                    for y in groups[i]: a(y)
                i += 1
    stamp(a, 3)
    a("s_waitcnt vmcnt(0)")
    T = WF
    a(f"v_bfe_u32 v{T+16}, v1, 3, 1\ns_mov_b32 s{S_T0}, 0x3f803f80\nv_mul_lo_u32 v{T+16}, v{T+16}, s{S_T0}\nv_mov_b32 v{T+20}, 0x3f80")
    a(f"v_mov_b32 v{T+17}, v{T+16}\nv_mov_b32 v{T+18}, v{T+16}\nv_mov_b32 v{T+19}, v{T+16}")
    a(f"ds_write_b32 v{EKC}, v{T+20}")
    a(f"s_mov_b64 exec, 0xffff\nds_write_b128 v{EONE}, {vr(T+16,4)}\ns_mov_b64 exec, -1")
    a(f"v_add_u32 v{T+21}, {QIMG}, v{EKM}")
    for tt in range(2):
        t = T + 24 + 16 * tt
        for k, n in enumerate((T_KA, T_KB)):
            c = acc(n, tt)
            a(f"v_cvt_pk_bf16_f32 v{t+2*k}, v{c}, v{c+1}\nv_cvt_pk_bf16_f32 v{t+2*k+1}, v{c+2}, v{c+3}")
        a(f"ds_write_b128 v{EKM}, {vr(t,4)} offset:{256*tt}")
        for k, (n, ad) in enumerate(((T_VA, EVA), (T_VB, EVB))):
            c = acc(n, tt)
            a(f"v_cvt_pk_bf16_f32 v{t+4+2*k}, v{c}, v{c+1}\nv_cvt_pk_bf16_f32 v{t+5+2*k}, v{c+2}, v{c+3}")
            a(f"ds_write_b64 v{ad}, {vr(t+4+2*k,2)} offset:{VSUB*tt}")
        c = acc(T_MID, tt)
        for e in range(4): a(f"v_mul_f32 v{c+e}, v{ESC}, v{c+e}")
        a(f"v_cvt_pk_bf16_f32 v{t+12}, v{c}, v{c+1}\nv_cvt_pk_bf16_f32 v{t+13}, v{c+2}, v{c+3}")
        vo = [VSUB * tt + 16 * vpos_dim(14 + e) for e in range(4)]
        a(f"""
        s_mov_b32 exec_lo, 0
        s_mov_b32 exec_hi, 0xffff
        ds_write_b16 v{EMID}, v{t+12} offset:{vo[0]}
        ds_write_b16_d16_hi v{EMID}, v{t+12} offset:{vo[1]}
        ds_write_b16 v{EMID}, v{t+13} offset:{vo[2]}
        ds_write_b16_d16_hi v{EMID}, v{t+13} offset:{vo[3]}
        s_mov_b32 exec_hi, 0xffff0000
        v_mov_b32 v{t+12}, v{c}
        v_mov_b32 v{t+13}, v{c}
        s_mov_b32 exec_lo, -1
        ds_write_b32 v{EMID}, v{t+12} offset:{256*tt}
        ds_write_b32 v{EMID}, v{t+13} offset:{256*tt+HS}
        s_mov_b64 exec, -1
        """)
        for k, n in enumerate((T_QA, T_QB)):
            c = acc(n, tt)
            for e in range(4): a(f"v_mul_f32 v{c+e}, s{S_QS}, v{c+e}")
            a(f"v_cvt_pk_bf16_f32 v{t+8+2*k}, v{c}, v{c+1}\nv_cvt_pk_bf16_f32 v{t+9+2*k}, v{c+2}, v{c+3}")
        a(f"ds_write_b128 v{T+21}, {vr(t+8,4)} offset:{256*tt}")
    att_pre(a)
    a("s_waitcnt lgkmcnt(0)\ns_barrier")

SB = (8, 40); OA = 72; QM = 104; QR = 112; KM = 116; KR = 120; VF = 124
IDX, AKM, AKR, AV, VG = range(132, 137)
BKM, BKR, BV = 160, 161, 162
TMP = 140
P2_END = 163
ORDER = "E3 s3p lv1 E3 2b lkr E8 w0 s0 E4 s1 E4 m0 E4 s2 lv0 E3 m1 lkm E3"

def att_ops(t):
    par = t % 2
    cur, nxt = SB[par], SB[1 - par]
    pb = lambda x: ((x % 8) // 2) * PB
    return cur, {
     "2b": f"v_mfma_f32_32x32x4_2b_bf16 {vr(nxt,32)}, {vr(KR+2*(1-par),2)}, {vr(QR,2)}, 0",
     "m0": f"v_mfma_f32_32x32x16_bf16 {vr(nxt,16)}, {vr(KM,4)}, {vr(QM,4)}, {vr(nxt,16)}",
     "m1": f"v_mfma_f32_32x32x16_bf16 {vr(nxt+16,16)}, {vr(KM,4)}, {vr(QM+4,4)}, {vr(nxt+16,16)}",
     "s0": f"v_smfmac_f32_32x32x32_bf16 {vr(OA,16)}, {vr(VF,4)}, {vr(cur,8)}, v{IDX}",
     "s1": f"v_smfmac_f32_32x32x32_bf16 {vr(OA,16)}, {vr(VF+4,4)}, {vr(cur+8,8)}, v{IDX}",
     "s2": f"v_smfmac_f32_32x32x32_bf16 {vr(OA+16,16)}, {vr(VF,4)}, {vr(cur+16,8)}, v{IDX}",
     "s3": f"v_smfmac_f32_32x32x32_bf16 {vr(OA+16,16)}, {vr(VF+4,4)}, {vr(cur+24,8)}, v{IDX}",
     "s3p": f"v_smfmac_f32_32x32x32_bf16 {vr(OA+16,16)}, {vr(VF+4,4)}, {vr(nxt+24,8)}, v{IDX}",
     "lkr": f"ds_read_b128 {vr(KR,4)}, v{AKR} offset:{pb(t+2)}" if par == 0 else None,
     "lkm": f"ds_read_b128 {vr(KM,4)}, v{AKM} offset:{pb(t+2)+1024*par}",
     "lv0": f"ds_read_b128 {vr(VF,4)}, v{AV} offset:{pb(t+1)+2*VSUB*(1-par)}",
     "lv1": f"ds_read_b128 {vr(VF+4,4)}, v{AV} offset:{pb(t)+2*VSUB*par+VSUB}",
    }

def att_tile(a, t, hooks=None, skip=()):
    cur, ops = att_ops(t)
    e = 0
    for tok in ORDER.split():
        if hooks and tok in hooks: hooks[tok]()
        if tok[0] == "E":
            for _ in range(int(tok[1:])):
                a(f"v_exp_f32 v{cur+e}, v{cur+e}"); e += 1
        elif tok[0] == "w": a(f"s_waitcnt lgkmcnt({tok[1:]})")
        elif ops[tok] and tok not in skip: a(ops[tok])

def att_addr(a):
    a(f"""
    s_lshr_b32 s{S_T0}, s{S_W}, 2
    s_mul_i32 s{S_T0}, s{S_T0}, {HS}
    v_lshlrev_b32 v4, 4, v1
    v_add_u32 v{BKM}, s{S_T0}, v4
    v_and_b32 v7, 31, v1
    v_lshlrev_b32 v4, 4, v7
    s_add_u32 s{S_T1}, s{S_T0}, {KROFF}
    v_add_u32 v{BKR}, s{S_T1}, v4
    v_min_u32 v7, 19, v7
    v_lshrrev_b32 v4, 2, v7
    v_lshlrev_b32 v4, 3, v4
    s_mov_b32 s{S_T2}, 0x1004000c
    v_lshrrev_b32 v6, v4, s{S_T2}
    v_and_b32 v6, 0xff, v6
    v_and_b32 v4, 3, v7
    v_add_u32 v6, v6, v4
    v_add_u32 v4, 1, v4
    v_and_b32 v4, 3, v4
    v_or_b32 v4, 8, v4
    v_cmp_gt_u32 vcc, 16, v7
    v_lshrrev_b32 v5, 5, v1
    v_mul_u32_u24 v5, 20, v5
    v_cndmask_b32 v4, v4, v6, vcc
    v_add_u32 v4, v4, v5
    s_add_u32 s{S_T1}, s{S_T0}, {VOFF}
    v_lshlrev_b32 v4, 4, v4
    v_add_u32 v{BV}, s{S_T1}, v4
    s_and_b32 s{S_NSL}, s{S_W}, 3
    s_mul_i32 s{S_NSL}, s{S_NSL}, {PB}
    s_add_u32 s{S_NSL}, s{S_NSL}, {QIMG}
    """)

def att_pre(a):
    a(f"""
    v_lshrrev_b32 v5, 5, v1
    v_add_u32 v6, s{S_NSL}, v{BKM}
    v_lshl_add_u32 v7, v5, 3, v{BKR}
    v_add_u32 v7, s{S_NSL}, v7
    v_mov_b32 v{IDX}, 0xdddddddd
    v_mov_b32 v{AKM}, v{BKM}
    v_mov_b32 v{AKR}, v{BKR}
    v_mov_b32 v{AV}, v{BV}
    """)

def att_setup(a):
    a(f"""
    ds_read_b128 {vr(QM,4)}, v6
    ds_read_b128 {vr(QM+4,4)}, v6 offset:1024
    ds_read_b64 {vr(QR,2)}, v7
    ds_read_b128 {vr(KR,4)}, v{BKR}
    ds_read_b128 {vr(KM,4)}, v{BKM}
    """)
    a(f"""
    s_and_b32 s{S_T0}, s{S_W}, 3
    s_lshl_b32 s{S_T1}, s{S_TB}, 2
    s_add_u32 s{S_T0}, s{S_T0}, s{S_T1}
    s_lshl_b32 s{S_T1}, s{S_T0}, 17
    s_lshl_b32 s{S_T2}, s{S_GRP}, 10
    s_add_u32 s{S_T1}, s{S_T1}, s{S_T2}
    s_lshr_b32 s{S_T3}, s{S_W}, 2
    s_lshl_b32 s{S_T2}, s{S_T3}, 9
    s_add_u32 s{S_T1}, s{S_T1}, s{S_T2}
    s_add_u32 s{S_X0}, s{S_T1}, {WS_OM}
    s_add_u32 s{S_X1}, s{S_X0}, 0x10000
    v_bfe_u32 v2, v1, 4, 1
    v_lshlrev_b32 v2, 15, v2
    v_lshrrev_b32 v3, 5, v1
    v_lshl_add_u32 v2, v3, 8, v2
    v_and_b32 v3, 15, v1
    v_lshl_add_u32 v2, v3, 4, v2
    s_lshl_b32 s{S_T0}, s{S_T0}, 9
    s_lshl_b32 s{S_T2}, s{S_GRP}, 14
    s_add_u32 s{S_T0}, s{S_T0}, s{S_T2}
    s_lshl_b32 s{S_T3}, s{S_T3}, 2
    s_add_u32 s{S_T0}, s{S_T0}, s{S_T3}
    s_add_u32 s{S_WOFF}, s{S_T0}, {WS_OR}
    v_lshlrev_b32 v3, 3, v1
    s_lshl_b32 s{S_T0}, s{S_B}, 31
    s_xor_b32 s{S_T0}, s{S_T0}, {hex(f32(-math.log2(math.e)))}
    """)
    s0, s1 = SB
    a(f"s_waitcnt lgkmcnt(2)\nv_mul_f32 v{VG}, s{S_T0}, v{QR+1}\nv_mov_b32 v{QR+1}, 0")
    a(f"ds_read_b128 {vr(VF,4)}, v{AV}\ns_waitcnt lgkmcnt(1)")
    qk = lambda: (a(f"v_mfma_f32_32x32x4_2b_bf16 {vr(s0,32)}, {vr(KR,2)}, {vr(QR,2)}, 0"))
    def mains():
        a(f"v_mfma_f32_32x32x16_bf16 {vr(s0,16)}, {vr(KM,4)}, {vr(QM,4)}, {vr(s0,16)}")
        a(f"v_mfma_f32_32x32x16_bf16 {vr(s0+16,16)}, {vr(KM,4)}, {vr(QM+4,4)}, {vr(s0+16,16)}")
    qk()
    for i in range(20): a(f"v_mov_b32 v{OA+i}, 0")
    mains()
    for i in range(20, 32): a(f"v_mov_b32 v{OA+i}, 0")
    T = TMP
    for blk in range(2):
        b = s0 + 16 * blk; m = T + blk
        a(f"v_max3_f32 v{m}, v{b}, v{b+1}, v{b+2}")
        for i in range(3, 15, 2): a(f"v_max3_f32 v{m}, v{m}, v{b+i}, v{b+i+1}")
        a(f"v_max_f32 v{m}, v{m}, v{b+15}")
    a(f"""
    s_nop 1
    v_permlane32_swap_b32 v{T}, v{T+1}
    v_max_f32 v{T}, v{T}, v{T+1}
    v_cvt_pk_bf16_f32 v{QR+1}, -v{T}, 0
    s_nop 1
    """)
    qk()
    for i in range(8): a(f"v_mov_b32 v{s1+24+i}, 0")
    for i in range(4): a(f"v_mov_b32 v{VF+4+i}, 0")
    a(f"""
    s_lshl_b32 s{S_KVB}, s{S_GRP}, 3
    s_mul_i32 s{S_KVB}, s{S_KVB}, {SLOT}
    s_mov_b64 {sr(S_OK,2)}, -1
    s_mov_b32 s{S_CH}, 0
    s_mov_b32 s{S_NSL}, 0
    s_lshr_b32 s{S_C0}, s2, 5
    s_mul_i32 s{S_C0}, s{S_C0}, 144
    """)
    mains()
    a(f"ds_read_b128 {vr(KM,4)}, v{AKM} offset:1024\nv_exp_f32 v{VG}, v{VG}\ns_nop 0\nv_add_f32 v{VG}, 1.0, v{VG}\nv_rcp_f32 v{VG}, v{VG}")
    a.nop(6)

def att_chunk(a, last=False):
    def sync():
        a(f"""
        s_add_u32 s{S_NSL}, s{S_NSL}, {SLOT}
        s_cmp_eq_u32 s{S_NSL}, {4*SLOT}
        s_cselect_b32 s{S_NSL}, 0, s{S_NSL}
        s_barrier
        v_add_u32 v{AKR}, s{S_NSL}, v{BKR}
        v_add_u32 v{AKM}, s{S_NSL}, v{BKM}
        """)
    for t in range(8):
        hooks = {}; skip = ()
        if not last:
            if t == 6: hooks["lkr"] = sync
            if t == 7: hooks["lv0"] = lambda: a(f"v_add_u32 v{AV}, s{S_NSL}, v{BV}")
        else:
            if t == 1: hooks["2b"] = lambda: a("s_barrier")
            if t == 6: skip = ("lkr", "lkm")
            if t == 7: skip = ("2b", "m0", "m1", "lkm", "lv0"); hooks["s0"] = lambda: a("s_barrier")
        att_tile(a, t, hooks, skip)

def att_finish(a):
    _, ops = att_ops(7)
    a(f"s_nop 1\n{ops['s3']}")
    T = TMP
    a.nop(11)
    a.label("L_att_norm")
    m = T + 2
    a(f"""
    v_mov_b32 v{T}, v{OA+10}
    v_mov_b32 v{T+1}, v{OA+26}
    s_mov_b32 s{S_T0}, {hex(f32(2.0**-60))}
    s_mov_b32 s{S_T1}, {hex(f32(2.0**60))}
    v_permlane32_swap_b32 v{T}, v{T+1}
    v_add_f32 v{m}, |v{OA}|, |v{OA+16}|
    v_cmp_nle_f32 s[4:5], s{S_T0}, v{T}
    v_cmp_nge_f32 s[6:7], s{S_T1}, v{T}
    v_rcp_f32 v{T}, v{T}
    """)
    for i in range(1, 10): a(f"v_add_f32 v{m}, v{m}, |v{OA+i}|\nv_add_f32 v{m}, v{m}, |v{OA+16+i}|")
    a(f"""
    s_mov_b32 s{S_T0}, 0x7f000000
    v_mul_f32 v{T}, v{T}, v{VG}
    v_cmp_nge_f32 vcc, s{S_T0}, v{m}
    v_mov_b32 v{T+1}, v{T}
    s_or_b64 s[4:5], s[4:5], s[6:7]
    s_or_b64 vcc, vcc, s[4:5]
    s_and_b64 vcc, vcc, {sr(S_OK,2)}
    s_cbranch_vccnz L_att_slow
    v_permlane32_swap_b32 v{T}, v{T+1}
    """)
    for blk in range(2):
        o = OA + 16 * blk; f = T + blk; d = T + 4 + 4 * blk
        for i in range(10): a(f"v_mul_f32 v{o+i}, v{f}, v{o+i}")
        for i in range(4): a(f"v_cvt_pk_bf16_f32 v{d+i}, v{o+2*i}, v{o+2*i+1}")
        a(f"buffer_store_dwordx4 {vr(d,4)}, v2, {sr(SRD_WS,4)}, s{S_X0+blk} offen sc1")
        a(f"v_cvt_pk_bf16_f32 v{T+12+blk}, v{o+8}, v{o+9}")
    a(f"s_nop 1\nv_permlane32_swap_b32 v{T+12}, v{T+13}")
    a(f"buffer_store_dword v{T+12}, v3, {sr(SRD_WS,4)}, s{S_WOFF} offen sc1")

def att_slow(a):
    s0 = SB[0]; T = TMP
    M0, M1, GK = T + 16, T + 17, T + 18
    a.label("L_att_slow")
    a(f"""
    s_mov_b64 {sr(S_OK,2)}, 0
    v_mov_b32 v{QR+1}, 0
    v_mov_b32 v{M0}, 0xff800000
    v_mov_b32 v{M1}, 0xff800000
    s_waitcnt vmcnt(0) lgkmcnt(0)
    """)
    for i in range(32): a(f"v_mov_b32 v{OA+i}, 0")
    for ps in range(2):
        a(f"s_mov_b32 s{S_CNT}, 0")
        a.label(f"L_slow_{ps}")
        a(f"""
        s_lshr_b32 s{S_T0}, s{S_CNT}, 1
        s_bfe_u32 s{S_T1}, s{S_CNT}, 0x30003
        s_lshl_b32 s{S_T1}, s{S_T1}, 2
        s_add_u32 s{S_T0}, s{S_T0}, s{S_T1}
        s_mul_i32 s{S_T0}, s{S_T0}, {PB}
        s_add_u32 s{S_T0}, s{S_T0}, s{S_KVB}
        s_and_b32 s{S_T1}, s{S_CNT}, 1
        s_lshl_b32 s{S_T2}, s{S_T1}, 10
        s_add_u32 s{S_T2}, s{S_T2}, s{S_T0}
        buffer_load_dwordx4 {vr(KM,4)}, v{BKM}, {sr(SRD_WS,4)}, s{S_T2} offen sc1
        s_lshl_b32 s{S_T2}, s{S_T1}, 3
        s_add_u32 s{S_T2}, s{S_T2}, s{S_T0}
        buffer_load_dwordx2 {vr(KR,2)}, v{BKR}, {sr(SRD_WS,4)}, s{S_T2} offen sc1
        s_mul_i32 s{S_T2}, s{S_T1}, {2*VSUB}
        s_add_u32 s{S_T2}, s{S_T2}, s{S_T0}
        buffer_load_dwordx4 {vr(VF,4)}, v{BV}, {sr(SRD_WS,4)}, s{S_T2} offen sc1
        buffer_load_dwordx4 {vr(VF+4,4)}, v{BV}, {sr(SRD_WS,4)}, s{S_T2} offen offset:{VSUB} sc1
        s_waitcnt vmcnt(0)
        v_mfma_f32_32x32x4_2b_bf16 {vr(s0,32)}, {vr(KR,2)}, {vr(QR,2)}, 0
        """)
        a.nop(20)
        a(f"v_mfma_f32_32x32x16_bf16 {vr(s0,16)}, {vr(KM,4)}, {vr(QM,4)}, {vr(s0,16)}")
        a(f"v_mfma_f32_32x32x16_bf16 {vr(s0+16,16)}, {vr(KM,4)}, {vr(QM+4,4)}, {vr(s0+16,16)}")
        a.nop(14)
        if ps == 0:
            for blk, m in enumerate((M0, M1)):
                for i in range(0, 16, 2): a(f"v_max3_f32 v{m}, v{m}, v{s0+16*blk+i}, v{s0+16*blk+i+1}")
        else:
            for i in range(32): a(f"v_sub_f32 v{s0+i}, v{s0+i}, v{M0 if i < 16 else M1}")
            for i in range(32): a(f"v_exp_f32 v{s0+i}, v{s0+i}")
            a.nop(2)
            for i in range(4):
                a(f"v_smfmac_f32_32x32x32_bf16 {vr(OA+16*(i//2),16)}, {vr(VF+4*(i%2),4)}, {vr(s0+8*i,8)}, v{IDX}")
            a.nop(14)
        a(f"s_add_u32 s{S_CNT}, s{S_CNT}, 1\ns_cmp_lt_u32 s{S_CNT}, 64\ns_cbranch_scc1 L_slow_{ps}")
        if ps == 0:
            for m in (M0, M1):
                a(f"v_mov_b32 v{GK}, v{m}\ns_nop 1\nv_permlane32_swap_b32 v{GK}, v{m}\nv_max_f32 v{m}, v{m}, v{GK}")
    a("s_branch L_att_norm")

OACC = 8
OD, WD = 8, 5
OF = OACC + 20
WB = OF + 4 * OD
AM, AM8, AM15, AR, AR3 = range(WB + 20 * WD, WB + 20 * WD + 5)
P3_END = AR3 + 1
S_TT, S_TOK = S_GRP, S_TB

def phase3(a):
    stamp(a, 5)
    a("s_waitcnt vmcnt(0)")
    stamp(a, 6)
    a("s_barrier")
    stamp(a, 9)
    a(f"""
    s_and_b32 s{S_TT}, s{S_W}, 3
    s_lshr_b32 s{S_B}, s{S_W}, 2
    s_and_b32 s{S_T0}, s2, 7
    s_lshl_b32 s{S_T0}, s{S_T0}, 2
    s_bfe_u32 s{S_T1}, s2, 0x20003
    s_add_u32 s{S_T0}, s{S_T0}, s{S_T1}
    s_lshl_b32 s{S_T0}, s{S_T0}, 2
    s_add_u32 s{S_TOK}, s{S_T0}, s{S_TT}
    v_lshrrev_b32 v2, 4, v1
    v_bfe_u32 v3, v1, 2, 2
    v_and_b32 v4, 3, v1
    v_lshlrev_b32 v4, 3, v4
    s_mul_i32 s{S_T0}, s{S_B}, {576*144}
    v_and_b32 v5, 1, v2
    v_lshl_add_u32 v5, v5, 2, v3
    v_mul_u32_u24 v5, 288, v5
    v_add_u32 v5, v5, v4
    v_lshrrev_b32 v6, 1, v2
    v_mul_u32_u24 v7, 2592, v6
    v_add3_u32 v{AM}, v5, v7, s{S_T0}
    v_add_u32 v{AM8}, {8*5184}, v{AM}
    v_add_u32 v{AM15}, {15*5184}, v{AM}
    v_and_b32 v6, s{S_B}, v6
    v_cmp_eq_u32 vcc, 1, v6
    v_mul_u32_u24 v7, 5184, v2
    v_lshrrev_b32 v6, 1, v3
    v_cndmask_b32 v{AM15}, v{AM15}, v5, vcc
    v_and_b32 v5, 1, v3
    v_add_u32 v5, 16, v5
    v_mul_u32_u24 v5, 144, v5
    v_add_u32 v5, v5, v4
    v_mul_u32_u24 v4, 2592, v6
    v_add3_u32 v7, v7, v4, v5
    v_add_u32 v{AR}, s{S_T0}, v7
    v_add_u32 v{AR3}, {12*5184}, v{AR}
    v_lshrrev_b32 v4, 3, v1
    v_lshl_add_u32 v4, s{S_B}, 3, v4
    v_cmp_eq_u32 vcc, 15, v4
    v_lshlrev_b32 v2, 4, v1
    v_lshrrev_b32 v3, 4, v1
    v_cndmask_b32 v{AR3}, v{AR3}, v5, vcc
    v_lshlrev_b32 v3, 14, v3
    v_and_b32 v4, 15, v1
    v_lshl_add_u32 v3, v4, 3, v3
    s_lshl_b32 s{S_X0}, s{S_TOK}, 15
    s_lshl_b32 s{S_T0}, s{S_B}, 14
    s_add_u32 s{S_X0}, s{S_X0}, s{S_T0}
    s_add_u32 s{S_X0}, s{S_X0}, {WS_OM}
    s_lshl_b32 s{S_X1}, s{S_B}, 18
    s_lshl_b32 s{S_T0}, s{S_TOK}, 7
    s_add_u32 s{S_X1}, s{S_X1}, s{S_T0}
    s_add_u32 s{S_X1}, s{S_X1}, {WS_OR}
    """)
    steps = [16] + list(range(16)) + [17]
    def wreads(k):
        st = steps[k]; wb = WB + 20 * (k % WD); L = []
        for t in range(5):
            g = []
            for i in range(2):
                if st < 8: ad, off = AM, 5184 * st + 144 * i
                elif st < 15: ad, off = AM8, 5184 * (st - 8) + 144 * i
                elif st == 15: ad, off = AM15, 144 * i
                elif (st, i) == (17, 1): ad, off = AR3, 0
                else: ad, off = AR, 5184 * (8 * (st - 16) + 4 * i)
                g.append(f"ds_read_b64_tr_b16 {vr(wb+4*t+2*i,2)}, v{ad} offset:{off+32*t}")
            L.append(g)
        return L
    for k in range(2):
        for g in wreads(k):
            for x in g: a(x)
    a("s_waitcnt lgkmcnt(0)\ns_barrier")
    for k in range(2, WD):
        for g in wreads(k):
            for x in g: a(x)
    a(f"""
    v_lshlrev_b32 v6, 4, v1
    s_mul_i32 s{S_T0}, s{S_TT}, 5120
    s_add_u32 s{S_T0}, s{S_T0}, 5184
    v_add_u32 v6, s{S_T0}, v6
    v_and_b32 v7, 15, v1
    s_lshl_b32 s{S_T0}, s{S_TOK}, 4
    v_add_u32 v7, s{S_T0}, v7
    v_mul_u32_u24 v7, 1152, v7
    v_add_u32 v7, s{S_C0}, v7
    v_lshrrev_b32 v4, 4, v1
    v_lshl_add_u32 v5, v4, 3, v7
    v_lshrrev_b32 v4, 5, v1
    v_lshl_add_u32 v7, v4, 4, v7
    v_bfe_u32 v4, v1, 4, 1
    v_lshl_add_u32 v4, v4, 5, v7
    s_waitcnt lgkmcnt(0)
    s_barrier
    """)
    stamp(a, 10)
    nload = [1 if st < 16 else 2 for st in steps]
    def oload(k):
        st = steps[k]; d = OF + 4 * (k % OD)
        if st < 16:
            if st and st % 4 == 0: a(f"s_add_u32 s{S_X0}, s{S_X0}, 4096")
            a(f"buffer_load_dwordx4 {vr(d,4)}, v2, {sr(SRD_WS,4)}, s{S_X0} offen offset:{1024*(st%4)} sc1")
        else:
            for i in range(2):
                a(f"buffer_load_dwordx2 {vr(d+2*i,2)}, v3, {sr(SRD_WS,4)}, s{S_X1} offen sc1")
                a(f"s_add_u32 s{S_X1}, s{S_X1}, 0x10000")
    for k in range(OD): oload(k)
    for k in range(18):
        groups = wreads(k + WD) if k + WD < 18 else []
        lg = min(15, 10 * len([j for j in range(k + 1, min(k + WD, 18)) if j >= WD]))
        if k == 0: stamp(a, 13)
        a(f"s_waitcnt vmcnt({sum(nload[k+1:min(k+OD, 18)])}) lgkmcnt({lg})")
        if k == 0: stamp(a, 14)
        if k == 9: stamp(a, 15)
        wb = WB + 20 * (k % WD)
        for t in range(5):
            c = vr(OACC + 4 * t, 4)
            a(f"v_mfma_f32_16x16x32_bf16 {c}, {vr(wb+4*t,4)}, {vr(OF+4*(k%OD),4)}, {'0' if k == 0 else c}")
            if t < len(groups):
                for y in groups[t]: a(y)
        if k + OD < 18: oload(k + OD)
        if k == 6: a("s_barrier")
    stamp(a, 11)
    T = OF
    a(f"s_cmp_eq_u32 s{S_B}, 0\ns_cbranch_scc0 L_p3_b")
    def fin(tiles, give, off):
        a.nop(6)
        for t in give: a(f"ds_write_b128 v6, {vr(OACC+4*t,4)} offset:{1024*t}")
        a("s_waitcnt lgkmcnt(0)\ns_barrier")
        for k, t in enumerate(tiles): a(f"ds_read_b128 {vr(T+4*k,4)}, v6 offset:{1024*t}")
        for k, t in enumerate(tiles):
            a(f"s_waitcnt lgkmcnt({len(tiles)-1-k})")
            for e in range(4): a(f"v_add_f32 v{OACC+4*t+e}, v{OACC+4*t+e}, v{T+4*k+e}")
        d = T + 12
        t0, t1 = tiles[0], tiles[1]
        a(f"""
        v_cvt_pk_bf16_f32 v{d}, v{OACC+4*t0}, v{OACC+4*t0+1}
        v_cvt_pk_bf16_f32 v{d+1}, v{OACC+4*t0+2}, v{OACC+4*t0+3}
        v_cvt_pk_bf16_f32 v{d+2}, v{OACC+4*t1}, v{OACC+4*t1+1}
        v_cvt_pk_bf16_f32 v{d+3}, v{OACC+4*t1+2}, v{OACC+4*t1+3}
        s_nop 1
        v_permlane16_swap_b32 v{d}, v{d+2}
        v_permlane16_swap_b32 v{d+1}, v{d+3}
        buffer_store_dwordx4 {vr(d,4)}, v4, {sr(SRD_O,4)}, 0 offen offset:{off}
        """)
        if len(tiles) == 3:
            t2 = tiles[2]
            a(f"""
            v_cvt_pk_bf16_f32 v{d+4}, v{OACC+4*t2}, v{OACC+4*t2+1}
            v_cvt_pk_bf16_f32 v{d+5}, v{OACC+4*t2+2}, v{OACC+4*t2+3}
            s_mov_b32 exec_hi, 0
            buffer_store_dwordx2 {vr(d+4,2)}, v5, {sr(SRD_O,4)}, 0 offen offset:128
            """)
        if PROF: a("s_waitcnt vmcnt(0)")
        stamp(a, 12); stamp(a, 17, True); stamp_out(a)
        a("s_endpgm")
    fin((0, 1, 4), (2, 3), 0)
    a.label("L_p3_b")
    fin((2, 3), (0, 1, 4), 64)

WPIECE = 864
def loader(a):
    AD0, AD1, AX0, AX1, LA, DW, FA, FL, Z = range(8, 17)
    BUF = 24
    sWS, sXS, sWO, sXO = (64, 65, 66), (33, 34, 35), 36, 37
    sM, sS, sN, sO = 38, 40, 41, 36
    a("s_setprio 3")
    def wsrc(dst, hi):
        a(f"""
        v_lshlrev_b32 v4, 1, v2
        v_or_b32 v4, {8*hi}, v4
        v_xor_b32 v4, v4, v3
        v_min_u32 v4, 14, v4
        v_mul_u32_u24 v5, 52, v4
        v_lshrrev_b32 v5, 8, v5
        v_lshlrev_b32 v4, 4, v4
        v_mul_u32_u24 v6, 1072, v5
        v_add_u32 v4, v4, v6
        v_and_b32 v5, 2, v5
        v_lshlrev_b32 v5, 2, v5
        v_sub_u32 v4, v4, v5
        v_mul_u32_u24 v5, 3456, v2
        v_add_u32 v{dst}, v4, v5
        """)
    wsrc(AD0, 0); wsrc(AD1, 1)
    a(f"""
    v_lshrrev_b32 v4, 3, v1
    v_mul_u32_u24 v4, 1152, v4
    v_and_b32 v5, 7, v1
    v_xor_b32 v5, v5, v2
    v_lshl_add_u32 v{AX0}, v5, 4, v4
    v_xor_b32 v5, 4, v5
    v_lshl_add_u32 v4, v5, 4, v4
    v_add_u32 v{AX1}, {8*1152}, v4
    v_lshlrev_b32 v{LA}, 4, v1
    s_mul_i32 s{sWO}, s{S_P}, 72
    s_mul_i32 s{sXO}, s{S_TB}, {256*1152}
    s_mov_b32 m0, {GATE_LDS}
    s_waitcnt lgkmcnt(0)
    s_cmp_eq_u32 s{S_B}, 0
    s_cselect_b32 s{S_PTR+2}, s{S_PTR+2}, s{S_PTR+8}
    s_cselect_b32 s{S_PTR+3}, s{S_PTR+3}, s{S_PTR+9}
    """)
    srd(a, SRD_W, S_PTR + 2, 576 * 3456)
    srd(a, SRD_X, S_PTR, 2048 * 1152)
    srd(a, SRD_G, S_PTR + 12, 1152)
    a(f"buffer_load_dwordx4 v{LA}, {sr(SRD_G,4)}, 0 offen lds")
    a(f"buffer_load_dwordx4 v{LA}, {sr(SRD_G,4)}, 0 offen offset:1024 lds")
    for i in range(3): a(f"s_mov_b32 s{sWS[i]}, {WST[i]}\ns_mov_b32 s{sXS[i]}, {XST[i]}")
    srd(a, SRD_WS, S_DBG + 2, WS_END)
    srd(a, SRD_O, S_DBG, 256)
    a(f"v_mov_b32 v{Z}, 0\nv_lshlrev_b32 v{FA}, 2, v1\ns_mov_b32 s{sN}, 0")
    a(f"s_cmp_eq_u32 s2, 0\ns_cselect_b32 s{S_T3}, 2, 15")
    DW_ = int(OPT.get("dw", 4))
    npc = (0 if OPT.get("now") else 2) + (0 if OPT.get("nox") else 4)
    def part(w0, w1):
        for w in range(w0, w1):
            a("s_waitcnt vmcnt(57)")
            for h in range(0 if OPT.get("now") else 2):
                a(f"""
                s_add_u32 m0, s{sWS[0]}, {h*8192 + w*1024}
                s_add_u32 s{S_T0}, s{sWO}, {(32*h + 4*w)*3456}
                buffer_load_dwordx4 v{AD0 + ((w >> 1) & 1)}, {sr(SRD_W,4)}, s{S_T0} offen lds
                """)
            for u in range(0 if OPT.get("nox") else 4):
                a(f"""
                s_add_u32 m0, s{sXS[0]}, {w*4096 + u*1024}
                s_add_u32 s{S_T0}, s{sXO}, {(32*w + 16*(u >> 1))*1152}
                buffer_load_dwordx4 v{AX0 + (u & 1)}, {sr(SRD_X,4)}, s{S_T0} offen lds
                """)
    a.label("L_ld_pair")
    part(0, DW_)
    a(f"s_cmp_eq_u32 s{sN}, 0\ns_cbranch_scc1 L_ld_first\ns_waitcnt vmcnt({npc*DW_})\ns_barrier")
    a(f"s_cmp_eq_u32 s{sN}, s{S_T3}\ns_cbranch_scc1 L_ld_ready")
    a.label("L_ld_second")
    part(DW_, 8)
    for r in (sWS, sXS):
        a(f"s_mov_b32 s{S_T0}, s{r[0]}\ns_mov_b32 s{r[0]}, s{r[1]}\ns_mov_b32 s{r[1]}, s{r[2]}\ns_mov_b32 s{r[2]}, s{S_T0}")
    a(f"""
    s_add_u32 s{sWO}, s{sWO}, {64*3456}
    s_add_u32 s{sXO}, s{sXO}, 128
    s_add_u32 s{sN}, s{sN}, 1
    s_cmp_lt_u32 s{sN}, 9
    s_cbranch_scc1 L_ld_pair
    s_waitcnt vmcnt(0)
    s_barrier
    """)
    rdy = f"buffer_load_dword v{FL}, v{Z}, {sr(SRD_O,4)}, 0 offen sc1"
    a(f"""
    s_mov_b64 exec, 1
    {rdy}
    s_lshl_b32 s{S_KVB}, s{S_GRP}, 3
    s_add_u32 s{sO}, s{S_KVB}, s{S_TB}
    s_mul_i32 s{sO}, s{sO}, {SLOT}
    s_mul_i32 s{S_KVB}, s{S_KVB}, {SLOT}
    s_lshl_b32 s{S_X1}, s{S_GRP}, 7
    s_add_u32 s{S_X1}, s{S_X1}, {WS_F1}
    s_lshl_b32 s{S_X0}, s{S_TB}, 2
    s_add_u32 s{S_X0}, s{S_X0}, s{S_X1}
    """)
    spin(a, "rdy", rdy, FL)
    a(f"""
    s_mov_b64 exec, -1
    v_mul_u32_u24 v2, 57, v1
    v_lshrrev_b32 v2, 9, v2
    v_mul_u32_u24 v2, {1152 - 144}, v2
    v_lshl_add_u32 v2, v1, 4, v2
    s_lshr_b32 s{S_C0}, s2, 5
    s_mul_i32 s{S_C0}, s{S_C0}, 144
    v_add_u32 v{DW}, s{S_C0}, v2
    s_barrier
    """)
    def flag(soff):
        a(f"v_mov_b32 v{FL}, 1\ns_mov_b64 exec, 1\nbuffer_store_dword v{FL}, v{Z}, {sr(SRD_WS,4)}, s{soff} offen sc1\ns_mov_b64 exec, -1")
    def publish():
        rd = lambda i: a(f"ds_read_b128 {vr(BUF+4*(i%24),4)}, v{LA} offset:{1024*i}")
        for i in range(12): rd(i)
        for i in range(40):
            if i + 12 < 40: rd(i + 12)
            a(f"s_waitcnt lgkmcnt({min(12, 39 - i)})")
            a(f"buffer_store_dwordx4 {vr(BUF+4*(i%24),4)}, v{LA}, {sr(SRD_WS,4)}, s{sO} offen offset:{1024*(i%4)} sc1")
            if i % 4 == 3: a(f"s_add_u32 s{sO}, s{sO}, 4096")
        stamp(a, 13)
        a("s_waitcnt vmcnt(0)")
        flag(S_X0); stamp(a, 5)
    def kv_setup(c):
        a(f"""
        s_cmp_gt_u32 s{S_TB}, {(c - 1) % 8}
        s_cselect_b32 s{S_T0}, {(c - 1) % 8}, {c % 8}
        s_mul_i32 s{S_T0}, s{S_T0}, {SLOT}
        s_add_u32 s{sS}, s{S_T0}, s{S_KVB}
        s_mov_b32 s{sM}, {(c % 4) * SLOT}
        """)
    def kv_pieces(n):
        lab = a.uid("L_kv")
        a(f"s_mov_b32 s{sN}, {n // 4}")
        a.label(lab)
        a(f"s_waitcnt vmcnt(59)\ns_mov_b32 m0, s{sM}\ns_add_u32 s{sM}, s{sM}, 4096")
        for i in range(4): a(f"buffer_load_dwordx4 v{LA}, {sr(SRD_WS,4)}, s{sS} offen offset:{1024*i} sc1 lds")
        a(f"s_add_u32 s{sS}, s{sS}, 4096\ns_sub_u32 s{sN}, s{sN}, 1\ns_cmp_lg_u32 s{sN}, 0\ns_cbranch_scc1 {lab}")
    ld1 = f"buffer_load_dword v{FL}, v{FA}, {sr(SRD_WS,4)}, s{S_X1} offen sc1"
    def need(tag, c):
        a(f"s_cmp_gt_u32 s{S_TB}, {c-1}\ns_cselect_b64 exec, {1 << (c-1)}, {1 << c}\n{ld1}")
        spin(a, tag, ld1, FL)
        a("s_mov_b64 exec, -1")
    a(f"s_cmp_ge_u32 s{S_TB}, 3\ns_cbranch_scc1 L_first_chunk")
    a.label("L_publish")
    publish()
    a(f"s_cmp_ge_u32 s{S_TB}, 3\ns_cbranch_scc1 L_published")
    a.label("L_first_chunk")
    need("kv1", 1); stamp(a, 6)
    kv_setup(1); kv_pieces(40)
    a("s_waitcnt vmcnt(0)")
    stamp(a, 14)
    a("s_barrier")
    stamp(a, 15)
    need("kv2", 2)
    kv_setup(2); kv_pieces(40)
    a(f"s_waitcnt vmcnt(20)\ns_cmp_ge_u32 s{S_TB}, 3\ns_cbranch_scc1 L_publish")
    a.label("L_published")
    a(f"s_waitcnt vmcnt(0)\ns_barrier\ns_mov_b64 exec, 0xff\n{ld1}")
    spin(a, "kv3", ld1, FL)
    a("s_mov_b64 exec, -1")
    kv_setup(3); kv_pieces(40)
    for c in range(4, int(OPT.get('nch', 8))):
        kv_setup(c); kv_pieces(40)
        a("s_waitcnt vmcnt(40)\ns_barrier")
    def wo(b, n0, n1, dst=None):
        lab = a.uid("L_wo")
        p = S_PTR + 4 + 6 * b
        a(f"""
        s_mov_b32 s{SRD_G}, s{p}
        s_and_b32 s{SRD_G+1}, s{p+1}, 0xffff
        s_mov_b32 s{SRD_G+2}, {576*1152}
        s_mov_b32 s{sS}, {n0*6*1152}
        s_mov_b32 s{sM}, {(96*b + n0)*WPIECE if dst is None else dst}
        """)
        a.label(lab)
        a(f"""
        s_waitcnt vmcnt(60)
        s_mov_b32 m0, s{sM}
        s_add_u32 s{sM}, s{sM}, {WPIECE}
        buffer_load_dwordx4 v{DW}, {sr(SRD_G,4)}, s{sS} offen lds
        s_add_u32 s{sS}, s{sS}, {6*1152}
        s_cmp_lt_u32 s{sS}, {n1*6*1152}
        s_cbranch_scc1 {lab}
        """)
    a("s_mov_b32 exec_hi, 0x3fffff")
    wo(0, 0, 47)
    a("s_waitcnt vmcnt(47)\ns_barrier")
    wo(0, 47, 94)
    a("s_barrier")
    wo(0, 94, 96); wo(1, 0, 46)
    a(f"""
    s_lshl_b32 s{S_X0}, s{S_TB}, 7
    s_lshl_b32 s{S_T0}, s{S_GRP}, 2
    s_add_u32 s{S_X0}, s{S_X0}, s{S_T0}
    s_add_u32 s{S_X0}, s{S_X0}, {WS_F2}
    s_and_b32 s{S_X1}, s2, 7
    s_lshl_b32 s{S_X1}, s{S_X1}, 7
    s_add_u32 s{S_X1}, s{S_X1}, {WS_F2}
    s_barrier
    """)
    wo(1, 46, 93)
    a("s_waitcnt vmcnt(0)\ns_barrier")
    flag(S_X0); stamp(a, 9)
    a("s_mov_b32 exec_hi, 0x3fffff\ns_barrier")
    wo(1, 93, 96, dst=0)
    ld2 = f"buffer_load_dword v{FL}, v{FA}, {sr(SRD_WS,4)}, s{S_X1} offen sc1"
    a(f"s_mov_b32 exec_hi, 0\n{ld2}")
    spin(a, "o", ld2, FL)
    stamp(a, 10)
    a("s_barrier")
    stamp_out(a)
    a("s_endpgm")
    a.label("L_ld_first")
    a(f"""
    s_waitcnt vmcnt(56)
    s_cmp_lg_u32 s2, 0
    s_cbranch_scc1 L_ld_second
    v_mov_b32 v{BUF}, 0
    v_mov_b32 v{BUF+1}, 0
    v_mov_b32 v{BUF+2}, 0
    v_mov_b32 v{BUF+3}, 0
    s_mov_b32 s{S_T0}, {WS_F1}
    """)
    for i in range(4): a(f"buffer_store_dwordx4 {vr(BUF,4)}, v{LA}, {sr(SRD_WS,4)}, s{S_T0} offen offset:{1024*i} sc1")
    a(f"""
    s_mov_b32 s{S_T0}, {WS_F2}
    buffer_store_dwordx4 {vr(BUF,4)}, v{LA}, {sr(SRD_WS,4)}, s{S_T0} offen sc1
    s_branch L_ld_second
    """)
    a.label("L_ld_ready")
    a(f"""
    v_mov_b32 v{FL}, 1
    s_mov_b64 exec, 1
    buffer_store_dword v{FL}, v{Z}, {sr(SRD_O,4)}, 0 offen sc1
    s_mov_b64 exec, -1
    s_branch L_ld_second
    """)

def build():
    a = Asm()
    a("s_cmp_ge_u32 s2, 256\ns_cbranch_scc1 L_exit")
    stamp(a, 0); stamp(a, 16, True)
    entry(a)
    a.late = True
    loader(a)
    a.late = False
    a.label("L_compute")
    phase1(a); stamp(a, 4); a.late = True
    att_setup(a)
    stamp(a, 7); stamp(a, 18, True)
    if OPT.get("align"): a(".p2align 6")
    a.label("L_att_loop")
    att_chunk(a)
    a(f"s_add_u32 s{S_CH}, s{S_CH}, 1\ns_cmp_lt_u32 s{S_CH}, {int(OPT.get('nch', 8)) - 1}\ns_cbranch_scc1 L_att_loop")
    att_chunk(a, last=True)
    stamp(a, 8); stamp(a, 19, True)
    att_finish(a); phase3(a)
    att_slow(a)
    a.label("L_exit"); a("s_endpgm")
    return a, max(P1_END, P2_END, P3_END)

def emit(path):
    a, nv = build()
    label = NAME + "_kernel"
    nv4 = (nv + 3) // 4 * 4
    s = open(f"cdna_kernels/{NAME}.s.ref").read().split("; Override launch")[0]
    s += "; @launch grid=(256,1,1) block=(576,1,1) lds=163840\n"
    s += f""".amdgcn_target "amdgcn-amd-amdhsa--gfx950"
.text
.globl {label}
.p2align 8
.type {label},@function
{label}:
{a.text()}.section .rodata,"a"
.p2align 6
.amdhsa_kernel {label}
  .amdhsa_next_free_vgpr {nv4}
  .amdhsa_next_free_sgpr {102 if PROF or OPT.get('delay') else 72}
  .amdhsa_accum_offset {nv4}
  .amdhsa_group_segment_fixed_size 0
  .amdhsa_kernarg_size 80
  .amdhsa_user_sgpr_count 2
  .amdhsa_user_sgpr_kernarg_segment_ptr 1
  .amdhsa_system_sgpr_workgroup_id_x 1
.end_amdhsa_kernel
"""
    errs = check_hazards(a.lines) + check_waits(a.lines)
    for e in errs: print(e)
    open(path, "w").write(s)
    print("wrote", path, "checks", "FAILED" if errs else "OK", len(a.lines), "lines", nv, "vgprs")

if __name__ == "__main__":
    for x in list(sys.argv):
        if x.startswith("-O"):
            k, v = (x[2:].split("=") + ["1"])[:2]; OPT[k] = v.replace("_", " "); sys.argv.remove(x)
    if "--prof" in sys.argv: PROF = True; sys.argv.remove("--prof")
    emit(sys.argv[1] if len(sys.argv) > 1 else f"cdna_kernels/{NAME}.s")
```

```python
import sys, math, struct
from asmlib import Asm, vr, sr, check_hazards, check_waits

NAME = "gated_mix__softmax_full_mha__softmax_full_mha__prompt"
def f32(x): return struct.unpack("<I", struct.pack("<f", x))[0]

VSUB = 640
VOFF, KROFF = 2048, 2048 + 4 * VSUB
PB = KROFF + 512
HS = 4 * PB
SLOT = 2 * HS
QIMG = 3 * SLOT
WST = (8192, 24576, 40960)
XST = (90112, 122880, 57344)
GATE_LDS = 155648
WS_KV = 0
WS_OM = 256 * SLOT
WS_OR = WS_OM + 128 * 32 * 1024
WS_F1 = WS_OR + 32 * 2048 * 8
WS_F2 = WS_F1 + 4096
WS_END = WS_F2 + 1024
QSCALE = math.log2(math.e) / math.sqrt(18.0)
SPIN_MAX = 1 << 18
def vpos_slot(s): return 12 + s if s < 4 else s - 4 if s < 12 else s + 4 if s < 16 else s - 7 if s < 19 else 8
def vslot_dim(d): return 8 * (d & 1) + (d >> 1) if d < 16 else d
def vpos_dim(d): return vpos_slot(vslot_dim(d))

PROF = False
OPT = {}
WS_PROF = WS_END
def stamp(a, i, cyc=False):
    if not PROF: return
    if OPT.get("g1prof") and 5 <= i <= 12 and getattr(a, "late", False): return
    a(f"{'s_memtime' if cyc else 's_memrealtime'} s[70:71]\ns_waitcnt lgkmcnt(0)\ns_mov_b32 s{72+i}, s70")
def stamp_out(a, n=24):
    if not PROF: return
    if OPT.get("dbgprof"):
        lab = a.uid("L_nodbg")
        a(f"s_lshl_b32 s70, s2, 4\ns_add_u32 s70, s70, s{S_W}\ns_cmp_lg_u32 s70, {16*int(OPT['dbgprof'])}\ns_cbranch_scc1 {lab}")
        srd(a, SRD_G, S_DBG, 256)
        a("s_mov_b64 exec, 1\nv_mov_b32 v3, 0")
        for i in range(1, 13):
            a(f"s_sub_u32 s71, s{72+i}, s72\nv_mov_b32 v2, s71\nbuffer_store_dword v2, v3, s[16:19], 0 offen offset:{4*i}")
        a(f"s_sub_u32 s71, s{72+19}, s{72+18}\nv_mov_b32 v2, s71\nbuffer_store_dword v2, v3, s[16:19], 0 offen offset:52")
        a(f"s_sub_u32 s71, s{72+17}, s{72+16}\nv_mov_b32 v2, s71\nbuffer_store_dword v2, v3, s[16:19], 0 offen offset:56")
        a.label(lab)
        return
    a(f"s_getreg_b32 s94, hwreg(HW_REG_HW_ID)\ns_getreg_b32 s95, hwreg(HW_REG_XCC_ID)")
    a(f"s_lshl_b32 s70, s2, 4\ns_add_u32 s70, s70, s{S_W}\ns_lshl_b32 s70, s70, 7\ns_add_u32 s70, s70, {WS_PROF}")
    a("s_mov_b64 exec, 1\ns_mov_b32 s14, 0x10000000\nv_mov_b32 v3, 0")
    for i in range(n):
        a(f"v_mov_b32 v2, s{72+i}\nbuffer_store_dword v2, v3, s[12:15], s70 offen offset:{4*i}")

SRD_X, SRD_W, SRD_WS, SRD_G, SRD_O = 4, 8, 12, 16, 20
S_W, S_TB, S_GRP, S_B, S_P = 24, 25, 26, 27, 28
S_T0, S_T1, S_T2, S_T3 = 29, 30, 31, 32
S_X0, S_X1, S_WOFF, S_QS = 33, 34, 35, 36
S_CH, S_M0, S_KVB, S_SOFF, S_CNT = 37, 38, 39, 40, 41
S_EX = 42
S_PTR = 44
S_DBG = 60
S_MSTEP, S_SSTEP, S_NSL, S_C0 = 64, 65, 66, 67
S_OK = 68

def srd(a, d, ptr, size):
    a(f"s_mov_b32 s{d}, s{ptr}\ns_and_b32 s{d+1}, s{ptr+1}, 0xffff\ns_mov_b32 s{d+2}, {size}\ns_mov_b32 s{d+3}, 0x00020000")

def spin(a, tag, load, reg):
    a(f"s_mov_b32 s{S_CNT}, {SPIN_MAX}")
    a.label(f"L_spin_{tag}")
    a(f"""
    s_waitcnt vmcnt(0)
    v_cmp_eq_u32 vcc, 0, v{reg}
    s_cbranch_vccz L_got_{tag}
    s_sleep {OPT.get('slp', 1)}
    {load}
    s_sub_u32 s{S_CNT}, s{S_CNT}, 1
    s_cmp_lg_u32 s{S_CNT}, 0
    s_cbranch_scc1 L_spin_{tag}
    s_waitcnt vmcnt(0)
    """)
    a.label(f"L_got_{tag}")

ACC = 8
WF = ACC + 56
XF = WF + 56
AW = XF + 16
AG, AXR = AW + 7, AW + 8
EKM, EVA, EVB, EMID, EONE, EKC, ESC = range(AW + 12, AW + 19)
PF = ESC + 1
P1_END = PF + 5
T_QA, T_QB, T_KA, T_KB, T_VA, T_VB, T_MID = range(7)
acc = lambda n, tt: ACC + (2 * n + tt) * 4

def p1_reads(ks):
    wf = WF + 28 * (ks % 2); xf = XF + 8 * (ks % 2)
    st = (ks // 2) % 3
    off = WST[st] - WST[0] + (ks % 2) * 8192
    xa, xo = (AXR + 2, 0) if st == 1 else (AXR, XST[st] - XST[2])
    L = [[f"ds_read_b128 {vr(xf+4*tt,4)}, v{xa+ks%2} offset:{xo + tt*2048}" for tt in range(2)]]
    for n in (T_QA, T_QB, T_KA, T_KB, T_VA, T_VB, T_MID):
        g = [f"ds_read_b64_tr_b16 {vr(wf+4*n,2)}, v{AW+n} offset:{off}",
             f"ds_read_b64_tr_b16 {vr(wf+4*n+2,2)}, v{AW+n} offset:{off+1024}"]
        if n == T_MID:
            g += [f"s_mov_b64 exec, {sr(S_EX,2)}",
                  f"ds_read_b128 {vr(wf+4*n,4)}, v{AG} offset:{64*ks}",
                  "s_mov_b64 exec, -1"]
        L.append(g)
    return L

def byte_table(a, dst, idx, table):
    w = [sum(table[4*i+k] << (8*k) for k in range(4)) for i in range(len(table) // 4)]
    a(f"v_and_b32 v{dst}, 7, v{idx}\nv_or_b32 v{dst}, 0x0c0c0c00, v{dst}")
    a(f"s_mov_b32 s{S_CNT}, {hex(w[1])}\nv_mov_b32 v{ACC+4}, {hex(w[0])}")
    if len(w) == 2:
        a(f"v_perm_b32 v{dst}, s{S_CNT}, v{ACC+4}, v{dst}"); return
    a(f"v_perm_b32 v{ACC+5}, s{S_CNT}, v{ACC+4}, v{dst}")
    a(f"s_mov_b32 s{S_CNT}, {hex(w[3])}\nv_mov_b32 v{ACC+4}, {hex(w[2])}\nv_cmp_gt_u32 vcc, 8, v{idx}")
    a(f"v_perm_b32 v{dst}, s{S_CNT}, v{ACC+4}, v{dst}\ns_nop 0\nv_cndmask_b32 v{dst}, v{dst}, v{ACC+5}, vcc")

MAP = {
 "4": f"""s_and_b32 s{S_T0}, s2, 7
    s_lshl_b32 s{S_T0}, s{S_T0}, 2
    s_bfe_u32 s{S_T1}, s2, 0x20003
    s_or_b32 s{S_GRP}, s{S_T0}, s{S_T1}
    s_lshr_b32 s{S_TB}, s2, 5""",
 "s": f"""s_and_b32 s{S_T0}, s2, 7
    s_lshl_b32 s{S_T0}, s{S_T0}, 2
    s_bfe_u32 s{S_T1}, s2, 0x10006
    s_lshl_b32 s{S_T1}, s{S_T1}, 1
    s_or_b32 s{S_GRP}, s{S_T0}, s{S_T1}
    s_lshr_b32 s{S_T0}, s2, 7
    s_bfe_u32 s{S_T1}, s2, 0x10001
    s_xor_b32 s{S_T0}, s{S_T0}, s{S_T1}
    s_xor_b32 s{S_T0}, s{S_T0}, 1
    s_or_b32 s{S_GRP}, s{S_GRP}, s{S_T0}
    s_bfe_u32 s{S_TB}, s2, 0x30003""",
 "8": f"""s_bfe_u32 s{S_T0}, s2, 0x20001
    s_lshl_b32 s{S_T0}, s{S_T0}, 3
    s_bfe_u32 s{S_T1}, s2, 0x30003
    s_or_b32 s{S_GRP}, s{S_T0}, s{S_T1}
    s_and_b32 s{S_T0}, s2, 1
    s_lshl_b32 s{S_T0}, s{S_T0}, 2
    s_lshr_b32 s{S_TB}, s2, 6
    s_or_b32 s{S_TB}, s{S_TB}, s{S_T0}""",
}
def entry(a):
    a(f"""
    s_load_dwordx16 {sr(S_PTR,16)}, s[0:1], 0
    s_load_dwordx4 {sr(S_DBG,4)}, s[0:1], 64
    v_readfirstlane_b32 s{S_W}, v0
    v_and_b32 v1, 63, v0
    {MAP[OPT.get("map", "s")]}
    s_lshr_b32 s{S_B}, s{S_GRP}, 4
    s_and_b32 s{S_P}, s{S_GRP}, 15
    s_lshr_b32 s{S_W}, s{S_W}, 6
    v_lshrrev_b32 v2, 4, v1
    v_and_b32 v3, 15, v1
    """)
    if OPT.get("delay"):
        a(f"s_memrealtime s[70:71]\ns_waitcnt lgkmcnt(0)\ns_add_u32 s72, s70, {int(OPT['delay'])}")
        a.label("L_delay")
        a("s_sleep 4\ns_memrealtime s[70:71]\ns_waitcnt lgkmcnt(0)\ns_sub_u32 s71, s72, s70\ns_cmp_gt_i32 s71, 0\ns_cbranch_scc1 L_delay")
    a(f"s_cmp_lt_u32 s{S_W}, 8\ns_cbranch_scc1 L_compute")

def prefetch(a):
    a(f"""
    s_cmp_lt_u32 s2, 128
    s_cbranch_scc1 L_nopf
    s_and_b32 s{S_T0}, s2, 127
    s_lshl_b32 s{S_T0}, s{S_T0}, 3
    s_add_u32 s{S_T0}, s{S_T0}, s{S_W}
    s_mul_i32 s{S_T1}, s{S_T0}, {12*128}
    s_add_u32 s{S_T1}, s{S_T1}, {128*3456}
    s_mul_i32 s{S_T0}, s{S_T0}, {18*128}
    v_lshlrev_b32 v4, 7, v1
    s_waitcnt lgkmcnt(0)
    """)
    srd(a, SRD_X, S_PTR, 2048 * 1152)
    srd(a, SRD_W, S_PTR + 2, 576 * 3456)
    srd(a, SRD_G, S_PTR + 8, 576 * 3456)
    a(f"""
    s_mov_b64 exec, 0xfff
    buffer_load_dword v{PF+1}, v4, {sr(SRD_W,4)}, s{S_T1} offen
    buffer_load_dword v{PF+2}, v4, {sr(SRD_G,4)}, s{S_T1} offen
    s_mov_b64 exec, 0x3ffff
    buffer_load_dword v{PF}, v4, {sr(SRD_X,4)}, s{S_T0} offen
    s_mov_b64 exec, -1
    """)
    a.label("L_nopf")

def phase1(a):
    if OPT.get("pf", "early") == "early": prefetch(a)
    a(f"""
    s_lshl_b32 s{S_T3}, s{S_W}, 12
    s_add_u32 s{S_T3}, s{S_T3}, {XST[2]}
    v_lshrrev_b32 v4, 1, v3
    v_xor_b32 v4, v4, v2
    v_lshlrev_b32 v5, 7, v3
    v_add_u32 v5, s{S_T3}, v5
    v_lshl_add_u32 v{AXR}, v4, 4, v5
    v_xor_b32 v4, 4, v4
    v_lshl_add_u32 v{AXR+1}, v4, 4, v5
    v_add_u32 v{AXR+2}, {XST[1]-XST[2]}, v{AXR}
    v_add_u32 v{AXR+3}, {XST[1]-XST[2]}, v{AXR+1}
    v_bfe_u32 v4, v1, 2, 2
    v_and_b32 v5, 3, v1
    v_and_b32 v6, 1, v2
    v_lshlrev_b32 v6, 2, v6
    v_or_b32 v6, v6, v4
    v_lshlrev_b32 v6, 1, v6
    v_lshl_add_u32 v7, v2, 3, v4
    v_lshlrev_b32 v7, 8, v7
    v_add_u32 v7, {WST[0]}, v7
    """)
    u, t = ACC, ACC + 1
    def addr(n):
        a(f"""
        v_lshrrev_b32 v{t}, 1, v{u}
        v_xor_b32 v{t}, v{t}, v6
        v_lshl_add_u32 v{t}, v{t}, 4, v7
        v_and_b32 v{u+2}, 1, v{u}
        v_lshl_add_u32 v{AW+n}, v{u+2}, 3, v{t}
        """)
    a(f"v_lshrrev_b32 v{u}, 1, v5\nv_lshl_add_u32 v{u}, v5, 1, v{u}"); addr(T_QA)
    a(f"v_add_u32 v{u}, 1, v{u}"); addr(T_QB)
    a(f"v_add_u32 v{u}, 9, v{u}"); addr(T_KA)
    a(f"v_add_u32 v{u}, 1, v{u}"); addr(T_KB)
    a(f"v_add_u32 v{u}, 21, v5"); addr(T_VA)
    a(f"v_add_u32 v{u}, 25, v5"); addr(T_VB)
    a(f"v_lshlrev_b32 v{u}, 3, v5\ns_mov_b32 s{S_T0}, 0x1b1d0e04\nv_lshrrev_b32 v{u}, v{u}, s{S_T0}\nv_and_b32 v{u}, 0xff, v{u}"); addr(T_MID)
    a(f"v_lshlrev_b32 v{AG}, 4, v2\nv_add_u32 v{AG}, {GATE_LDS}, v{AG}")
    a(f"s_mov_b32 s{S_EX}, 0xf000f000\ns_mov_b32 s{S_EX+1}, 0xf000f000")
    byte_table(a, EVA, 3, [vpos_dim(d) for d in range(16)])
    byte_table(a, EVB, 3, [vpos_dim(16), vpos_dim(17)] + [vpos_dim(d) for d in range(14)])
    a(f"""
    s_lshr_b32 s{S_T0}, s{S_W}, 1
    s_mul_i32 s{S_T0}, s{S_T0}, {PB}
    s_and_b32 s{S_T1}, s{S_W}, 1
    v_lshrrev_b32 v4, 1, v2
    v_and_b32 v5, 1, v2
    v_mul_u32_u24 v6, {HS}, v4
    v_lshl_add_u32 v7, v5, 5, v3
    v_lshl_add_u32 v6, v7, 4, v6
    s_lshl_b32 s{S_QS}, s{S_T1}, 10
    s_add_u32 s{S_QS}, s{S_QS}, s{S_T0}
    v_add_u32 v{EKM}, s{S_QS}, v6
    s_mul_i32 s{S_QS}, s{S_T1}, {2*VSUB}
    s_add_u32 s{S_QS}, s{S_QS}, s{S_T0}
    s_add_u32 s{S_QS}, s{S_QS}, {VOFF}
    v_mul_u32_u24 v6, 320, v4
    v_lshl_add_u32 v6, v5, 3, v6
    v_add_u32 v6, s{S_QS}, v6
    v_lshl_add_u32 v{EVA}, v{EVA}, 4, v6
    v_lshl_add_u32 v{EVB}, v{EVB}, 4, v6
    v_mov_b32 v6, {HS}
    v_cmp_gt_u32 vcc, 2, v3
    v_lshrrev_b32 v4, 3, v3
    v_mul_u32_u24 v4, 320, v4
    v_cndmask_b32 v6, v6, 0, vcc
    v_add_u32 v{EVB}, v{EVB}, v6
    v_and_b32 v5, 7, v3
    v_lshl_add_u32 v4, v5, 1, v4
    s_add_u32 s{S_CNT}, s{S_QS}, {HS}
    v_add_u32 v4, s{S_CNT}, v4
    s_lshl_b32 s{S_T1}, s{S_T1}, 3
    s_add_u32 s{S_T1}, s{S_T1}, s{S_T0}
    s_add_u32 s{S_T1}, s{S_T1}, {KROFF}
    v_lshlrev_b32 v5, 4, v3
    v_add_u32 v5, s{S_T1}, v5
    v_add_u32 v6, {QIMG}, v5
    v_cmp_eq_u32 vcc, 1, v2
    v_add_u32 v7, 4, v6
    s_nop 0
    v_cndmask_b32 v6, v6, v5, vcc
    v_cmp_eq_u32 vcc, 2, v2
    v_mov_b32 v{ESC}, 1.0
    s_nop 0
    v_cndmask_b32 v6, v6, v4, vcc
    v_cmp_eq_u32 vcc, 3, v2
    v_mov_b32 v5, {hex(f32(QSCALE))}
    s_nop 0
    v_cndmask_b32 v{EMID}, v6, v7, vcc
    v_cmp_eq_u32 vcc, 0, v2
    v_bfe_u32 v4, v1, 2, 1
    v_mul_u32_u24 v4, {HS}, v4
    v_cndmask_b32 v{ESC}, v{ESC}, v5, vcc
    v_and_b32 v5, 3, v1
    v_mul_u32_u24 v5, 320, v5
    v_bfe_u32 v6, v1, 3, 1
    v_mul_u32_u24 v6, {16*(vpos_slot(18)-vpos_slot(19))}, v6
    v_add3_u32 v4, v4, v5, v6
    s_add_u32 s{S_QS}, s{S_QS}, {16*vpos_slot(19)}
    v_add_u32 v{EONE}, s{S_QS}, v4
    v_lshrrev_b32 v4, 5, v1
    v_mul_u32_u24 v4, {HS}, v4
    v_and_b32 v5, 31, v1
    v_lshl_add_u32 v4, v5, 4, v4
    s_add_u32 s{S_T1}, s{S_T1}, 4
    v_add_u32 v{EKC}, s{S_T1}, v4
    s_mov_b32 s{S_QS}, {hex(f32(QSCALE))}
    s_waitcnt lgkmcnt(0)
    """)
    srd(a, SRD_WS, S_DBG + 2, WS_END)
    srd(a, SRD_O, S_PTR + 14, 2048 * 1152)
    att_addr(a)
    if OPT.get("pf", "early") == "late": prefetch(a)
    if OPT.get("tlb"):
        a(f"""
        v_lshlrev_b32 v4, 18, v1
        buffer_load_dword v{PF+3}, v4, {sr(SRD_WS,4)}, 0 offen
        buffer_load_dword v{PF+4}, v4, {sr(SRD_O,4)}, 0 offen
        """)
    stamp(a, 1)
    a("s_barrier")
    stamp(a, 2)
    for g in p1_reads(0):
        for x in g: a(x)
    for ks in range(18):
        n = ks // 2
        a("s_waitcnt lgkmcnt(0)")
        if ks % 2 == 1 and n + 1 < 9:
            a("s_barrier")
            if OPT.get("g1prof"): stamp(a, 5 + n)
        groups = p1_reads(ks + 1) if ks + 1 < 18 else []
        if OPT.get("noreads"): groups = []
        if OPT.get("noxreads"): groups = groups[1:]
        wf = WF + 28 * (ks % 2); x = XF + 8 * (ks % 2)
        i = 0
        for nn in (T_QA, T_QB, T_KA, T_KB, T_VA, T_VB, T_MID):
            for tt in range(2):
                c = vr(acc(nn, tt), 4)
                cin = "0" if ks == 0 else c
                if OPT.get("nomfma") and 0 < ks < 17: pass
                elif nn in (T_VA, T_VB):
                    a(f"v_mfma_f32_16x16x32_bf16 {c}, {vr(x+4*tt,4)}, {vr(wf+4*nn,4)}, {cin}")
                else:
                    a(f"v_mfma_f32_16x16x32_bf16 {c}, {vr(wf+4*nn,4)}, {vr(x+4*tt,4)}, {cin}")
                if i < len(groups):
                    for y in groups[i]: a(y)
                i += 1
    stamp(a, 3)
    a("s_waitcnt vmcnt(0)")
    T = WF
    a(f"v_bfe_u32 v{T+16}, v1, 3, 1\ns_mov_b32 s{S_T0}, 0x3f803f80\nv_mul_lo_u32 v{T+16}, v{T+16}, s{S_T0}\nv_mov_b32 v{T+20}, 0x3f80")
    a(f"v_mov_b32 v{T+17}, v{T+16}\nv_mov_b32 v{T+18}, v{T+16}\nv_mov_b32 v{T+19}, v{T+16}")
    a(f"ds_write_b32 v{EKC}, v{T+20}")
    a(f"s_mov_b64 exec, 0xffff\nds_write_b128 v{EONE}, {vr(T+16,4)}\ns_mov_b64 exec, -1")
    a(f"v_add_u32 v{T+21}, {QIMG}, v{EKM}")
    for tt in range(2):
        t = T + 24 + 16 * tt
        for k, n in enumerate((T_KA, T_KB)):
            c = acc(n, tt)
            a(f"v_cvt_pk_bf16_f32 v{t+2*k}, v{c}, v{c+1}\nv_cvt_pk_bf16_f32 v{t+2*k+1}, v{c+2}, v{c+3}")
        a(f"ds_write_b128 v{EKM}, {vr(t,4)} offset:{256*tt}")
        for k, (n, ad) in enumerate(((T_VA, EVA), (T_VB, EVB))):
            c = acc(n, tt)
            a(f"v_cvt_pk_bf16_f32 v{t+4+2*k}, v{c}, v{c+1}\nv_cvt_pk_bf16_f32 v{t+5+2*k}, v{c+2}, v{c+3}")
            a(f"ds_write_b64 v{ad}, {vr(t+4+2*k,2)} offset:{VSUB*tt}")
        c = acc(T_MID, tt)
        for e in range(4): a(f"v_mul_f32 v{c+e}, v{ESC}, v{c+e}")
        a(f"v_cvt_pk_bf16_f32 v{t+12}, v{c}, v{c+1}\nv_cvt_pk_bf16_f32 v{t+13}, v{c+2}, v{c+3}")
        vo = [VSUB * tt + 16 * vpos_dim(14 + e) for e in range(4)]
        a(f"""
        s_mov_b32 exec_lo, 0
        s_mov_b32 exec_hi, 0xffff
        ds_write_b16 v{EMID}, v{t+12} offset:{vo[0]}
        ds_write_b16_d16_hi v{EMID}, v{t+12} offset:{vo[1]}
        ds_write_b16 v{EMID}, v{t+13} offset:{vo[2]}
        ds_write_b16_d16_hi v{EMID}, v{t+13} offset:{vo[3]}
        s_mov_b32 exec_hi, 0xffff0000
        v_mov_b32 v{t+12}, v{c}
        v_mov_b32 v{t+13}, v{c}
        s_mov_b32 exec_lo, -1
        ds_write_b32 v{EMID}, v{t+12} offset:{256*tt}
        ds_write_b32 v{EMID}, v{t+13} offset:{256*tt+HS}
        s_mov_b64 exec, -1
        """)
        for k, n in enumerate((T_QA, T_QB)):
            c = acc(n, tt)
            for e in range(4): a(f"v_mul_f32 v{c+e}, s{S_QS}, v{c+e}")
            a(f"v_cvt_pk_bf16_f32 v{t+8+2*k}, v{c}, v{c+1}\nv_cvt_pk_bf16_f32 v{t+9+2*k}, v{c+2}, v{c+3}")
        a(f"ds_write_b128 v{T+21}, {vr(t+8,4)} offset:{256*tt}")
    att_pre(a)
    a("s_waitcnt lgkmcnt(0)\ns_barrier")

SB = (8, 40); OA = 72; QM = 104; QR = 112; KM = 116; KR = 120; VF = 124
IDX, AKM, AKR, AV, VG = range(132, 137)
BKM, BKR, BV = 160, 161, 162
TMP = 140
P2_END = 163
ORDER = "E3 s3p lv1 E3 2b lkr E8 w0 s0 E4 s1 E4 m0 E4 s2 lv0 E3 m1 lkm E3"

def att_ops(t):
    par = t % 2
    cur, nxt = SB[par], SB[1 - par]
    pb = lambda x: ((x % 8) // 2) * PB
    return cur, {
     "2b": f"v_mfma_f32_32x32x4_2b_bf16 {vr(nxt,32)}, {vr(KR+2*(1-par),2)}, {vr(QR,2)}, 0",
     "m0": f"v_mfma_f32_32x32x16_bf16 {vr(nxt,16)}, {vr(KM,4)}, {vr(QM,4)}, {vr(nxt,16)}",
     "m1": f"v_mfma_f32_32x32x16_bf16 {vr(nxt+16,16)}, {vr(KM,4)}, {vr(QM+4,4)}, {vr(nxt+16,16)}",
     "s0": f"v_smfmac_f32_32x32x32_bf16 {vr(OA,16)}, {vr(VF,4)}, {vr(cur,8)}, v{IDX}",
     "s1": f"v_smfmac_f32_32x32x32_bf16 {vr(OA,16)}, {vr(VF+4,4)}, {vr(cur+8,8)}, v{IDX}",
     "s2": f"v_smfmac_f32_32x32x32_bf16 {vr(OA+16,16)}, {vr(VF,4)}, {vr(cur+16,8)}, v{IDX}",
     "s3": f"v_smfmac_f32_32x32x32_bf16 {vr(OA+16,16)}, {vr(VF+4,4)}, {vr(cur+24,8)}, v{IDX}",
     "s3p": f"v_smfmac_f32_32x32x32_bf16 {vr(OA+16,16)}, {vr(VF+4,4)}, {vr(nxt+24,8)}, v{IDX}",
     "lkr": f"ds_read_b128 {vr(KR,4)}, v{AKR} offset:{pb(t+2)}" if par == 0 else None,
     "lkm": f"ds_read_b128 {vr(KM,4)}, v{AKM} offset:{pb(t+2)+1024*par}",
     "lv0": f"ds_read_b128 {vr(VF,4)}, v{AV} offset:{pb(t+1)+2*VSUB*(1-par)}",
     "lv1": f"ds_read_b128 {vr(VF+4,4)}, v{AV} offset:{pb(t)+2*VSUB*par+VSUB}",
    }

def att_tile(a, t, hooks=None, skip=()):
    cur, ops = att_ops(t)
    e = 0
    for tok in ORDER.split():
        if hooks and tok in hooks: hooks[tok]()
        if tok[0] == "E":
            for _ in range(int(tok[1:])):
                a(f"v_exp_f32 v{cur+e}, v{cur+e}"); e += 1
        elif tok[0] == "w": a(f"s_waitcnt lgkmcnt({tok[1:]})")
        elif ops[tok] and tok not in skip: a(ops[tok])

def att_addr(a):
    a(f"""
    s_lshr_b32 s{S_T0}, s{S_W}, 2
    s_mul_i32 s{S_T0}, s{S_T0}, {HS}
    v_lshlrev_b32 v4, 4, v1
    v_add_u32 v{BKM}, s{S_T0}, v4
    v_and_b32 v7, 31, v1
    v_lshlrev_b32 v4, 4, v7
    s_add_u32 s{S_T1}, s{S_T0}, {KROFF}
    v_add_u32 v{BKR}, s{S_T1}, v4
    v_min_u32 v7, 19, v7
    v_lshrrev_b32 v4, 2, v7
    v_lshlrev_b32 v4, 3, v4
    s_mov_b32 s{S_T2}, 0x1004000c
    v_lshrrev_b32 v6, v4, s{S_T2}
    v_and_b32 v6, 0xff, v6
    v_and_b32 v4, 3, v7
    v_add_u32 v6, v6, v4
    v_add_u32 v4, 1, v4
    v_and_b32 v4, 3, v4
    v_or_b32 v4, 8, v4
    v_cmp_gt_u32 vcc, 16, v7
    v_lshrrev_b32 v5, 5, v1
    v_mul_u32_u24 v5, 20, v5
    v_cndmask_b32 v4, v4, v6, vcc
    v_add_u32 v4, v4, v5
    s_add_u32 s{S_T1}, s{S_T0}, {VOFF}
    v_lshlrev_b32 v4, 4, v4
    v_add_u32 v{BV}, s{S_T1}, v4
    s_and_b32 s{S_NSL}, s{S_W}, 3
    s_mul_i32 s{S_NSL}, s{S_NSL}, {PB}
    s_add_u32 s{S_NSL}, s{S_NSL}, {QIMG}
    """)

def att_pre(a):
    a(f"""
    v_lshrrev_b32 v5, 5, v1
    v_add_u32 v6, s{S_NSL}, v{BKM}
    v_lshl_add_u32 v7, v5, 3, v{BKR}
    v_add_u32 v7, s{S_NSL}, v7
    v_mov_b32 v{IDX}, 0xdddddddd
    v_mov_b32 v{AKM}, v{BKM}
    v_mov_b32 v{AKR}, v{BKR}
    v_mov_b32 v{AV}, v{BV}
    """)

def att_setup(a):
    a(f"""
    ds_read_b128 {vr(QM,4)}, v6
    ds_read_b128 {vr(QM+4,4)}, v6 offset:1024
    ds_read_b64 {vr(QR,2)}, v7
    ds_read_b128 {vr(KR,4)}, v{BKR}
    ds_read_b128 {vr(KM,4)}, v{BKM}
    """)
    a(f"""
    s_and_b32 s{S_T0}, s{S_W}, 3
    s_lshl_b32 s{S_T1}, s{S_TB}, 2
    s_add_u32 s{S_T0}, s{S_T0}, s{S_T1}
    s_lshl_b32 s{S_T1}, s{S_T0}, 17
    s_lshl_b32 s{S_T2}, s{S_GRP}, 10
    s_add_u32 s{S_T1}, s{S_T1}, s{S_T2}
    s_lshr_b32 s{S_T3}, s{S_W}, 2
    s_lshl_b32 s{S_T2}, s{S_T3}, 9
    s_add_u32 s{S_T1}, s{S_T1}, s{S_T2}
    s_add_u32 s{S_X0}, s{S_T1}, {WS_OM}
    s_add_u32 s{S_X1}, s{S_X0}, 0x10000
    v_bfe_u32 v2, v1, 4, 1
    v_lshlrev_b32 v2, 15, v2
    v_lshrrev_b32 v3, 5, v1
    v_lshl_add_u32 v2, v3, 8, v2
    v_and_b32 v3, 15, v1
    v_lshl_add_u32 v2, v3, 4, v2
    s_lshl_b32 s{S_T0}, s{S_T0}, 9
    s_lshl_b32 s{S_T2}, s{S_GRP}, 14
    s_add_u32 s{S_T0}, s{S_T0}, s{S_T2}
    s_lshl_b32 s{S_T3}, s{S_T3}, 2
    s_add_u32 s{S_T0}, s{S_T0}, s{S_T3}
    s_add_u32 s{S_WOFF}, s{S_T0}, {WS_OR}
    v_lshlrev_b32 v3, 3, v1
    s_lshl_b32 s{S_T0}, s{S_B}, 31
    s_xor_b32 s{S_T0}, s{S_T0}, {hex(f32(-math.log2(math.e)))}
    """)
    s0, s1 = SB
    a(f"s_waitcnt lgkmcnt(2)\nv_mul_f32 v{VG}, s{S_T0}, v{QR+1}\nv_mov_b32 v{QR+1}, 0")
    a(f"ds_read_b128 {vr(VF,4)}, v{AV}\ns_waitcnt lgkmcnt(1)")
    qk = lambda: (a(f"v_mfma_f32_32x32x4_2b_bf16 {vr(s0,32)}, {vr(KR,2)}, {vr(QR,2)}, 0"))
    def mains():
        a(f"v_mfma_f32_32x32x16_bf16 {vr(s0,16)}, {vr(KM,4)}, {vr(QM,4)}, {vr(s0,16)}")
        a(f"v_mfma_f32_32x32x16_bf16 {vr(s0+16,16)}, {vr(KM,4)}, {vr(QM+4,4)}, {vr(s0+16,16)}")
    qk()
    for i in range(20): a(f"v_mov_b32 v{OA+i}, 0")
    mains()
    for i in range(20, 32): a(f"v_mov_b32 v{OA+i}, 0")
    T = TMP
    for blk in range(2):
        b = s0 + 16 * blk; m = T + blk
        a(f"v_max3_f32 v{m}, v{b}, v{b+1}, v{b+2}")
        for i in range(3, 15, 2): a(f"v_max3_f32 v{m}, v{m}, v{b+i}, v{b+i+1}")
        a(f"v_max_f32 v{m}, v{m}, v{b+15}")
    a(f"""
    s_nop 1
    v_permlane32_swap_b32 v{T}, v{T+1}
    v_max_f32 v{T}, v{T}, v{T+1}
    v_cvt_pk_bf16_f32 v{QR+1}, -v{T}, 0
    s_nop 1
    """)
    qk()
    for i in range(8): a(f"v_mov_b32 v{s1+24+i}, 0")
    for i in range(4): a(f"v_mov_b32 v{VF+4+i}, 0")
    a(f"""
    s_lshl_b32 s{S_KVB}, s{S_GRP}, 3
    s_mul_i32 s{S_KVB}, s{S_KVB}, {SLOT}
    s_mov_b64 {sr(S_OK,2)}, -1
    s_mov_b32 s{S_CH}, 0
    s_mov_b32 s{S_NSL}, 0
    s_lshr_b32 s{S_C0}, s2, 5
    s_mul_i32 s{S_C0}, s{S_C0}, 144
    """)
    mains()
    a(f"ds_read_b128 {vr(KM,4)}, v{AKM} offset:1024\nv_exp_f32 v{VG}, v{VG}\ns_nop 0\nv_add_f32 v{VG}, 1.0, v{VG}\nv_rcp_f32 v{VG}, v{VG}")
    a.nop(6)

def att_chunk(a, last=False):
    def sync():
        a(f"""
        s_add_u32 s{S_NSL}, s{S_NSL}, {SLOT}
        s_cmp_eq_u32 s{S_NSL}, {4*SLOT}
        s_cselect_b32 s{S_NSL}, 0, s{S_NSL}
        s_barrier
        v_add_u32 v{AKR}, s{S_NSL}, v{BKR}
        v_add_u32 v{AKM}, s{S_NSL}, v{BKM}
        """)
    for t in range(8):
        hooks = {}; skip = ()
        if not last:
            if t == 6: hooks["lkr"] = sync
            if t == 7: hooks["lv0"] = lambda: a(f"v_add_u32 v{AV}, s{S_NSL}, v{BV}")
        else:
            if t == 1: hooks["2b"] = lambda: a("s_barrier")
            if t == 6: skip = ("lkr", "lkm")
            if t == 7: skip = ("2b", "m0", "m1", "lkm", "lv0"); hooks["s0"] = lambda: a("s_barrier")
        att_tile(a, t, hooks, skip)

def att_finish(a):
    _, ops = att_ops(7)
    a(f"s_nop 1\n{ops['s3']}")
    T = TMP
    a.nop(11)
    a.label("L_att_norm")
    m = T + 2
    a(f"""
    v_mov_b32 v{T}, v{OA+10}
    v_mov_b32 v{T+1}, v{OA+26}
    s_mov_b32 s{S_T0}, {hex(f32(2.0**-60))}
    s_mov_b32 s{S_T1}, {hex(f32(2.0**60))}
    v_permlane32_swap_b32 v{T}, v{T+1}
    v_add_f32 v{m}, |v{OA}|, |v{OA+16}|
    v_cmp_nle_f32 s[4:5], s{S_T0}, v{T}
    v_cmp_nge_f32 s[6:7], s{S_T1}, v{T}
    v_rcp_f32 v{T}, v{T}
    """)
    for i in range(1, 10): a(f"v_add_f32 v{m}, v{m}, |v{OA+i}|\nv_add_f32 v{m}, v{m}, |v{OA+16+i}|")
    a(f"""
    s_mov_b32 s{S_T0}, 0x7f000000
    v_mul_f32 v{T}, v{T}, v{VG}
    v_cmp_nge_f32 vcc, s{S_T0}, v{m}
    v_mov_b32 v{T+1}, v{T}
    s_or_b64 s[4:5], s[4:5], s[6:7]
    s_or_b64 vcc, vcc, s[4:5]
    s_and_b64 vcc, vcc, {sr(S_OK,2)}
    s_cbranch_vccnz L_att_slow
    v_permlane32_swap_b32 v{T}, v{T+1}
    """)
    for blk in range(2):
        o = OA + 16 * blk; f = T + blk; d = T + 4 + 4 * blk
        for i in range(10): a(f"v_mul_f32 v{o+i}, v{f}, v{o+i}")
        for i in range(4): a(f"v_cvt_pk_bf16_f32 v{d+i}, v{o+2*i}, v{o+2*i+1}")
        a(f"buffer_store_dwordx4 {vr(d,4)}, v2, {sr(SRD_WS,4)}, s{S_X0+blk} offen sc1")
        a(f"v_cvt_pk_bf16_f32 v{T+12+blk}, v{o+8}, v{o+9}")
    a(f"s_nop 1\nv_permlane32_swap_b32 v{T+12}, v{T+13}")
    a(f"buffer_store_dword v{T+12}, v3, {sr(SRD_WS,4)}, s{S_WOFF} offen sc1")

def att_slow(a):
    s0 = SB[0]; T = TMP
    M0, M1, GK = T + 16, T + 17, T + 18
    a.label("L_att_slow")
    a(f"""
    s_mov_b64 {sr(S_OK,2)}, 0
    v_mov_b32 v{QR+1}, 0
    v_mov_b32 v{M0}, 0xff800000
    v_mov_b32 v{M1}, 0xff800000
    s_waitcnt vmcnt(0) lgkmcnt(0)
    """)
    for i in range(32): a(f"v_mov_b32 v{OA+i}, 0")
    for ps in range(2):
        a(f"s_mov_b32 s{S_CNT}, 0")
        a.label(f"L_slow_{ps}")
        a(f"""
        s_lshr_b32 s{S_T0}, s{S_CNT}, 1
        s_bfe_u32 s{S_T1}, s{S_CNT}, 0x30003
        s_lshl_b32 s{S_T1}, s{S_T1}, 2
        s_add_u32 s{S_T0}, s{S_T0}, s{S_T1}
        s_mul_i32 s{S_T0}, s{S_T0}, {PB}
        s_add_u32 s{S_T0}, s{S_T0}, s{S_KVB}
        s_and_b32 s{S_T1}, s{S_CNT}, 1
        s_lshl_b32 s{S_T2}, s{S_T1}, 10
        s_add_u32 s{S_T2}, s{S_T2}, s{S_T0}
        buffer_load_dwordx4 {vr(KM,4)}, v{BKM}, {sr(SRD_WS,4)}, s{S_T2} offen sc1
        s_lshl_b32 s{S_T2}, s{S_T1}, 3
        s_add_u32 s{S_T2}, s{S_T2}, s{S_T0}
        buffer_load_dwordx2 {vr(KR,2)}, v{BKR}, {sr(SRD_WS,4)}, s{S_T2} offen sc1
        s_mul_i32 s{S_T2}, s{S_T1}, {2*VSUB}
        s_add_u32 s{S_T2}, s{S_T2}, s{S_T0}
        buffer_load_dwordx4 {vr(VF,4)}, v{BV}, {sr(SRD_WS,4)}, s{S_T2} offen sc1
        buffer_load_dwordx4 {vr(VF+4,4)}, v{BV}, {sr(SRD_WS,4)}, s{S_T2} offen offset:{VSUB} sc1
        s_waitcnt vmcnt(0)
        v_mfma_f32_32x32x4_2b_bf16 {vr(s0,32)}, {vr(KR,2)}, {vr(QR,2)}, 0
        """)
        a.nop(20)
        a(f"v_mfma_f32_32x32x16_bf16 {vr(s0,16)}, {vr(KM,4)}, {vr(QM,4)}, {vr(s0,16)}")
        a(f"v_mfma_f32_32x32x16_bf16 {vr(s0+16,16)}, {vr(KM,4)}, {vr(QM+4,4)}, {vr(s0+16,16)}")
        a.nop(14)
        if ps == 0:
            for blk, m in enumerate((M0, M1)):
                for i in range(0, 16, 2): a(f"v_max3_f32 v{m}, v{m}, v{s0+16*blk+i}, v{s0+16*blk+i+1}")
        else:
            for i in range(32): a(f"v_sub_f32 v{s0+i}, v{s0+i}, v{M0 if i < 16 else M1}")
            for i in range(32): a(f"v_exp_f32 v{s0+i}, v{s0+i}")
            a.nop(2)
            for i in range(4):
                a(f"v_smfmac_f32_32x32x32_bf16 {vr(OA+16*(i//2),16)}, {vr(VF+4*(i%2),4)}, {vr(s0+8*i,8)}, v{IDX}")
            a.nop(14)
        a(f"s_add_u32 s{S_CNT}, s{S_CNT}, 1\ns_cmp_lt_u32 s{S_CNT}, 64\ns_cbranch_scc1 L_slow_{ps}")
        if ps == 0:
            for m in (M0, M1):
                a(f"v_mov_b32 v{GK}, v{m}\ns_nop 1\nv_permlane32_swap_b32 v{GK}, v{m}\nv_max_f32 v{m}, v{m}, v{GK}")
    a("s_branch L_att_norm")

OACC = 8
OD, WD = 8, 5
OF = OACC + 20
WB = OF + 4 * OD
AM, AM8, AM15, AR, AR3 = range(WB + 20 * WD, WB + 20 * WD + 5)
P3_END = AR3 + 1
S_TT, S_TOK = S_GRP, S_TB

def phase3(a):
    stamp(a, 5)
    a("s_waitcnt vmcnt(0)")
    stamp(a, 6)
    a("s_barrier")
    stamp(a, 9)
    a(f"""
    s_and_b32 s{S_TT}, s{S_W}, 3
    s_lshr_b32 s{S_B}, s{S_W}, 2
    s_and_b32 s{S_T0}, s2, 7
    s_lshl_b32 s{S_T0}, s{S_T0}, 2
    s_bfe_u32 s{S_T1}, s2, 0x20003
    s_add_u32 s{S_T0}, s{S_T0}, s{S_T1}
    s_lshl_b32 s{S_T0}, s{S_T0}, 2
    s_add_u32 s{S_TOK}, s{S_T0}, s{S_TT}
    v_lshrrev_b32 v2, 4, v1
    v_bfe_u32 v3, v1, 2, 2
    v_and_b32 v4, 3, v1
    v_lshlrev_b32 v4, 3, v4
    s_mul_i32 s{S_T0}, s{S_B}, {576*144}
    v_and_b32 v5, 1, v2
    v_lshl_add_u32 v5, v5, 2, v3
    v_mul_u32_u24 v5, 288, v5
    v_add_u32 v5, v5, v4
    v_lshrrev_b32 v6, 1, v2
    v_mul_u32_u24 v7, 2592, v6
    v_add3_u32 v{AM}, v5, v7, s{S_T0}
    v_add_u32 v{AM8}, {8*5184}, v{AM}
    v_add_u32 v{AM15}, {15*5184}, v{AM}
    v_and_b32 v6, s{S_B}, v6
    v_cmp_eq_u32 vcc, 1, v6
    v_mul_u32_u24 v7, 5184, v2
    v_lshrrev_b32 v6, 1, v3
    v_cndmask_b32 v{AM15}, v{AM15}, v5, vcc
    v_and_b32 v5, 1, v3
    v_add_u32 v5, 16, v5
    v_mul_u32_u24 v5, 144, v5
    v_add_u32 v5, v5, v4
    v_mul_u32_u24 v4, 2592, v6
    v_add3_u32 v7, v7, v4, v5
    v_add_u32 v{AR}, s{S_T0}, v7
    v_add_u32 v{AR3}, {12*5184}, v{AR}
    v_lshrrev_b32 v4, 3, v1
    v_lshl_add_u32 v4, s{S_B}, 3, v4
    v_cmp_eq_u32 vcc, 15, v4
    v_lshlrev_b32 v2, 4, v1
    v_lshrrev_b32 v3, 4, v1
    v_cndmask_b32 v{AR3}, v{AR3}, v5, vcc
    v_lshlrev_b32 v3, 14, v3
    v_and_b32 v4, 15, v1
    v_lshl_add_u32 v3, v4, 3, v3
    s_lshl_b32 s{S_X0}, s{S_TOK}, 15
    s_lshl_b32 s{S_T0}, s{S_B}, 14
    s_add_u32 s{S_X0}, s{S_X0}, s{S_T0}
    s_add_u32 s{S_X0}, s{S_X0}, {WS_OM}
    s_lshl_b32 s{S_X1}, s{S_B}, 18
    s_lshl_b32 s{S_T0}, s{S_TOK}, 7
    s_add_u32 s{S_X1}, s{S_X1}, s{S_T0}
    s_add_u32 s{S_X1}, s{S_X1}, {WS_OR}
    """)
    steps = [16] + list(range(16)) + [17]
    def wreads(k):
        st = steps[k]; wb = WB + 20 * (k % WD); L = []
        for t in range(5):
            g = []
            for i in range(2):
                if st < 8: ad, off = AM, 5184 * st + 144 * i
                elif st < 15: ad, off = AM8, 5184 * (st - 8) + 144 * i
                elif st == 15: ad, off = AM15, 144 * i
                elif (st, i) == (17, 1): ad, off = AR3, 0
                else: ad, off = AR, 5184 * (8 * (st - 16) + 4 * i)
                g.append(f"ds_read_b64_tr_b16 {vr(wb+4*t+2*i,2)}, v{ad} offset:{off+32*t}")
            L.append(g)
        return L
    for k in range(2):
        for g in wreads(k):
            for x in g: a(x)
    a("s_waitcnt lgkmcnt(0)\ns_barrier")
    for k in range(2, WD):
        for g in wreads(k):
            for x in g: a(x)
    a(f"""
    v_lshlrev_b32 v6, 4, v1
    s_mul_i32 s{S_T0}, s{S_TT}, 5120
    s_add_u32 s{S_T0}, s{S_T0}, 5184
    v_add_u32 v6, s{S_T0}, v6
    v_and_b32 v7, 15, v1
    s_lshl_b32 s{S_T0}, s{S_TOK}, 4
    v_add_u32 v7, s{S_T0}, v7
    v_mul_u32_u24 v7, 1152, v7
    v_add_u32 v7, s{S_C0}, v7
    v_lshrrev_b32 v4, 4, v1
    v_lshl_add_u32 v5, v4, 3, v7
    v_lshrrev_b32 v4, 5, v1
    v_lshl_add_u32 v7, v4, 4, v7
    v_bfe_u32 v4, v1, 4, 1
    v_lshl_add_u32 v4, v4, 5, v7
    s_waitcnt lgkmcnt(0)
    s_barrier
    """)
    stamp(a, 10)
    nload = [1 if st < 16 else 2 for st in steps]
    def oload(k):
        st = steps[k]; d = OF + 4 * (k % OD)
        if st < 16:
            if st and st % 4 == 0: a(f"s_add_u32 s{S_X0}, s{S_X0}, 4096")
            a(f"buffer_load_dwordx4 {vr(d,4)}, v2, {sr(SRD_WS,4)}, s{S_X0} offen offset:{1024*(st%4)} sc1")
        else:
            for i in range(2):
                a(f"buffer_load_dwordx2 {vr(d+2*i,2)}, v3, {sr(SRD_WS,4)}, s{S_X1} offen sc1")
                a(f"s_add_u32 s{S_X1}, s{S_X1}, 0x10000")
    for k in range(OD): oload(k)
    for k in range(18):
        groups = wreads(k + WD) if k + WD < 18 else []
        lg = min(15, 10 * len([j for j in range(k + 1, min(k + WD, 18)) if j >= WD]))
        if k == 0: stamp(a, 13)
        a(f"s_waitcnt vmcnt({sum(nload[k+1:min(k+OD, 18)])}) lgkmcnt({lg})")
        if k == 0: stamp(a, 14)
        if k == 9: stamp(a, 15)
        wb = WB + 20 * (k % WD)
        for t in range(5):
            c = vr(OACC + 4 * t, 4)
            a(f"v_mfma_f32_16x16x32_bf16 {c}, {vr(wb+4*t,4)}, {vr(OF+4*(k%OD),4)}, {'0' if k == 0 else c}")
            if t < len(groups):
                for y in groups[t]: a(y)
        if k + OD < 18: oload(k + OD)
        if k == 6: a("s_barrier")
    stamp(a, 11)
    T = OF
    a(f"s_cmp_eq_u32 s{S_B}, 0\ns_cbranch_scc0 L_p3_b")
    def fin(tiles, give, off):
        a.nop(6)
        for t in give: a(f"ds_write_b128 v6, {vr(OACC+4*t,4)} offset:{1024*t}")
        a("s_waitcnt lgkmcnt(0)\ns_barrier")
        for k, t in enumerate(tiles): a(f"ds_read_b128 {vr(T+4*k,4)}, v6 offset:{1024*t}")
        for k, t in enumerate(tiles):
            a(f"s_waitcnt lgkmcnt({len(tiles)-1-k})")
            for e in range(4): a(f"v_add_f32 v{OACC+4*t+e}, v{OACC+4*t+e}, v{T+4*k+e}")
        d = T + 12
        t0, t1 = tiles[0], tiles[1]
        a(f"""
        v_cvt_pk_bf16_f32 v{d}, v{OACC+4*t0}, v{OACC+4*t0+1}
        v_cvt_pk_bf16_f32 v{d+1}, v{OACC+4*t0+2}, v{OACC+4*t0+3}
        v_cvt_pk_bf16_f32 v{d+2}, v{OACC+4*t1}, v{OACC+4*t1+1}
        v_cvt_pk_bf16_f32 v{d+3}, v{OACC+4*t1+2}, v{OACC+4*t1+3}
        s_nop 1
        v_permlane16_swap_b32 v{d}, v{d+2}
        v_permlane16_swap_b32 v{d+1}, v{d+3}
        buffer_store_dwordx4 {vr(d,4)}, v4, {sr(SRD_O,4)}, 0 offen offset:{off}
        """)
        if len(tiles) == 3:
            t2 = tiles[2]
            a(f"""
            v_cvt_pk_bf16_f32 v{d+4}, v{OACC+4*t2}, v{OACC+4*t2+1}
            v_cvt_pk_bf16_f32 v{d+5}, v{OACC+4*t2+2}, v{OACC+4*t2+3}
            s_mov_b32 exec_hi, 0
            buffer_store_dwordx2 {vr(d+4,2)}, v5, {sr(SRD_O,4)}, 0 offen offset:128
            """)
        if PROF: a("s_waitcnt vmcnt(0)")
        stamp(a, 12); stamp(a, 17, True); stamp_out(a)
        a("s_endpgm")
    fin((0, 1, 4), (2, 3), 0)
    a.label("L_p3_b")
    fin((2, 3), (0, 1, 4), 64)

WPIECE = 864
def loader(a):
    AD0, AD1, AX0, AX1, LA, DW, FA, FL, Z = range(8, 17)
    BUF = 24
    sWS, sXS, sWO, sXO = (64, 65, 66), (33, 34, 35), 36, 37
    sM, sS, sN, sO = 38, 40, 41, 36
    a("s_setprio 3")
    def wsrc(dst, hi):
        a(f"""
        v_lshlrev_b32 v4, 1, v2
        v_or_b32 v4, {8*hi}, v4
        v_xor_b32 v4, v4, v3
        v_min_u32 v4, 14, v4
        v_mul_u32_u24 v5, 52, v4
        v_lshrrev_b32 v5, 8, v5
        v_lshlrev_b32 v4, 4, v4
        v_mul_u32_u24 v6, 1072, v5
        v_add_u32 v4, v4, v6
        v_and_b32 v5, 2, v5
        v_lshlrev_b32 v5, 2, v5
        v_sub_u32 v4, v4, v5
        v_mul_u32_u24 v5, 3456, v2
        v_add_u32 v{dst}, v4, v5
        """)
    wsrc(AD0, 0); wsrc(AD1, 1)
    a(f"""
    v_lshrrev_b32 v4, 3, v1
    v_mul_u32_u24 v4, 1152, v4
    v_and_b32 v5, 7, v1
    v_xor_b32 v5, v5, v2
    v_lshl_add_u32 v{AX0}, v5, 4, v4
    v_xor_b32 v5, 4, v5
    v_lshl_add_u32 v4, v5, 4, v4
    v_add_u32 v{AX1}, {8*1152}, v4
    v_lshlrev_b32 v{LA}, 4, v1
    s_mul_i32 s{sWO}, s{S_P}, 72
    s_mul_i32 s{sXO}, s{S_TB}, {256*1152}
    s_mov_b32 m0, {GATE_LDS}
    s_waitcnt lgkmcnt(0)
    s_cmp_eq_u32 s{S_B}, 0
    s_cselect_b32 s{S_PTR+2}, s{S_PTR+2}, s{S_PTR+8}
    s_cselect_b32 s{S_PTR+3}, s{S_PTR+3}, s{S_PTR+9}
    """)
    srd(a, SRD_W, S_PTR + 2, 576 * 3456)
    srd(a, SRD_X, S_PTR, 2048 * 1152)
    srd(a, SRD_G, S_PTR + 12, 1152)
    a(f"buffer_load_dwordx4 v{LA}, {sr(SRD_G,4)}, 0 offen lds")
    a(f"buffer_load_dwordx4 v{LA}, {sr(SRD_G,4)}, 0 offen offset:1024 lds")
    for i in range(3): a(f"s_mov_b32 s{sWS[i]}, {WST[i]}\ns_mov_b32 s{sXS[i]}, {XST[i]}")
    srd(a, SRD_WS, S_DBG + 2, WS_END)
    srd(a, SRD_O, S_DBG, 256)
    a(f"v_mov_b32 v{Z}, 0\nv_lshlrev_b32 v{FA}, 2, v1\ns_mov_b32 s{sN}, 0")
    a(f"s_cmp_eq_u32 s2, 0\ns_cselect_b32 s{S_T3}, 2, 15")
    DW_ = int(OPT.get("dw", 4))
    npc = (0 if OPT.get("now") else 2) + (0 if OPT.get("nox") else 4)
    def part(w0, w1):
        for w in range(w0, w1):
            a("s_waitcnt vmcnt(57)")
            for h in range(0 if OPT.get("now") else 2):
                a(f"""
                s_add_u32 m0, s{sWS[0]}, {h*8192 + w*1024}
                s_add_u32 s{S_T0}, s{sWO}, {(32*h + 4*w)*3456}
                buffer_load_dwordx4 v{AD0 + ((w >> 1) & 1)}, {sr(SRD_W,4)}, s{S_T0} offen lds
                """)
            for u in range(0 if OPT.get("nox") else 4):
                a(f"""
                s_add_u32 m0, s{sXS[0]}, {w*4096 + u*1024}
                s_add_u32 s{S_T0}, s{sXO}, {(32*w + 16*(u >> 1))*1152}
                buffer_load_dwordx4 v{AX0 + (u & 1)}, {sr(SRD_X,4)}, s{S_T0} offen lds
                """)
    a.label("L_ld_pair")
    part(0, DW_)
    a(f"s_cmp_eq_u32 s{sN}, 0\ns_cbranch_scc1 L_ld_first\ns_waitcnt vmcnt({npc*DW_})\ns_barrier")
    a(f"s_cmp_eq_u32 s{sN}, s{S_T3}\ns_cbranch_scc1 L_ld_ready")
    a.label("L_ld_second")
    part(DW_, 8)
    for r in (sWS, sXS):
        a(f"s_mov_b32 s{S_T0}, s{r[0]}\ns_mov_b32 s{r[0]}, s{r[1]}\ns_mov_b32 s{r[1]}, s{r[2]}\ns_mov_b32 s{r[2]}, s{S_T0}")
    a(f"""
    s_add_u32 s{sWO}, s{sWO}, {64*3456}
    s_add_u32 s{sXO}, s{sXO}, 128
    s_add_u32 s{sN}, s{sN}, 1
    s_cmp_lt_u32 s{sN}, 9
    s_cbranch_scc1 L_ld_pair
    s_waitcnt vmcnt(0)
    s_barrier
    """)
    rdy = f"buffer_load_dword v{FL}, v{Z}, {sr(SRD_O,4)}, 0 offen sc1"
    a(f"""
    s_mov_b64 exec, 1
    {rdy}
    s_lshl_b32 s{S_KVB}, s{S_GRP}, 3
    s_add_u32 s{sO}, s{S_KVB}, s{S_TB}
    s_mul_i32 s{sO}, s{sO}, {SLOT}
    s_mul_i32 s{S_KVB}, s{S_KVB}, {SLOT}
    s_lshl_b32 s{S_X1}, s{S_GRP}, 7
    s_add_u32 s{S_X1}, s{S_X1}, {WS_F1}
    s_lshl_b32 s{S_X0}, s{S_TB}, 2
    s_add_u32 s{S_X0}, s{S_X0}, s{S_X1}
    """)
    spin(a, "rdy", rdy, FL)
    a(f"""
    s_mov_b64 exec, -1
    v_mul_u32_u24 v2, 57, v1
    v_lshrrev_b32 v2, 9, v2
    v_mul_u32_u24 v2, {1152 - 144}, v2
    v_lshl_add_u32 v2, v1, 4, v2
    s_lshr_b32 s{S_C0}, s2, 5
    s_mul_i32 s{S_C0}, s{S_C0}, 144
    v_add_u32 v{DW}, s{S_C0}, v2
    s_barrier
    """)
    def flag(soff):
        a(f"v_mov_b32 v{FL}, 1\ns_mov_b64 exec, 1\nbuffer_store_dword v{FL}, v{Z}, {sr(SRD_WS,4)}, s{soff} offen sc1\ns_mov_b64 exec, -1")
    def publish():
        rd = lambda i: a(f"ds_read_b128 {vr(BUF+4*(i%24),4)}, v{LA} offset:{1024*i}")
        for i in range(12): rd(i)
        for i in range(40):
            if i + 12 < 40: rd(i + 12)
            a(f"s_waitcnt lgkmcnt({min(12, 39 - i)})")
            a(f"buffer_store_dwordx4 {vr(BUF+4*(i%24),4)}, v{LA}, {sr(SRD_WS,4)}, s{sO} offen offset:{1024*(i%4)} sc1")
            if i % 4 == 3: a(f"s_add_u32 s{sO}, s{sO}, 4096")
        stamp(a, 13)
        a("s_waitcnt vmcnt(0)")
        flag(S_X0); stamp(a, 5)
    def kv_setup(c):
        a(f"""
        s_cmp_gt_u32 s{S_TB}, {(c - 1) % 8}
        s_cselect_b32 s{S_T0}, {(c - 1) % 8}, {c % 8}
        s_mul_i32 s{S_T0}, s{S_T0}, {SLOT}
        s_add_u32 s{sS}, s{S_T0}, s{S_KVB}
        s_mov_b32 s{sM}, {(c % 4) * SLOT}
        """)
    def kv_pieces(n):
        lab = a.uid("L_kv")
        a(f"s_mov_b32 s{sN}, {n // 4}")
        a.label(lab)
        a(f"s_waitcnt vmcnt(59)\ns_mov_b32 m0, s{sM}\ns_add_u32 s{sM}, s{sM}, 4096")
        for i in range(4): a(f"buffer_load_dwordx4 v{LA}, {sr(SRD_WS,4)}, s{sS} offen offset:{1024*i} sc1 lds")
        a(f"s_add_u32 s{sS}, s{sS}, 4096\ns_sub_u32 s{sN}, s{sN}, 1\ns_cmp_lg_u32 s{sN}, 0\ns_cbranch_scc1 {lab}")
    ld1 = f"buffer_load_dword v{FL}, v{FA}, {sr(SRD_WS,4)}, s{S_X1} offen sc1"
    def need(tag, c):
        a(f"s_cmp_gt_u32 s{S_TB}, {c-1}\ns_cselect_b64 exec, {1 << (c-1)}, {1 << c}\n{ld1}")
        spin(a, tag, ld1, FL)
        a("s_mov_b64 exec, -1")
    a(f"s_cmp_ge_u32 s{S_TB}, 3\ns_cbranch_scc1 L_first_chunk")
    a.label("L_publish")
    publish()
    a(f"s_cmp_ge_u32 s{S_TB}, 3\ns_cbranch_scc1 L_published")
    a.label("L_first_chunk")
    need("kv1", 1); stamp(a, 6)
    kv_setup(1); kv_pieces(40)
    a("s_waitcnt vmcnt(0)")
    stamp(a, 14)
    a("s_barrier")
    stamp(a, 15)
    need("kv2", 2)
    kv_setup(2); kv_pieces(40)
    a(f"s_waitcnt vmcnt(20)\ns_cmp_ge_u32 s{S_TB}, 3\ns_cbranch_scc1 L_publish")
    a.label("L_published")
    a(f"s_waitcnt vmcnt(0)\ns_barrier\ns_mov_b64 exec, 0xff\n{ld1}")
    spin(a, "kv3", ld1, FL)
    a("s_mov_b64 exec, -1")
    kv_setup(3); kv_pieces(40)
    for c in range(4, int(OPT.get('nch', 8))):
        kv_setup(c); kv_pieces(40)
        a("s_waitcnt vmcnt(40)\ns_barrier")
    def wo(b, n0, n1, dst=None):
        lab = a.uid("L_wo")
        p = S_PTR + 4 + 6 * b
        a(f"""
        s_mov_b32 s{SRD_G}, s{p}
        s_and_b32 s{SRD_G+1}, s{p+1}, 0xffff
        s_mov_b32 s{SRD_G+2}, {576*1152}
        s_mov_b32 s{sS}, {n0*6*1152}
        s_mov_b32 s{sM}, {(96*b + n0)*WPIECE if dst is None else dst}
        """)
        a.label(lab)
        a(f"""
        s_waitcnt vmcnt(60)
        s_mov_b32 m0, s{sM}
        s_add_u32 s{sM}, s{sM}, {WPIECE}
        buffer_load_dwordx4 v{DW}, {sr(SRD_G,4)}, s{sS} offen lds
        s_add_u32 s{sS}, s{sS}, {6*1152}
        s_cmp_lt_u32 s{sS}, {n1*6*1152}
        s_cbranch_scc1 {lab}
        """)
    a("s_mov_b32 exec_hi, 0x3fffff")
    wo(0, 0, 47)
    a("s_waitcnt vmcnt(47)\ns_barrier")
    wo(0, 47, 94)
    a("s_barrier")
    wo(0, 94, 96); wo(1, 0, 46)
    a(f"""
    s_lshl_b32 s{S_X0}, s{S_TB}, 7
    s_lshl_b32 s{S_T0}, s{S_GRP}, 2
    s_add_u32 s{S_X0}, s{S_X0}, s{S_T0}
    s_add_u32 s{S_X0}, s{S_X0}, {WS_F2}
    s_and_b32 s{S_X1}, s2, 7
    s_lshl_b32 s{S_X1}, s{S_X1}, 7
    s_add_u32 s{S_X1}, s{S_X1}, {WS_F2}
    s_barrier
    """)
    wo(1, 46, 93)
    a("s_waitcnt vmcnt(0)\ns_barrier")
    flag(S_X0); stamp(a, 9)
    a("s_mov_b32 exec_hi, 0x3fffff\ns_barrier")
    wo(1, 93, 96, dst=0)
    ld2 = f"buffer_load_dword v{FL}, v{FA}, {sr(SRD_WS,4)}, s{S_X1} offen sc1"
    a(f"s_mov_b32 exec_hi, 0\n{ld2}")
    spin(a, "o", ld2, FL)
    stamp(a, 10)
    a("s_barrier")
    stamp_out(a)
    a("s_endpgm")
    a.label("L_ld_first")
    a(f"""
    s_waitcnt vmcnt(56)
    s_cmp_lg_u32 s2, 0
    s_cbranch_scc1 L_ld_second
    v_mov_b32 v{BUF}, 0
    v_mov_b32 v{BUF+1}, 0
    v_mov_b32 v{BUF+2}, 0
    v_mov_b32 v{BUF+3}, 0
    s_mov_b32 s{S_T0}, {WS_F1}
    """)
    for i in range(4): a(f"buffer_store_dwordx4 {vr(BUF,4)}, v{LA}, {sr(SRD_WS,4)}, s{S_T0} offen offset:{1024*i} sc1")
    a(f"""
    s_mov_b32 s{S_T0}, {WS_F2}
    buffer_store_dwordx4 {vr(BUF,4)}, v{LA}, {sr(SRD_WS,4)}, s{S_T0} offen sc1
    s_branch L_ld_second
    """)
    a.label("L_ld_ready")
    a(f"""
    v_mov_b32 v{FL}, 1
    s_mov_b64 exec, 1
    buffer_store_dword v{FL}, v{Z}, {sr(SRD_O,4)}, 0 offen sc1
    s_mov_b64 exec, -1
    s_branch L_ld_second
    """)

def build():
    a = Asm()
    a("s_cmp_ge_u32 s2, 256\ns_cbranch_scc1 L_exit")
    stamp(a, 0); stamp(a, 16, True)
    entry(a)
    a.late = True
    loader(a)
    a.late = False
    a.label("L_compute")
    phase1(a); stamp(a, 4); a.late = True
    att_setup(a)
    stamp(a, 7); stamp(a, 18, True)
    if OPT.get("align"): a(".p2align 6")
    a.label("L_att_loop")
    att_chunk(a)
    a(f"s_add_u32 s{S_CH}, s{S_CH}, 1\ns_cmp_lt_u32 s{S_CH}, {int(OPT.get('nch', 8)) - 1}\ns_cbranch_scc1 L_att_loop")
    att_chunk(a, last=True)
    stamp(a, 8); stamp(a, 19, True)
    att_finish(a); phase3(a)
    att_slow(a)
    a.label("L_exit"); a("s_endpgm")
    return a, max(P1_END, P2_END, P3_END)

def emit(path):
    a, nv = build()
    label = NAME + "_kernel"
    nv4 = (nv + 3) // 4 * 4
    s = open(f"cdna_kernels/{NAME}.s.ref").read().split("; Override launch")[0]
    s += "; @launch grid=(256,1,1) block=(576,1,1) lds=163840\n"
    s += f""".amdgcn_target "amdgcn-amd-amdhsa--gfx950"
.text
.globl {label}
.p2align 8
.type {label},@function
{label}:
{a.text()}.section .rodata,"a"
.p2align 6
.amdhsa_kernel {label}
  .amdhsa_next_free_vgpr {nv4}
  .amdhsa_next_free_sgpr {102 if PROF or OPT.get('delay') else 72}
  .amdhsa_accum_offset {nv4}
  .amdhsa_group_segment_fixed_size 0
  .amdhsa_kernarg_size 80
  .amdhsa_user_sgpr_count 2
  .amdhsa_user_sgpr_kernarg_segment_ptr 1
  .amdhsa_system_sgpr_workgroup_id_x 1
.end_amdhsa_kernel
"""
    errs = check_hazards(a.lines) + check_waits(a.lines)
    for e in errs: print(e)
    if errs and not OPT.get("force"):
        print("NOT written:", path); sys.exit(1)
    open(path, "w").write(s)
    import subprocess
    r = subprocess.run([sys.executable, "cdna_unwritten_srd_check.py", path], capture_output=True, text=True)
    if r.returncode:
        print(r.stdout, r.stderr); open(path, "w").write(""); print("REMOVED:", path); sys.exit(1)
    print("wrote", path, "checks", "FAILED" if errs else "OK", len(a.lines), "lines", nv, "vgprs")

if __name__ == "__main__":
    for x in list(sys.argv):
        if x.startswith("-O"):
            k, v = (x[2:].split("=") + ["1"])[:2]; OPT[k] = v.replace("_", " "); sys.argv.remove(x)
    if "--prof" in sys.argv: PROF = True; sys.argv.remove("--prof")
    emit(sys.argv[1] if len(sys.argv) > 1 else f"cdna_kernels/{NAME}.s")
```

```python
import sys, math, struct
from asmlib import Asm, vr, sr, check_hazards, check_waits

NAME = "gated_mix__softmax_full_mha__softmax_full_mha__prompt"
def f32(x): return struct.unpack("<I", struct.pack("<f", x))[0]

VSUB = 640
VOFF, KROFF = 2048, 2048 + 4 * VSUB
PB = KROFF + 512
HS = 4 * PB
SLOT = 2 * HS
QIMG = 3 * SLOT
WST = (8192, 24576, 40960)
XST = (90112, 122880, 57344)
GATE_LDS = 155648
WS_KV = 0
WS_OM = 256 * SLOT
WS_OR = WS_OM + 128 * 32 * 1024
WS_F1 = WS_OR + 32 * 2048 * 8
WS_F2 = WS_F1 + 4096
WS_END = WS_F2 + 1024
QSCALE = math.log2(math.e) / math.sqrt(18.0)
SPIN_MAX = 1 << 18
def vpos_slot(s): return 12 + s if s < 4 else s - 4 if s < 12 else s + 4 if s < 16 else s - 7 if s < 19 else 8
def vslot_dim(d): return 8 * (d & 1) + (d >> 1) if d < 16 else d
def vpos_dim(d): return vpos_slot(vslot_dim(d))

PROF = False
OPT = {}
WS_PROF = WS_END
def stamp(a, i, cyc=False):
    if not PROF: return
    if OPT.get("g1prof") and 5 <= i <= 12 and getattr(a, "late", False): return
    a(f"{'s_memtime' if cyc else 's_memrealtime'} s[70:71]\ns_waitcnt lgkmcnt(0)\ns_mov_b32 s{72+i}, s70")
def stamp_out(a, n=24):
    if not PROF: return
    if OPT.get("dbgprof"):
        lab = a.uid("L_nodbg")
        a(f"s_lshl_b32 s70, s2, 4\ns_add_u32 s70, s70, s{S_W}\ns_cmp_lg_u32 s70, {16*int(OPT['dbgprof'])}\ns_cbranch_scc1 {lab}")
        srd(a, SRD_G, S_DBG, 256)
        a("s_mov_b64 exec, 1\nv_mov_b32 v3, 0")
        for i in range(1, 13):
            a(f"s_sub_u32 s71, s{72+i}, s72\nv_mov_b32 v2, s71\nbuffer_store_dword v2, v3, s[16:19], 0 offen offset:{4*i}")
        a(f"s_sub_u32 s71, s{72+19}, s{72+18}\nv_mov_b32 v2, s71\nbuffer_store_dword v2, v3, s[16:19], 0 offen offset:52")
        a(f"s_sub_u32 s71, s{72+17}, s{72+16}\nv_mov_b32 v2, s71\nbuffer_store_dword v2, v3, s[16:19], 0 offen offset:56")
        a.label(lab)
        return
    a(f"s_getreg_b32 s94, hwreg(HW_REG_HW_ID)\ns_getreg_b32 s95, hwreg(HW_REG_XCC_ID)")
    a(f"s_lshl_b32 s70, s2, 4\ns_add_u32 s70, s70, s{S_W}\ns_lshl_b32 s70, s70, 7\ns_add_u32 s70, s70, {WS_PROF}")
    a("s_mov_b64 exec, 1\ns_mov_b32 s14, 0x10000000\nv_mov_b32 v3, 0")
    for i in range(n):
        a(f"v_mov_b32 v2, s{72+i}\nbuffer_store_dword v2, v3, s[12:15], s70 offen offset:{4*i}")

SRD_X, SRD_W, SRD_WS, SRD_G, SRD_O = 4, 8, 12, 16, 20
S_W, S_TB, S_GRP, S_B, S_P = 24, 25, 26, 27, 28
S_T0, S_T1, S_T2, S_T3 = 29, 30, 31, 32
S_X0, S_X1, S_WOFF, S_QS = 33, 34, 35, 36
S_CH, S_M0, S_KVB, S_SOFF, S_CNT = 37, 38, 39, 40, 41
S_EX = 42
S_PTR = 44
S_DBG = 60
S_MSTEP, S_SSTEP, S_NSL, S_C0 = 64, 65, 66, 67
S_OK = 68

def srd(a, d, ptr, size):
    a(f"s_mov_b32 s{d}, s{ptr}\ns_and_b32 s{d+1}, s{ptr+1}, 0xffff\ns_mov_b32 s{d+2}, {size}\ns_mov_b32 s{d+3}, 0x00020000")

def spin(a, tag, load, reg):
    a(f"s_mov_b32 s{S_CNT}, {SPIN_MAX}")
    a.label(f"L_spin_{tag}")
    a(f"""
    s_waitcnt vmcnt(0)
    v_cmp_eq_u32 vcc, 0, v{reg}
    s_cbranch_vccz L_got_{tag}
    s_sleep {OPT.get('slp', 1)}
    {load}
    s_sub_u32 s{S_CNT}, s{S_CNT}, 1
    s_cmp_lg_u32 s{S_CNT}, 0
    s_cbranch_scc1 L_spin_{tag}
    s_waitcnt vmcnt(0)
    """)
    a.label(f"L_got_{tag}")

ACC = 8
WF = ACC + 56
XF = WF + 56
AW = XF + 16
AG, AXR = AW + 7, AW + 8
EKM, EVA, EVB, EMID, EONE, EKC, ESC = range(AW + 12, AW + 19)
PF = ESC + 1
P1_END = PF + 5
T_QA, T_QB, T_KA, T_KB, T_VA, T_VB, T_MID = range(7)
acc = lambda n, tt: ACC + (2 * n + tt) * 4

def p1_reads(ks):
    wf = WF + 28 * (ks % 2); xf = XF + 8 * (ks % 2)
    st = (ks // 2) % 3
    off = WST[st] - WST[0] + (ks % 2) * 8192
    xa, xo = (AXR + 2, 0) if st == 1 else (AXR, XST[st] - XST[2])
    L = [[f"ds_read_b128 {vr(xf+4*tt,4)}, v{xa+ks%2} offset:{xo + tt*2048}" for tt in range(2)]]
    for n in (T_QA, T_QB, T_KA, T_KB, T_VA, T_VB, T_MID):
        g = [f"ds_read_b64_tr_b16 {vr(wf+4*n,2)}, v{AW+n} offset:{off}",
             f"ds_read_b64_tr_b16 {vr(wf+4*n+2,2)}, v{AW+n} offset:{off+1024}"]
        if n == T_MID:
            g += [f"s_mov_b64 exec, {sr(S_EX,2)}",
                  f"ds_read_b128 {vr(wf+4*n,4)}, v{AG} offset:{64*ks}",
                  "s_mov_b64 exec, -1"]
        L.append(g)
    return L

def byte_table(a, dst, idx, table):
    w = [sum(table[4*i+k] << (8*k) for k in range(4)) for i in range(len(table) // 4)]
    a(f"v_and_b32 v{dst}, 7, v{idx}\nv_or_b32 v{dst}, 0x0c0c0c00, v{dst}")
    a(f"s_mov_b32 s{S_CNT}, {hex(w[1])}\nv_mov_b32 v{ACC+4}, {hex(w[0])}")
    if len(w) == 2:
        a(f"v_perm_b32 v{dst}, s{S_CNT}, v{ACC+4}, v{dst}"); return
    a(f"v_perm_b32 v{ACC+5}, s{S_CNT}, v{ACC+4}, v{dst}")
    a(f"s_mov_b32 s{S_CNT}, {hex(w[3])}\nv_mov_b32 v{ACC+4}, {hex(w[2])}\nv_cmp_gt_u32 vcc, 8, v{idx}")
    a(f"v_perm_b32 v{dst}, s{S_CNT}, v{ACC+4}, v{dst}\ns_nop 0\nv_cndmask_b32 v{dst}, v{dst}, v{ACC+5}, vcc")

MAP = {
 "4": f"""s_and_b32 s{S_T0}, s2, 7
    s_lshl_b32 s{S_T0}, s{S_T0}, 2
    s_bfe_u32 s{S_T1}, s2, 0x20003
    s_or_b32 s{S_GRP}, s{S_T0}, s{S_T1}
    s_lshr_b32 s{S_TB}, s2, 5""",
 "s": f"""s_and_b32 s{S_T0}, s2, 7
    s_lshl_b32 s{S_T0}, s{S_T0}, 2
    s_bfe_u32 s{S_T1}, s2, 0x10006
    s_lshl_b32 s{S_T1}, s{S_T1}, 1
    s_or_b32 s{S_GRP}, s{S_T0}, s{S_T1}
    s_lshr_b32 s{S_T0}, s2, 7
    s_bfe_u32 s{S_T1}, s2, 0x10001
    s_xor_b32 s{S_T0}, s{S_T0}, s{S_T1}
    s_xor_b32 s{S_T0}, s{S_T0}, 1
    s_or_b32 s{S_GRP}, s{S_GRP}, s{S_T0}
    s_bfe_u32 s{S_TB}, s2, 0x30003""",
 "8": f"""s_bfe_u32 s{S_T0}, s2, 0x20001
    s_lshl_b32 s{S_T0}, s{S_T0}, 3
    s_bfe_u32 s{S_T1}, s2, 0x30003
    s_or_b32 s{S_GRP}, s{S_T0}, s{S_T1}
    s_and_b32 s{S_T0}, s2, 1
    s_lshl_b32 s{S_T0}, s{S_T0}, 2
    s_lshr_b32 s{S_TB}, s2, 6
    s_or_b32 s{S_TB}, s{S_TB}, s{S_T0}""",
}
def entry(a):
    if OPT.get("hfirst"): a("s_memrealtime s[70:71]")
    a(f"""
    s_load_dwordx16 {sr(S_PTR,16)}, s[0:1], 0
    s_load_dwordx4 {sr(S_DBG,4)}, s[0:1], 64
    v_readfirstlane_b32 s{S_W}, v0
    v_and_b32 v1, 63, v0
    {MAP[OPT.get("map", "s")]}
    s_lshr_b32 s{S_B}, s{S_GRP}, 4
    s_and_b32 s{S_P}, s{S_GRP}, 15
    s_lshr_b32 s{S_W}, s{S_W}, 6
    v_lshrrev_b32 v2, 4, v1
    v_and_b32 v3, 15, v1
    """)
    if OPT.get("hold"):
        if not OPT.get("hfirst"): a("s_waitcnt lgkmcnt(0)\ns_memrealtime s[70:71]")
        a(f"s_waitcnt lgkmcnt(0)\ns_add_u32 s72, s70, {int(OPT['hold'])}")
        if OPT.get("hwg"): a(f"s_cmp_eq_u32 s2, {OPT['hwg']}\ns_cselect_b32 s72, s72, s70")
    if OPT.get("delay"):
        a(f"s_memrealtime s[70:71]\ns_waitcnt lgkmcnt(0)\ns_add_u32 s72, s70, {int(OPT['delay'])}")
        a.label("L_delay")
        a("s_sleep 4\ns_memrealtime s[70:71]\ns_waitcnt lgkmcnt(0)\ns_sub_u32 s71, s72, s70\ns_cmp_gt_i32 s71, 0\ns_cbranch_scc1 L_delay")
    a(f"s_cmp_lt_u32 s{S_W}, 8\ns_cbranch_scc1 L_compute")

def prefetch(a):
    a(f"""
    s_cmp_lt_u32 s2, 128
    s_cbranch_scc1 L_nopf
    s_and_b32 s{S_T0}, s2, 127
    s_lshl_b32 s{S_T0}, s{S_T0}, 3
    s_add_u32 s{S_T0}, s{S_T0}, s{S_W}
    s_mul_i32 s{S_T1}, s{S_T0}, {12*128}
    s_add_u32 s{S_T1}, s{S_T1}, {128*3456}
    s_mul_i32 s{S_T0}, s{S_T0}, {18*128}
    v_lshlrev_b32 v4, 7, v1
    s_waitcnt lgkmcnt(0)
    """)
    srd(a, SRD_X, S_PTR, 2048 * 1152)
    srd(a, SRD_W, S_PTR + 2, 576 * 3456)
    srd(a, SRD_G, S_PTR + 8, 576 * 3456)
    a(f"""
    s_mov_b64 exec, 0xfff
    buffer_load_dword v{PF+1}, v4, {sr(SRD_W,4)}, s{S_T1} offen
    buffer_load_dword v{PF+2}, v4, {sr(SRD_G,4)}, s{S_T1} offen
    s_mov_b64 exec, 0x3ffff
    buffer_load_dword v{PF}, v4, {sr(SRD_X,4)}, s{S_T0} offen
    s_mov_b64 exec, -1
    """)
    a.label("L_nopf")

def phase1(a):
    if OPT.get("pf", "early") == "early": prefetch(a)
    a(f"""
    s_lshl_b32 s{S_T3}, s{S_W}, 12
    s_add_u32 s{S_T3}, s{S_T3}, {XST[2]}
    v_lshrrev_b32 v4, 1, v3
    v_xor_b32 v4, v4, v2
    v_lshlrev_b32 v5, 7, v3
    v_add_u32 v5, s{S_T3}, v5
    v_lshl_add_u32 v{AXR}, v4, 4, v5
    v_xor_b32 v4, 4, v4
    v_lshl_add_u32 v{AXR+1}, v4, 4, v5
    v_add_u32 v{AXR+2}, {XST[1]-XST[2]}, v{AXR}
    v_add_u32 v{AXR+3}, {XST[1]-XST[2]}, v{AXR+1}
    v_bfe_u32 v4, v1, 2, 2
    v_and_b32 v5, 3, v1
    v_and_b32 v6, 1, v2
    v_lshlrev_b32 v6, 2, v6
    v_or_b32 v6, v6, v4
    v_lshlrev_b32 v6, 1, v6
    v_lshl_add_u32 v7, v2, 3, v4
    v_lshlrev_b32 v7, 8, v7
    v_add_u32 v7, {WST[0]}, v7
    """)
    u, t = ACC, ACC + 1
    def addr(n):
        a(f"""
        v_lshrrev_b32 v{t}, 1, v{u}
        v_xor_b32 v{t}, v{t}, v6
        v_lshl_add_u32 v{t}, v{t}, 4, v7
        v_and_b32 v{u+2}, 1, v{u}
        v_lshl_add_u32 v{AW+n}, v{u+2}, 3, v{t}
        """)
    a(f"v_lshrrev_b32 v{u}, 1, v5\nv_lshl_add_u32 v{u}, v5, 1, v{u}"); addr(T_QA)
    a(f"v_add_u32 v{u}, 1, v{u}"); addr(T_QB)
    a(f"v_add_u32 v{u}, 9, v{u}"); addr(T_KA)
    a(f"v_add_u32 v{u}, 1, v{u}"); addr(T_KB)
    a(f"v_add_u32 v{u}, 21, v5"); addr(T_VA)
    a(f"v_add_u32 v{u}, 25, v5"); addr(T_VB)
    a(f"v_lshlrev_b32 v{u}, 3, v5\ns_mov_b32 s{S_T0}, 0x1b1d0e04\nv_lshrrev_b32 v{u}, v{u}, s{S_T0}\nv_and_b32 v{u}, 0xff, v{u}"); addr(T_MID)
    a(f"v_lshlrev_b32 v{AG}, 4, v2\nv_add_u32 v{AG}, {GATE_LDS}, v{AG}")
    a(f"s_mov_b32 s{S_EX}, 0xf000f000\ns_mov_b32 s{S_EX+1}, 0xf000f000")
    byte_table(a, EVA, 3, [vpos_dim(d) for d in range(16)])
    byte_table(a, EVB, 3, [vpos_dim(16), vpos_dim(17)] + [vpos_dim(d) for d in range(14)])
    a(f"""
    s_lshr_b32 s{S_T0}, s{S_W}, 1
    s_mul_i32 s{S_T0}, s{S_T0}, {PB}
    s_and_b32 s{S_T1}, s{S_W}, 1
    v_lshrrev_b32 v4, 1, v2
    v_and_b32 v5, 1, v2
    v_mul_u32_u24 v6, {HS}, v4
    v_lshl_add_u32 v7, v5, 5, v3
    v_lshl_add_u32 v6, v7, 4, v6
    s_lshl_b32 s{S_QS}, s{S_T1}, 10
    s_add_u32 s{S_QS}, s{S_QS}, s{S_T0}
    v_add_u32 v{EKM}, s{S_QS}, v6
    s_mul_i32 s{S_QS}, s{S_T1}, {2*VSUB}
    s_add_u32 s{S_QS}, s{S_QS}, s{S_T0}
    s_add_u32 s{S_QS}, s{S_QS}, {VOFF}
    v_mul_u32_u24 v6, 320, v4
    v_lshl_add_u32 v6, v5, 3, v6
    v_add_u32 v6, s{S_QS}, v6
    v_lshl_add_u32 v{EVA}, v{EVA}, 4, v6
    v_lshl_add_u32 v{EVB}, v{EVB}, 4, v6
    v_mov_b32 v6, {HS}
    v_cmp_gt_u32 vcc, 2, v3
    v_lshrrev_b32 v4, 3, v3
    v_mul_u32_u24 v4, 320, v4
    v_cndmask_b32 v6, v6, 0, vcc
    v_add_u32 v{EVB}, v{EVB}, v6
    v_and_b32 v5, 7, v3
    v_lshl_add_u32 v4, v5, 1, v4
    s_add_u32 s{S_CNT}, s{S_QS}, {HS}
    v_add_u32 v4, s{S_CNT}, v4
    s_lshl_b32 s{S_T1}, s{S_T1}, 3
    s_add_u32 s{S_T1}, s{S_T1}, s{S_T0}
    s_add_u32 s{S_T1}, s{S_T1}, {KROFF}
    v_lshlrev_b32 v5, 4, v3
    v_add_u32 v5, s{S_T1}, v5
    v_add_u32 v6, {QIMG}, v5
    v_cmp_eq_u32 vcc, 1, v2
    v_add_u32 v7, 4, v6
    s_nop 0
    v_cndmask_b32 v6, v6, v5, vcc
    v_cmp_eq_u32 vcc, 2, v2
    v_mov_b32 v{ESC}, 1.0
    s_nop 0
    v_cndmask_b32 v6, v6, v4, vcc
    v_cmp_eq_u32 vcc, 3, v2
    v_mov_b32 v5, {hex(f32(QSCALE))}
    s_nop 0
    v_cndmask_b32 v{EMID}, v6, v7, vcc
    v_cmp_eq_u32 vcc, 0, v2
    v_bfe_u32 v4, v1, 2, 1
    v_mul_u32_u24 v4, {HS}, v4
    v_cndmask_b32 v{ESC}, v{ESC}, v5, vcc
    v_and_b32 v5, 3, v1
    v_mul_u32_u24 v5, 320, v5
    v_bfe_u32 v6, v1, 3, 1
    v_mul_u32_u24 v6, {16*(vpos_slot(18)-vpos_slot(19))}, v6
    v_add3_u32 v4, v4, v5, v6
    s_add_u32 s{S_QS}, s{S_QS}, {16*vpos_slot(19)}
    v_add_u32 v{EONE}, s{S_QS}, v4
    v_lshrrev_b32 v4, 5, v1
    v_mul_u32_u24 v4, {HS}, v4
    v_and_b32 v5, 31, v1
    v_lshl_add_u32 v4, v5, 4, v4
    s_add_u32 s{S_T1}, s{S_T1}, 4
    v_add_u32 v{EKC}, s{S_T1}, v4
    s_mov_b32 s{S_QS}, {hex(f32(QSCALE))}
    s_waitcnt lgkmcnt(0)
    """)
    srd(a, SRD_WS, S_DBG + 2, WS_END)
    srd(a, SRD_O, S_PTR + 14, 2048 * 1152)
    att_addr(a)
    if OPT.get("pf", "early") == "late": prefetch(a)
    if OPT.get("tlb"):
        a(f"""
        v_lshlrev_b32 v4, 18, v1
        buffer_load_dword v{PF+3}, v4, {sr(SRD_WS,4)}, 0 offen
        buffer_load_dword v{PF+4}, v4, {sr(SRD_O,4)}, 0 offen
        """)
    stamp(a, 1)
    a("s_barrier")
    stamp(a, 2)
    for g in p1_reads(0):
        for x in g: a(x)
    for ks in range(18):
        n = ks // 2
        a("s_waitcnt lgkmcnt(0)")
        if ks % 2 == 1 and n + 1 < 9:
            a("s_barrier")
            if OPT.get("g1prof"): stamp(a, 5 + n)
        groups = p1_reads(ks + 1) if ks + 1 < 18 else []
        if OPT.get("noreads"): groups = []
        if OPT.get("noxreads"): groups = groups[1:]
        wf = WF + 28 * (ks % 2); x = XF + 8 * (ks % 2)
        i = 0
        for nn in (T_QA, T_QB, T_KA, T_KB, T_VA, T_VB, T_MID):
            for tt in range(2):
                c = vr(acc(nn, tt), 4)
                cin = "0" if ks == 0 else c
                if OPT.get("nomfma") and 0 < ks < 17: pass
                elif nn in (T_VA, T_VB):
                    a(f"v_mfma_f32_16x16x32_bf16 {c}, {vr(x+4*tt,4)}, {vr(wf+4*nn,4)}, {cin}")
                else:
                    a(f"v_mfma_f32_16x16x32_bf16 {c}, {vr(wf+4*nn,4)}, {vr(x+4*tt,4)}, {cin}")
                if i < len(groups):
                    for y in groups[i]: a(y)
                i += 1
    stamp(a, 3)
    a("s_waitcnt vmcnt(0)")
    T = WF
    a(f"v_bfe_u32 v{T+16}, v1, 3, 1\ns_mov_b32 s{S_T0}, 0x3f803f80\nv_mul_lo_u32 v{T+16}, v{T+16}, s{S_T0}\nv_mov_b32 v{T+20}, 0x3f80")
    a(f"v_mov_b32 v{T+17}, v{T+16}\nv_mov_b32 v{T+18}, v{T+16}\nv_mov_b32 v{T+19}, v{T+16}")
    a(f"ds_write_b32 v{EKC}, v{T+20}")
    a(f"s_mov_b64 exec, 0xffff\nds_write_b128 v{EONE}, {vr(T+16,4)}\ns_mov_b64 exec, -1")
    a(f"v_add_u32 v{T+21}, {QIMG}, v{EKM}")
    for tt in range(2):
        t = T + 24 + 16 * tt
        for k, n in enumerate((T_KA, T_KB)):
            c = acc(n, tt)
            a(f"v_cvt_pk_bf16_f32 v{t+2*k}, v{c}, v{c+1}\nv_cvt_pk_bf16_f32 v{t+2*k+1}, v{c+2}, v{c+3}")
        a(f"ds_write_b128 v{EKM}, {vr(t,4)} offset:{256*tt}")
        for k, (n, ad) in enumerate(((T_VA, EVA), (T_VB, EVB))):
            c = acc(n, tt)
            a(f"v_cvt_pk_bf16_f32 v{t+4+2*k}, v{c}, v{c+1}\nv_cvt_pk_bf16_f32 v{t+5+2*k}, v{c+2}, v{c+3}")
            a(f"ds_write_b64 v{ad}, {vr(t+4+2*k,2)} offset:{VSUB*tt}")
        c = acc(T_MID, tt)
        for e in range(4): a(f"v_mul_f32 v{c+e}, v{ESC}, v{c+e}")
        a(f"v_cvt_pk_bf16_f32 v{t+12}, v{c}, v{c+1}\nv_cvt_pk_bf16_f32 v{t+13}, v{c+2}, v{c+3}")
        vo = [VSUB * tt + 16 * vpos_dim(14 + e) for e in range(4)]
        a(f"""
        s_mov_b32 exec_lo, 0
        s_mov_b32 exec_hi, 0xffff
        ds_write_b16 v{EMID}, v{t+12} offset:{vo[0]}
        ds_write_b16_d16_hi v{EMID}, v{t+12} offset:{vo[1]}
        ds_write_b16 v{EMID}, v{t+13} offset:{vo[2]}
        ds_write_b16_d16_hi v{EMID}, v{t+13} offset:{vo[3]}
        s_mov_b32 exec_hi, 0xffff0000
        v_mov_b32 v{t+12}, v{c}
        v_mov_b32 v{t+13}, v{c}
        s_mov_b32 exec_lo, -1
        ds_write_b32 v{EMID}, v{t+12} offset:{256*tt}
        ds_write_b32 v{EMID}, v{t+13} offset:{256*tt+HS}
        s_mov_b64 exec, -1
        """)
        for k, n in enumerate((T_QA, T_QB)):
            c = acc(n, tt)
            for e in range(4): a(f"v_mul_f32 v{c+e}, s{S_QS}, v{c+e}")
            a(f"v_cvt_pk_bf16_f32 v{t+8+2*k}, v{c}, v{c+1}\nv_cvt_pk_bf16_f32 v{t+9+2*k}, v{c+2}, v{c+3}")
        a(f"ds_write_b128 v{T+21}, {vr(t+8,4)} offset:{256*tt}")
    att_pre(a)
    a("s_waitcnt lgkmcnt(0)\ns_barrier")

SB = (8, 40); OA = 72; QM = 104; QR = 112; KM = 116; KR = 120; VF = 124
IDX, AKM, AKR, AV, VG = range(132, 137)
BKM, BKR, BV = 160, 161, 162
TMP = 140
P2_END = 163
ORDER = "E3 s3p lv1 E3 2b lkr E8 w0 s0 E4 s1 E4 m0 E4 s2 lv0 E3 m1 lkm E3"

def att_ops(t):
    par = t % 2
    cur, nxt = SB[par], SB[1 - par]
    pb = lambda x: ((x % 8) // 2) * PB
    return cur, {
     "2b": f"v_mfma_f32_32x32x4_2b_bf16 {vr(nxt,32)}, {vr(KR+2*(1-par),2)}, {vr(QR,2)}, 0",
     "m0": f"v_mfma_f32_32x32x16_bf16 {vr(nxt,16)}, {vr(KM,4)}, {vr(QM,4)}, {vr(nxt,16)}",
     "m1": f"v_mfma_f32_32x32x16_bf16 {vr(nxt+16,16)}, {vr(KM,4)}, {vr(QM+4,4)}, {vr(nxt+16,16)}",
     "s0": f"v_smfmac_f32_32x32x32_bf16 {vr(OA,16)}, {vr(VF,4)}, {vr(cur,8)}, v{IDX}",
     "s1": f"v_smfmac_f32_32x32x32_bf16 {vr(OA,16)}, {vr(VF+4,4)}, {vr(cur+8,8)}, v{IDX}",
     "s2": f"v_smfmac_f32_32x32x32_bf16 {vr(OA+16,16)}, {vr(VF,4)}, {vr(cur+16,8)}, v{IDX}",
     "s3": f"v_smfmac_f32_32x32x32_bf16 {vr(OA+16,16)}, {vr(VF+4,4)}, {vr(cur+24,8)}, v{IDX}",
     "s3p": f"v_smfmac_f32_32x32x32_bf16 {vr(OA+16,16)}, {vr(VF+4,4)}, {vr(nxt+24,8)}, v{IDX}",
     "lkr": f"ds_read_b128 {vr(KR,4)}, v{AKR} offset:{pb(t+2)}" if par == 0 else None,
     "lkm": f"ds_read_b128 {vr(KM,4)}, v{AKM} offset:{pb(t+2)+1024*par}",
     "lv0": f"ds_read_b128 {vr(VF,4)}, v{AV} offset:{pb(t+1)+2*VSUB*(1-par)}",
     "lv1": f"ds_read_b128 {vr(VF+4,4)}, v{AV} offset:{pb(t)+2*VSUB*par+VSUB}",
    }

def att_tile(a, t, hooks=None, skip=()):
    cur, ops = att_ops(t)
    e = 0
    for tok in ORDER.split():
        if hooks and tok in hooks: hooks[tok]()
        if tok[0] == "E":
            for _ in range(int(tok[1:])):
                a(f"v_exp_f32 v{cur+e}, v{cur+e}"); e += 1
        elif tok[0] == "w": a(f"s_waitcnt lgkmcnt({tok[1:]})")
        elif ops[tok] and tok not in skip: a(ops[tok])

def att_addr(a):
    a(f"""
    s_lshr_b32 s{S_T0}, s{S_W}, 2
    s_mul_i32 s{S_T0}, s{S_T0}, {HS}
    v_lshlrev_b32 v4, 4, v1
    v_add_u32 v{BKM}, s{S_T0}, v4
    v_and_b32 v7, 31, v1
    v_lshlrev_b32 v4, 4, v7
    s_add_u32 s{S_T1}, s{S_T0}, {KROFF}
    v_add_u32 v{BKR}, s{S_T1}, v4
    v_min_u32 v7, 19, v7
    v_lshrrev_b32 v4, 2, v7
    v_lshlrev_b32 v4, 3, v4
    s_mov_b32 s{S_T2}, 0x1004000c
    v_lshrrev_b32 v6, v4, s{S_T2}
    v_and_b32 v6, 0xff, v6
    v_and_b32 v4, 3, v7
    v_add_u32 v6, v6, v4
    v_add_u32 v4, 1, v4
    v_and_b32 v4, 3, v4
    v_or_b32 v4, 8, v4
    v_cmp_gt_u32 vcc, 16, v7
    v_lshrrev_b32 v5, 5, v1
    v_mul_u32_u24 v5, 20, v5
    v_cndmask_b32 v4, v4, v6, vcc
    v_add_u32 v4, v4, v5
    s_add_u32 s{S_T1}, s{S_T0}, {VOFF}
    v_lshlrev_b32 v4, 4, v4
    v_add_u32 v{BV}, s{S_T1}, v4
    s_and_b32 s{S_NSL}, s{S_W}, 3
    s_mul_i32 s{S_NSL}, s{S_NSL}, {PB}
    s_add_u32 s{S_NSL}, s{S_NSL}, {QIMG}
    """)

def att_pre(a):
    a(f"""
    v_lshrrev_b32 v5, 5, v1
    v_add_u32 v6, s{S_NSL}, v{BKM}
    v_lshl_add_u32 v7, v5, 3, v{BKR}
    v_add_u32 v7, s{S_NSL}, v7
    v_mov_b32 v{IDX}, 0xdddddddd
    v_mov_b32 v{AKM}, v{BKM}
    v_mov_b32 v{AKR}, v{BKR}
    v_mov_b32 v{AV}, v{BV}
    """)

def att_setup(a):
    a(f"""
    ds_read_b128 {vr(QM,4)}, v6
    ds_read_b128 {vr(QM+4,4)}, v6 offset:1024
    ds_read_b64 {vr(QR,2)}, v7
    ds_read_b128 {vr(KR,4)}, v{BKR}
    ds_read_b128 {vr(KM,4)}, v{BKM}
    """)
    a(f"""
    s_and_b32 s{S_T0}, s{S_W}, 3
    s_lshl_b32 s{S_T1}, s{S_TB}, 2
    s_add_u32 s{S_T0}, s{S_T0}, s{S_T1}
    s_lshl_b32 s{S_T1}, s{S_T0}, 17
    s_lshl_b32 s{S_T2}, s{S_GRP}, 10
    s_add_u32 s{S_T1}, s{S_T1}, s{S_T2}
    s_lshr_b32 s{S_T3}, s{S_W}, 2
    s_lshl_b32 s{S_T2}, s{S_T3}, 9
    s_add_u32 s{S_T1}, s{S_T1}, s{S_T2}
    s_add_u32 s{S_X0}, s{S_T1}, {WS_OM}
    s_add_u32 s{S_X1}, s{S_X0}, 0x10000
    v_bfe_u32 v2, v1, 4, 1
    v_lshlrev_b32 v2, 15, v2
    v_lshrrev_b32 v3, 5, v1
    v_lshl_add_u32 v2, v3, 8, v2
    v_and_b32 v3, 15, v1
    v_lshl_add_u32 v2, v3, 4, v2
    s_lshl_b32 s{S_T0}, s{S_T0}, 9
    s_lshl_b32 s{S_T2}, s{S_GRP}, 14
    s_add_u32 s{S_T0}, s{S_T0}, s{S_T2}
    s_lshl_b32 s{S_T3}, s{S_T3}, 2
    s_add_u32 s{S_T0}, s{S_T0}, s{S_T3}
    s_add_u32 s{S_WOFF}, s{S_T0}, {WS_OR}
    v_lshlrev_b32 v3, 3, v1
    s_lshl_b32 s{S_T0}, s{S_B}, 31
    s_xor_b32 s{S_T0}, s{S_T0}, {hex(f32(-math.log2(math.e)))}
    """)
    s0, s1 = SB
    a(f"s_waitcnt lgkmcnt(2)\nv_mul_f32 v{VG}, s{S_T0}, v{QR+1}\nv_mov_b32 v{QR+1}, 0")
    a(f"ds_read_b128 {vr(VF,4)}, v{AV}\ns_waitcnt lgkmcnt(1)")
    qk = lambda: (a(f"v_mfma_f32_32x32x4_2b_bf16 {vr(s0,32)}, {vr(KR,2)}, {vr(QR,2)}, 0"))
    def mains():
        a(f"v_mfma_f32_32x32x16_bf16 {vr(s0,16)}, {vr(KM,4)}, {vr(QM,4)}, {vr(s0,16)}")
        a(f"v_mfma_f32_32x32x16_bf16 {vr(s0+16,16)}, {vr(KM,4)}, {vr(QM+4,4)}, {vr(s0+16,16)}")
    qk()
    for i in range(20): a(f"v_mov_b32 v{OA+i}, 0")
    mains()
    for i in range(20, 32): a(f"v_mov_b32 v{OA+i}, 0")
    T = TMP
    for blk in range(2):
        b = s0 + 16 * blk; m = T + blk
        a(f"v_max3_f32 v{m}, v{b}, v{b+1}, v{b+2}")
        for i in range(3, 15, 2): a(f"v_max3_f32 v{m}, v{m}, v{b+i}, v{b+i+1}")
        a(f"v_max_f32 v{m}, v{m}, v{b+15}")
    a(f"""
    s_nop 1
    v_permlane32_swap_b32 v{T}, v{T+1}
    v_max_f32 v{T}, v{T}, v{T+1}
    v_cvt_pk_bf16_f32 v{QR+1}, -v{T}, 0
    s_nop 1
    """)
    qk()
    for i in range(8): a(f"v_mov_b32 v{s1+24+i}, 0")
    for i in range(4): a(f"v_mov_b32 v{VF+4+i}, 0")
    a(f"""
    s_lshl_b32 s{S_KVB}, s{S_GRP}, 3
    s_mul_i32 s{S_KVB}, s{S_KVB}, {SLOT}
    s_mov_b64 {sr(S_OK,2)}, -1
    s_mov_b32 s{S_CH}, 0
    s_mov_b32 s{S_NSL}, 0
    s_lshr_b32 s{S_C0}, s2, 5
    s_mul_i32 s{S_C0}, s{S_C0}, 144
    """)
    mains()
    a(f"ds_read_b128 {vr(KM,4)}, v{AKM} offset:1024\nv_exp_f32 v{VG}, v{VG}\ns_nop 0\nv_add_f32 v{VG}, 1.0, v{VG}\nv_rcp_f32 v{VG}, v{VG}")
    a.nop(6)

def att_chunk(a, last=False):
    def sync():
        a(f"""
        s_add_u32 s{S_NSL}, s{S_NSL}, {SLOT}
        s_cmp_eq_u32 s{S_NSL}, {4*SLOT}
        s_cselect_b32 s{S_NSL}, 0, s{S_NSL}
        s_barrier
        v_add_u32 v{AKR}, s{S_NSL}, v{BKR}
        v_add_u32 v{AKM}, s{S_NSL}, v{BKM}
        """)
    for t in range(8):
        hooks = {}; skip = ()
        if not last:
            if t == 6: hooks["lkr"] = sync
            if t == 7: hooks["lv0"] = lambda: a(f"v_add_u32 v{AV}, s{S_NSL}, v{BV}")
        else:
            if t == 1: hooks["2b"] = lambda: a("s_barrier")
            if t == 6: skip = ("lkr", "lkm")
            if t == 7: skip = ("2b", "m0", "m1", "lkm", "lv0"); hooks["s0"] = lambda: a("s_barrier")
        att_tile(a, t, hooks, skip)

def att_finish(a):
    _, ops = att_ops(7)
    a(f"s_nop 1\n{ops['s3']}")
    T = TMP
    a.nop(11)
    a.label("L_att_norm")
    m = T + 2
    a(f"""
    v_mov_b32 v{T}, v{OA+10}
    v_mov_b32 v{T+1}, v{OA+26}
    s_mov_b32 s{S_T0}, {hex(f32(2.0**-60))}
    s_mov_b32 s{S_T1}, {hex(f32(2.0**60))}
    v_permlane32_swap_b32 v{T}, v{T+1}
    v_add_f32 v{m}, |v{OA}|, |v{OA+16}|
    v_cmp_nle_f32 s[4:5], s{S_T0}, v{T}
    v_cmp_nge_f32 s[6:7], s{S_T1}, v{T}
    v_rcp_f32 v{T}, v{T}
    """)
    for i in range(1, 10): a(f"v_add_f32 v{m}, v{m}, |v{OA+i}|\nv_add_f32 v{m}, v{m}, |v{OA+16+i}|")
    a(f"""
    s_mov_b32 s{S_T0}, 0x7f000000
    v_mul_f32 v{T}, v{T}, v{VG}
    v_cmp_nge_f32 vcc, s{S_T0}, v{m}
    v_mov_b32 v{T+1}, v{T}
    s_or_b64 s[4:5], s[4:5], s[6:7]
    s_or_b64 vcc, vcc, s[4:5]
    s_and_b64 vcc, vcc, {sr(S_OK,2)}
    s_cbranch_vccnz L_att_slow
    v_permlane32_swap_b32 v{T}, v{T+1}
    """)
    for blk in range(2):
        o = OA + 16 * blk; f = T + blk; d = T + 4 + 4 * blk
        for i in range(10): a(f"v_mul_f32 v{o+i}, v{f}, v{o+i}")
        for i in range(4): a(f"v_cvt_pk_bf16_f32 v{d+i}, v{o+2*i}, v{o+2*i+1}")
        a(f"buffer_store_dwordx4 {vr(d,4)}, v2, {sr(SRD_WS,4)}, s{S_X0+blk} offen sc1")
        a(f"v_cvt_pk_bf16_f32 v{T+12+blk}, v{o+8}, v{o+9}")
    a(f"s_nop 1\nv_permlane32_swap_b32 v{T+12}, v{T+13}")
    a(f"buffer_store_dword v{T+12}, v3, {sr(SRD_WS,4)}, s{S_WOFF} offen sc1")

def att_slow(a):
    s0 = SB[0]; T = TMP
    M0, M1, GK = T + 16, T + 17, T + 18
    a.label("L_att_slow")
    a(f"""
    s_mov_b64 {sr(S_OK,2)}, 0
    v_mov_b32 v{QR+1}, 0
    v_mov_b32 v{M0}, 0xff800000
    v_mov_b32 v{M1}, 0xff800000
    s_waitcnt vmcnt(0) lgkmcnt(0)
    """)
    for i in range(32): a(f"v_mov_b32 v{OA+i}, 0")
    for ps in range(2):
        a(f"s_mov_b32 s{S_CNT}, 0")
        a.label(f"L_slow_{ps}")
        a(f"""
        s_lshr_b32 s{S_T0}, s{S_CNT}, 1
        s_bfe_u32 s{S_T1}, s{S_CNT}, 0x30003
        s_lshl_b32 s{S_T1}, s{S_T1}, 2
        s_add_u32 s{S_T0}, s{S_T0}, s{S_T1}
        s_mul_i32 s{S_T0}, s{S_T0}, {PB}
        s_add_u32 s{S_T0}, s{S_T0}, s{S_KVB}
        s_and_b32 s{S_T1}, s{S_CNT}, 1
        s_lshl_b32 s{S_T2}, s{S_T1}, 10
        s_add_u32 s{S_T2}, s{S_T2}, s{S_T0}
        buffer_load_dwordx4 {vr(KM,4)}, v{BKM}, {sr(SRD_WS,4)}, s{S_T2} offen sc1
        s_lshl_b32 s{S_T2}, s{S_T1}, 3
        s_add_u32 s{S_T2}, s{S_T2}, s{S_T0}
        buffer_load_dwordx2 {vr(KR,2)}, v{BKR}, {sr(SRD_WS,4)}, s{S_T2} offen sc1
        s_mul_i32 s{S_T2}, s{S_T1}, {2*VSUB}
        s_add_u32 s{S_T2}, s{S_T2}, s{S_T0}
        buffer_load_dwordx4 {vr(VF,4)}, v{BV}, {sr(SRD_WS,4)}, s{S_T2} offen sc1
        buffer_load_dwordx4 {vr(VF+4,4)}, v{BV}, {sr(SRD_WS,4)}, s{S_T2} offen offset:{VSUB} sc1
        s_waitcnt vmcnt(0)
        v_mfma_f32_32x32x4_2b_bf16 {vr(s0,32)}, {vr(KR,2)}, {vr(QR,2)}, 0
        """)
        a.nop(20)
        a(f"v_mfma_f32_32x32x16_bf16 {vr(s0,16)}, {vr(KM,4)}, {vr(QM,4)}, {vr(s0,16)}")
        a(f"v_mfma_f32_32x32x16_bf16 {vr(s0+16,16)}, {vr(KM,4)}, {vr(QM+4,4)}, {vr(s0+16,16)}")
        a.nop(14)
        if ps == 0:
            for blk, m in enumerate((M0, M1)):
                for i in range(0, 16, 2): a(f"v_max3_f32 v{m}, v{m}, v{s0+16*blk+i}, v{s0+16*blk+i+1}")
        else:
            for i in range(32): a(f"v_sub_f32 v{s0+i}, v{s0+i}, v{M0 if i < 16 else M1}")
            for i in range(32): a(f"v_exp_f32 v{s0+i}, v{s0+i}")
            a.nop(2)
            for i in range(4):
                a(f"v_smfmac_f32_32x32x32_bf16 {vr(OA+16*(i//2),16)}, {vr(VF+4*(i%2),4)}, {vr(s0+8*i,8)}, v{IDX}")
            a.nop(14)
        a(f"s_add_u32 s{S_CNT}, s{S_CNT}, 1\ns_cmp_lt_u32 s{S_CNT}, 64\ns_cbranch_scc1 L_slow_{ps}")
        if ps == 0:
            for m in (M0, M1):
                a(f"v_mov_b32 v{GK}, v{m}\ns_nop 1\nv_permlane32_swap_b32 v{GK}, v{m}\nv_max_f32 v{m}, v{m}, v{GK}")
    a("s_branch L_att_norm")

OACC = 8
OD, WD = 8, 5
OF = OACC + 20
WB = OF + 4 * OD
AM, AM8, AM15, AR, AR3 = range(WB + 20 * WD, WB + 20 * WD + 5)
P3_END = AR3 + 1
S_TT, S_TOK = S_GRP, S_TB

def phase3(a):
    stamp(a, 5)
    a("s_waitcnt vmcnt(0)")
    stamp(a, 6)
    a("s_barrier")
    stamp(a, 9)
    a(f"""
    s_and_b32 s{S_TT}, s{S_W}, 3
    s_lshr_b32 s{S_B}, s{S_W}, 2
    s_and_b32 s{S_T0}, s2, 7
    s_lshl_b32 s{S_T0}, s{S_T0}, 2
    s_bfe_u32 s{S_T1}, s2, 0x20003
    s_add_u32 s{S_T0}, s{S_T0}, s{S_T1}
    s_lshl_b32 s{S_T0}, s{S_T0}, 2
    s_add_u32 s{S_TOK}, s{S_T0}, s{S_TT}
    v_lshrrev_b32 v2, 4, v1
    v_bfe_u32 v3, v1, 2, 2
    v_and_b32 v4, 3, v1
    v_lshlrev_b32 v4, 3, v4
    s_mul_i32 s{S_T0}, s{S_B}, {576*144}
    v_and_b32 v5, 1, v2
    v_lshl_add_u32 v5, v5, 2, v3
    v_mul_u32_u24 v5, 288, v5
    v_add_u32 v5, v5, v4
    v_lshrrev_b32 v6, 1, v2
    v_mul_u32_u24 v7, 2592, v6
    v_add3_u32 v{AM}, v5, v7, s{S_T0}
    v_add_u32 v{AM8}, {8*5184}, v{AM}
    v_add_u32 v{AM15}, {15*5184}, v{AM}
    v_and_b32 v6, s{S_B}, v6
    v_cmp_eq_u32 vcc, 1, v6
    v_mul_u32_u24 v7, 5184, v2
    v_lshrrev_b32 v6, 1, v3
    v_cndmask_b32 v{AM15}, v{AM15}, v5, vcc
    v_and_b32 v5, 1, v3
    v_add_u32 v5, 16, v5
    v_mul_u32_u24 v5, 144, v5
    v_add_u32 v5, v5, v4
    v_mul_u32_u24 v4, 2592, v6
    v_add3_u32 v7, v7, v4, v5
    v_add_u32 v{AR}, s{S_T0}, v7
    v_add_u32 v{AR3}, {12*5184}, v{AR}
    v_lshrrev_b32 v4, 3, v1
    v_lshl_add_u32 v4, s{S_B}, 3, v4
    v_cmp_eq_u32 vcc, 15, v4
    v_lshlrev_b32 v2, 4, v1
    v_lshrrev_b32 v3, 4, v1
    v_cndmask_b32 v{AR3}, v{AR3}, v5, vcc
    v_lshlrev_b32 v3, 14, v3
    v_and_b32 v4, 15, v1
    v_lshl_add_u32 v3, v4, 3, v3
    s_lshl_b32 s{S_X0}, s{S_TOK}, 15
    s_lshl_b32 s{S_T0}, s{S_B}, 14
    s_add_u32 s{S_X0}, s{S_X0}, s{S_T0}
    s_add_u32 s{S_X0}, s{S_X0}, {WS_OM}
    s_lshl_b32 s{S_X1}, s{S_B}, 18
    s_lshl_b32 s{S_T0}, s{S_TOK}, 7
    s_add_u32 s{S_X1}, s{S_X1}, s{S_T0}
    s_add_u32 s{S_X1}, s{S_X1}, {WS_OR}
    """)
    steps = [16] + list(range(16)) + [17]
    def wreads(k):
        st = steps[k]; wb = WB + 20 * (k % WD); L = []
        for t in range(5):
            g = []
            for i in range(2):
                if st < 8: ad, off = AM, 5184 * st + 144 * i
                elif st < 15: ad, off = AM8, 5184 * (st - 8) + 144 * i
                elif st == 15: ad, off = AM15, 144 * i
                elif (st, i) == (17, 1): ad, off = AR3, 0
                else: ad, off = AR, 5184 * (8 * (st - 16) + 4 * i)
                g.append(f"ds_read_b64_tr_b16 {vr(wb+4*t+2*i,2)}, v{ad} offset:{off+32*t}")
            L.append(g)
        return L
    for k in range(2):
        for g in wreads(k):
            for x in g: a(x)
    a("s_waitcnt lgkmcnt(0)\ns_barrier")
    for k in range(2, WD):
        for g in wreads(k):
            for x in g: a(x)
    a(f"""
    v_lshlrev_b32 v6, 4, v1
    s_mul_i32 s{S_T0}, s{S_TT}, 5120
    s_add_u32 s{S_T0}, s{S_T0}, 5184
    v_add_u32 v6, s{S_T0}, v6
    v_and_b32 v7, 15, v1
    s_lshl_b32 s{S_T0}, s{S_TOK}, 4
    v_add_u32 v7, s{S_T0}, v7
    v_mul_u32_u24 v7, 1152, v7
    v_add_u32 v7, s{S_C0}, v7
    v_lshrrev_b32 v4, 4, v1
    v_lshl_add_u32 v5, v4, 3, v7
    v_lshrrev_b32 v4, 5, v1
    v_lshl_add_u32 v7, v4, 4, v7
    v_bfe_u32 v4, v1, 4, 1
    v_lshl_add_u32 v4, v4, 5, v7
    s_waitcnt lgkmcnt(0)
    s_barrier
    """)
    stamp(a, 10)
    nload = [1 if st < 16 else 2 for st in steps]
    def oload(k):
        st = steps[k]; d = OF + 4 * (k % OD)
        if st < 16:
            if st and st % 4 == 0: a(f"s_add_u32 s{S_X0}, s{S_X0}, 4096")
            a(f"buffer_load_dwordx4 {vr(d,4)}, v2, {sr(SRD_WS,4)}, s{S_X0} offen offset:{1024*(st%4)} sc1")
        else:
            for i in range(2):
                a(f"buffer_load_dwordx2 {vr(d+2*i,2)}, v3, {sr(SRD_WS,4)}, s{S_X1} offen sc1")
                a(f"s_add_u32 s{S_X1}, s{S_X1}, 0x10000")
    for k in range(OD): oload(k)
    for k in range(18):
        groups = wreads(k + WD) if k + WD < 18 else []
        lg = min(15, 10 * len([j for j in range(k + 1, min(k + WD, 18)) if j >= WD]))
        if k == 0: stamp(a, 13)
        a(f"s_waitcnt vmcnt({sum(nload[k+1:min(k+OD, 18)])}) lgkmcnt({lg})")
        if k == 0: stamp(a, 14)
        if k == 9: stamp(a, 15)
        wb = WB + 20 * (k % WD)
        for t in range(5):
            c = vr(OACC + 4 * t, 4)
            a(f"v_mfma_f32_16x16x32_bf16 {c}, {vr(wb+4*t,4)}, {vr(OF+4*(k%OD),4)}, {'0' if k == 0 else c}")
            if t < len(groups):
                for y in groups[t]: a(y)
        if k + OD < 18: oload(k + OD)
        if k == 6: a("s_barrier")
    stamp(a, 11)
    T = OF
    a(f"s_cmp_eq_u32 s{S_B}, 0\ns_cbranch_scc0 L_p3_b")
    def fin(tiles, give, off):
        a.nop(6)
        for t in give: a(f"ds_write_b128 v6, {vr(OACC+4*t,4)} offset:{1024*t}")
        a("s_waitcnt lgkmcnt(0)\ns_barrier")
        for k, t in enumerate(tiles): a(f"ds_read_b128 {vr(T+4*k,4)}, v6 offset:{1024*t}")
        for k, t in enumerate(tiles):
            a(f"s_waitcnt lgkmcnt({len(tiles)-1-k})")
            for e in range(4): a(f"v_add_f32 v{OACC+4*t+e}, v{OACC+4*t+e}, v{T+4*k+e}")
        d = T + 12
        t0, t1 = tiles[0], tiles[1]
        a(f"""
        v_cvt_pk_bf16_f32 v{d}, v{OACC+4*t0}, v{OACC+4*t0+1}
        v_cvt_pk_bf16_f32 v{d+1}, v{OACC+4*t0+2}, v{OACC+4*t0+3}
        v_cvt_pk_bf16_f32 v{d+2}, v{OACC+4*t1}, v{OACC+4*t1+1}
        v_cvt_pk_bf16_f32 v{d+3}, v{OACC+4*t1+2}, v{OACC+4*t1+3}
        s_nop 1
        v_permlane16_swap_b32 v{d}, v{d+2}
        v_permlane16_swap_b32 v{d+1}, v{d+3}
        buffer_store_dwordx4 {vr(d,4)}, v4, {sr(SRD_O,4)}, 0 offen offset:{off}{OPT.get('omod', '')}
        """)
        if len(tiles) == 3:
            t2 = tiles[2]
            a(f"""
            v_cvt_pk_bf16_f32 v{d+4}, v{OACC+4*t2}, v{OACC+4*t2+1}
            v_cvt_pk_bf16_f32 v{d+5}, v{OACC+4*t2+2}, v{OACC+4*t2+3}
            s_mov_b32 exec_hi, 0
            buffer_store_dwordx2 {vr(d+4,2)}, v5, {sr(SRD_O,4)}, 0 offen offset:128{OPT.get('omod', '')}
            """)
        if OPT.get("hold"):
            lab = a.uid("L_hold")
            a("s_waitcnt vmcnt(0)"); a.label(lab)
            a(f"s_sleep 1\ns_memrealtime s[70:71]\ns_waitcnt lgkmcnt(0)\ns_sub_u32 s71, s72, s70\ns_cmp_gt_i32 s71, 0\ns_cbranch_scc1 {lab}")
        if PROF: a("s_waitcnt vmcnt(0)")
        stamp(a, 12); stamp(a, 17, True); stamp_out(a)
        a("s_endpgm")
    fin((0, 1, 4), (2, 3), 0)
    a.label("L_p3_b")
    fin((2, 3), (0, 1, 4), 64)

WPIECE = 864
def loader(a):
    AD0, AD1, AX0, AX1, LA, DW, FA, FL, Z = range(8, 17)
    BUF = 24
    sWS, sXS, sWO, sXO = (64, 65, 66), (33, 34, 35), 36, 37
    sM, sS, sN, sO = 38, 40, 41, 36
    a("s_setprio 3")
    def wsrc(dst, hi):
        a(f"""
        v_lshlrev_b32 v4, 1, v2
        v_or_b32 v4, {8*hi}, v4
        v_xor_b32 v4, v4, v3
        v_min_u32 v4, 14, v4
        v_mul_u32_u24 v5, 52, v4
        v_lshrrev_b32 v5, 8, v5
        v_lshlrev_b32 v4, 4, v4
        v_mul_u32_u24 v6, 1072, v5
        v_add_u32 v4, v4, v6
        v_and_b32 v5, 2, v5
        v_lshlrev_b32 v5, 2, v5
        v_sub_u32 v4, v4, v5
        v_mul_u32_u24 v5, 3456, v2
        v_add_u32 v{dst}, v4, v5
        """)
    wsrc(AD0, 0); wsrc(AD1, 1)
    a(f"""
    v_lshrrev_b32 v4, 3, v1
    v_mul_u32_u24 v4, 1152, v4
    v_and_b32 v5, 7, v1
    v_xor_b32 v5, v5, v2
    v_lshl_add_u32 v{AX0}, v5, 4, v4
    v_xor_b32 v5, 4, v5
    v_lshl_add_u32 v4, v5, 4, v4
    v_add_u32 v{AX1}, {8*1152}, v4
    v_lshlrev_b32 v{LA}, 4, v1
    s_mul_i32 s{sWO}, s{S_P}, 72
    s_mul_i32 s{sXO}, s{S_TB}, {256*1152}
    s_mov_b32 m0, {GATE_LDS}
    s_waitcnt lgkmcnt(0)
    s_cmp_eq_u32 s{S_B}, 0
    s_cselect_b32 s{S_PTR+2}, s{S_PTR+2}, s{S_PTR+8}
    s_cselect_b32 s{S_PTR+3}, s{S_PTR+3}, s{S_PTR+9}
    """)
    srd(a, SRD_W, S_PTR + 2, 576 * 3456)
    srd(a, SRD_X, S_PTR, 2048 * 1152)
    srd(a, SRD_G, S_PTR + 12, 1152)
    a(f"buffer_load_dwordx4 v{LA}, {sr(SRD_G,4)}, 0 offen lds")
    a(f"buffer_load_dwordx4 v{LA}, {sr(SRD_G,4)}, 0 offen offset:1024 lds")
    for i in range(3): a(f"s_mov_b32 s{sWS[i]}, {WST[i]}\ns_mov_b32 s{sXS[i]}, {XST[i]}")
    srd(a, SRD_WS, S_DBG + 2, WS_END)
    srd(a, SRD_O, S_DBG, 256)
    a(f"v_mov_b32 v{Z}, 0\nv_lshlrev_b32 v{FA}, 2, v1\ns_mov_b32 s{sN}, 0")
    a(f"s_cmp_eq_u32 s2, 0\ns_cselect_b32 s{S_T3}, 2, 15")
    DW_ = int(OPT.get("dw", 4))
    npc = (0 if OPT.get("now") else 2) + (0 if OPT.get("nox") else 4)
    def part(w0, w1):
        for w in range(w0, w1):
            a("s_waitcnt vmcnt(57)")
            for h in range(0 if OPT.get("now") else 2):
                a(f"""
                s_add_u32 m0, s{sWS[0]}, {h*8192 + w*1024}
                s_add_u32 s{S_T0}, s{sWO}, {(32*h + 4*w)*3456}
                buffer_load_dwordx4 v{AD0 + ((w >> 1) & 1)}, {sr(SRD_W,4)}, s{S_T0} offen lds
                """)
            for u in range(0 if OPT.get("nox") else 4):
                a(f"""
                s_add_u32 m0, s{sXS[0]}, {w*4096 + u*1024}
                s_add_u32 s{S_T0}, s{sXO}, {(32*w + 16*(u >> 1))*1152}
                buffer_load_dwordx4 v{AX0 + (u & 1)}, {sr(SRD_X,4)}, s{S_T0} offen lds
                """)
    a.label("L_ld_pair")
    part(0, DW_)
    a(f"s_cmp_eq_u32 s{sN}, 0\ns_cbranch_scc1 L_ld_first\ns_waitcnt vmcnt({npc*DW_})\ns_barrier")
    a(f"s_cmp_eq_u32 s{sN}, s{S_T3}\ns_cbranch_scc1 L_ld_ready")
    a.label("L_ld_second")
    part(DW_, 8)
    for r in (sWS, sXS):
        a(f"s_mov_b32 s{S_T0}, s{r[0]}\ns_mov_b32 s{r[0]}, s{r[1]}\ns_mov_b32 s{r[1]}, s{r[2]}\ns_mov_b32 s{r[2]}, s{S_T0}")
    a(f"""
    s_add_u32 s{sWO}, s{sWO}, {64*3456}
    s_add_u32 s{sXO}, s{sXO}, 128
    s_add_u32 s{sN}, s{sN}, 1
    s_cmp_lt_u32 s{sN}, 9
    s_cbranch_scc1 L_ld_pair
    s_waitcnt vmcnt(0)
    s_barrier
    """)
    rdy = f"buffer_load_dword v{FL}, v{Z}, {sr(SRD_O,4)}, 0 offen sc1"
    a(f"""
    s_mov_b64 exec, 1
    {rdy}
    s_lshl_b32 s{S_KVB}, s{S_GRP}, 3
    s_add_u32 s{sO}, s{S_KVB}, s{S_TB}
    s_mul_i32 s{sO}, s{sO}, {SLOT}
    s_mul_i32 s{S_KVB}, s{S_KVB}, {SLOT}
    s_lshl_b32 s{S_X1}, s{S_GRP}, 7
    s_add_u32 s{S_X1}, s{S_X1}, {WS_F1}
    s_lshl_b32 s{S_X0}, s{S_TB}, 2
    s_add_u32 s{S_X0}, s{S_X0}, s{S_X1}
    """)
    spin(a, "rdy", rdy, FL)
    a(f"""
    s_mov_b64 exec, -1
    v_mul_u32_u24 v2, 57, v1
    v_lshrrev_b32 v2, 9, v2
    v_mul_u32_u24 v2, {1152 - 144}, v2
    v_lshl_add_u32 v2, v1, 4, v2
    s_lshr_b32 s{S_C0}, s2, 5
    s_mul_i32 s{S_C0}, s{S_C0}, 144
    v_add_u32 v{DW}, s{S_C0}, v2
    s_barrier
    """)
    def flag(soff):
        a(f"v_mov_b32 v{FL}, 1\ns_mov_b64 exec, 1\nbuffer_store_dword v{FL}, v{Z}, {sr(SRD_WS,4)}, s{soff} offen sc1\ns_mov_b64 exec, -1")
    def publish():
        rd = lambda i: a(f"ds_read_b128 {vr(BUF+4*(i%24),4)}, v{LA} offset:{1024*i}")
        for i in range(12): rd(i)
        for i in range(40):
            if i + 12 < 40: rd(i + 12)
            a(f"s_waitcnt lgkmcnt({min(12, 39 - i)})")
            a(f"buffer_store_dwordx4 {vr(BUF+4*(i%24),4)}, v{LA}, {sr(SRD_WS,4)}, s{sO} offen offset:{1024*(i%4)} sc1")
            if i % 4 == 3: a(f"s_add_u32 s{sO}, s{sO}, 4096")
        stamp(a, 13)
        a("s_waitcnt vmcnt(0)")
        flag(S_X0); stamp(a, 5)
    def kv_setup(c):
        a(f"""
        s_cmp_gt_u32 s{S_TB}, {(c - 1) % 8}
        s_cselect_b32 s{S_T0}, {(c - 1) % 8}, {c % 8}
        s_mul_i32 s{S_T0}, s{S_T0}, {SLOT}
        s_add_u32 s{sS}, s{S_T0}, s{S_KVB}
        s_mov_b32 s{sM}, {(c % 4) * SLOT}
        """)
    def kv_pieces(n):
        lab = a.uid("L_kv")
        a(f"s_mov_b32 s{sN}, {n // 4}")
        a.label(lab)
        a(f"s_waitcnt vmcnt(59)\ns_mov_b32 m0, s{sM}\ns_add_u32 s{sM}, s{sM}, 4096")
        for i in range(4): a(f"buffer_load_dwordx4 v{LA}, {sr(SRD_WS,4)}, s{sS} offen offset:{1024*i} sc1 lds")
        a(f"s_add_u32 s{sS}, s{sS}, 4096\ns_sub_u32 s{sN}, s{sN}, 1\ns_cmp_lg_u32 s{sN}, 0\ns_cbranch_scc1 {lab}")
    ld1 = f"buffer_load_dword v{FL}, v{FA}, {sr(SRD_WS,4)}, s{S_X1} offen sc1"
    def need(tag, c):
        a(f"s_cmp_gt_u32 s{S_TB}, {c-1}\ns_cselect_b64 exec, {1 << (c-1)}, {1 << c}\n{ld1}")
        spin(a, tag, ld1, FL)
        a("s_mov_b64 exec, -1")
    a(f"s_cmp_ge_u32 s{S_TB}, 3\ns_cbranch_scc1 L_first_chunk")
    a.label("L_publish")
    publish()
    a(f"s_cmp_ge_u32 s{S_TB}, 3\ns_cbranch_scc1 L_published")
    a.label("L_first_chunk")
    need("kv1", 1); stamp(a, 6)
    kv_setup(1); kv_pieces(40)
    a("s_waitcnt vmcnt(0)")
    stamp(a, 14)
    a("s_barrier")
    stamp(a, 15)
    need("kv2", 2)
    kv_setup(2); kv_pieces(40)
    a(f"s_waitcnt vmcnt(20)\ns_cmp_ge_u32 s{S_TB}, 3\ns_cbranch_scc1 L_publish")
    a.label("L_published")
    a(f"s_waitcnt vmcnt(0)\ns_barrier\ns_mov_b64 exec, 0xff\n{ld1}")
    spin(a, "kv3", ld1, FL)
    a("s_mov_b64 exec, -1")
    kv_setup(3); kv_pieces(40)
    for c in range(4, int(OPT.get('nch', 8))):
        kv_setup(c); kv_pieces(40)
        a("s_waitcnt vmcnt(40)\ns_barrier")
    def wo(b, n0, n1, dst=None):
        lab = a.uid("L_wo")
        p = S_PTR + 4 + 6 * b
        a(f"""
        s_mov_b32 s{SRD_G}, s{p}
        s_and_b32 s{SRD_G+1}, s{p+1}, 0xffff
        s_mov_b32 s{SRD_G+2}, {576*1152}
        s_mov_b32 s{sS}, {n0*6*1152}
        s_mov_b32 s{sM}, {(96*b + n0)*WPIECE if dst is None else dst}
        """)
        a.label(lab)
        a(f"""
        s_waitcnt vmcnt(60)
        s_mov_b32 m0, s{sM}
        s_add_u32 s{sM}, s{sM}, {WPIECE}
        buffer_load_dwordx4 v{DW}, {sr(SRD_G,4)}, s{sS} offen lds
        s_add_u32 s{sS}, s{sS}, {6*1152}
        s_cmp_lt_u32 s{sS}, {n1*6*1152}
        s_cbranch_scc1 {lab}
        """)
    a("s_mov_b32 exec_hi, 0x3fffff")
    wo(0, 0, 47)
    a("s_waitcnt vmcnt(47)\ns_barrier")
    wo(0, 47, 94)
    a("s_barrier")
    wo(0, 94, 96); wo(1, 0, 46)
    a(f"""
    s_lshl_b32 s{S_X0}, s{S_TB}, 7
    s_lshl_b32 s{S_T0}, s{S_GRP}, 2
    s_add_u32 s{S_X0}, s{S_X0}, s{S_T0}
    s_add_u32 s{S_X0}, s{S_X0}, {WS_F2}
    s_and_b32 s{S_X1}, s2, 7
    s_lshl_b32 s{S_X1}, s{S_X1}, 7
    s_add_u32 s{S_X1}, s{S_X1}, {WS_F2}
    s_barrier
    """)
    wo(1, 46, 93)
    a("s_waitcnt vmcnt(0)\ns_barrier")
    flag(S_X0); stamp(a, 9)
    a("s_mov_b32 exec_hi, 0x3fffff\ns_barrier")
    wo(1, 93, 96, dst=0)
    ld2 = f"buffer_load_dword v{FL}, v{FA}, {sr(SRD_WS,4)}, s{S_X1} offen sc1"
    a(f"s_mov_b32 exec_hi, 0\n{ld2}")
    spin(a, "o", ld2, FL)
    stamp(a, 10)
    a("s_barrier")
    stamp_out(a)
    a("s_endpgm")
    a.label("L_ld_first")
    a(f"""
    s_waitcnt vmcnt(56)
    s_cmp_lg_u32 s2, 0
    s_cbranch_scc1 L_ld_second
    v_mov_b32 v{BUF}, 0
    v_mov_b32 v{BUF+1}, 0
    v_mov_b32 v{BUF+2}, 0
    v_mov_b32 v{BUF+3}, 0
    s_mov_b32 s{S_T0}, {WS_F1}
    """)
    for i in range(4): a(f"buffer_store_dwordx4 {vr(BUF,4)}, v{LA}, {sr(SRD_WS,4)}, s{S_T0} offen offset:{1024*i} sc1")
    a(f"""
    s_mov_b32 s{S_T0}, {WS_F2}
    buffer_store_dwordx4 {vr(BUF,4)}, v{LA}, {sr(SRD_WS,4)}, s{S_T0} offen sc1
    s_branch L_ld_second
    """)
    a.label("L_ld_ready")
    a(f"""
    v_mov_b32 v{FL}, 1
    s_mov_b64 exec, 1
    buffer_store_dword v{FL}, v{Z}, {sr(SRD_O,4)}, 0 offen sc1
    s_mov_b64 exec, -1
    s_branch L_ld_second
    """)

def build():
    a = Asm()
    a("s_cmp_ge_u32 s2, 256\ns_cbranch_scc1 L_exit")
    stamp(a, 0); stamp(a, 16, True)
    entry(a)
    a.late = True
    loader(a)
    a.late = False
    a.label("L_compute")
    phase1(a); stamp(a, 4); a.late = True
    att_setup(a)
    stamp(a, 7); stamp(a, 18, True)
    if OPT.get("align"): a(".p2align 6")
    a.label("L_att_loop")
    att_chunk(a)
    a(f"s_add_u32 s{S_CH}, s{S_CH}, 1\ns_cmp_lt_u32 s{S_CH}, {int(OPT.get('nch', 8)) - 1}\ns_cbranch_scc1 L_att_loop")
    att_chunk(a, last=True)
    stamp(a, 8); stamp(a, 19, True)
    att_finish(a); phase3(a)
    att_slow(a)
    a.label("L_exit"); a("s_endpgm")
    return a, max(P1_END, P2_END, P3_END)

def emit(path):
    a, nv = build()
    label = NAME + "_kernel"
    nv4 = (nv + 3) // 4 * 4
    s = open(f"cdna_kernels/{NAME}.s.ref").read().split("; Override launch")[0]
    s += "; @launch grid=(256,1,1) block=(576,1,1) lds=163840\n"
    s += f""".amdgcn_target "amdgcn-amd-amdhsa--gfx950"
.text
.globl {label}
.p2align 8
.type {label},@function
{label}:
{a.text()}.section .rodata,"a"
.p2align 6
.amdhsa_kernel {label}
  .amdhsa_next_free_vgpr {nv4}
  .amdhsa_next_free_sgpr {102 if PROF or OPT.get('delay') or OPT.get('hold') else 72}
  .amdhsa_accum_offset {nv4}
  .amdhsa_group_segment_fixed_size 0
  .amdhsa_kernarg_size 80
  .amdhsa_user_sgpr_count 2
  .amdhsa_user_sgpr_kernarg_segment_ptr 1
  .amdhsa_system_sgpr_workgroup_id_x 1
.end_amdhsa_kernel
"""
    errs = check_hazards(a.lines) + check_waits(a.lines)
    for e in errs: print(e)
    if errs and not OPT.get("force"):
        print("NOT written:", path); sys.exit(1)
    open(path, "w").write(s)
    import subprocess
    r = subprocess.run([sys.executable, "cdna_unwritten_srd_check.py", path], capture_output=True, text=True)
    if r.returncode:
        print(r.stdout, r.stderr); open(path, "w").write(""); print("REMOVED:", path); sys.exit(1)
    print("wrote", path, "checks", "FAILED" if errs else "OK", len(a.lines), "lines", nv, "vgprs")

if __name__ == "__main__":
    for x in list(sys.argv):
        if x.startswith("-O"):
            k, v = (x[2:].split("=") + ["1"])[:2]; OPT[k] = v.replace("_", " "); sys.argv.remove(x)
    if "--prof" in sys.argv: PROF = True; sys.argv.remove("--prof")
    emit(sys.argv[1] if len(sys.argv) > 1 else f"cdna_kernels/{NAME}.s")
```

```python
import sys, os, math, struct
from asmlib import Asm, vr, sr, check_hazards, check_waits

NAME = "gated_mix__softmax_full_mha__softmax_full_mha__prompt"
def f32(x): return struct.unpack("<I", struct.pack("<f", x))[0]

VSUB = 640
VOFF, KROFF = 2048, 2048 + 4 * VSUB
PB = KROFF + 512
HS = 4 * PB
SLOT = 2 * HS
QIMG = 3 * SLOT
WST = (8192, 24576, 40960)
XST = (90112, 122880, 57344)
GATE_LDS = 155648
WS_KV = 0
OST = 18 * 1024
WS_O = 256 * SLOT
WS_F1 = WS_O + 256 * OST
WS_F2 = WS_F1 + 4096
WS_END = WS_F2 + 1024
PAIRS = [0, 2, 4, 6, 9, 11, 13, 1, 3, 5, 7, 8, 10, 12, 14, 15]
POS_TAB = sum(PAIRS.index(p) << (4 * p) for p in range(16))
PAIR_TAB = sum(p << (4 * k) for k, p in enumerate(PAIRS))
QSCALE = math.log2(math.e) / math.sqrt(18.0)
SPIN_MAX = 1 << 18
def vpos_slot(s): return 12 + s if s < 4 else s - 4 if s < 12 else s + 4 if s < 16 else s - 7 if s < 19 else 8
def vslot_dim(d): return 8 * (d & 1) + (d >> 1) if d < 16 else d
def vpos_dim(d): return vpos_slot(vslot_dim(d))

PROF = False
OPT = {}
WS_PROF = 0x1100000
def stamp(a, i, cyc=False):
    if not PROF: return
    if OPT.get("g1prof") and 5 <= i <= 12 and getattr(a, "late", False): return
    a(f"{'s_memtime' if cyc else 's_memrealtime'} s[98:99]\ns_waitcnt lgkmcnt(0)\ns_mov_b32 s{72+i}, s98")
def stamp_out(a, n=24):
    if not PROF: return
    if OPT.get("dbgprof"):
        lab = a.uid("L_nodbg")
        a(f"s_lshl_b32 s98, s2, 4\ns_add_u32 s98, s98, s{S_W}\ns_cmp_lg_u32 s98, {16*int(OPT['dbgprof'])}\ns_cbranch_scc1 {lab}")
        srd(a, SRD_G, S_DBG, 256)
        a("s_mov_b64 exec, 1\nv_mov_b32 v3, 0")
        for i in range(1, 13):
            a(f"s_sub_u32 s99, s{72+i}, s72\nv_mov_b32 v2, s99\nbuffer_store_dword v2, v3, s[16:19], 0 offen offset:{4*i}")
        a(f"s_sub_u32 s99, s{72+19}, s{72+18}\nv_mov_b32 v2, s99\nbuffer_store_dword v2, v3, s[16:19], 0 offen offset:52")
        a(f"s_sub_u32 s99, s{72+17}, s{72+16}\nv_mov_b32 v2, s99\nbuffer_store_dword v2, v3, s[16:19], 0 offen offset:56")
        a.label(lab)
        return
    a(f"s_getreg_b32 s94, hwreg(HW_REG_HW_ID)\ns_getreg_b32 s95, hwreg(HW_REG_XCC_ID)")
    a(f"s_lshl_b32 s98, s2, 4\ns_add_u32 s98, s98, s{S_W}\ns_lshl_b32 s98, s98, 7\ns_add_u32 s98, s98, {WS_PROF}")
    a("s_mov_b64 exec, 1\ns_mov_b32 s14, 0x10000000\nv_mov_b32 v3, 0")
    for i in range(n):
        a(f"v_mov_b32 v2, s{72+i}\nbuffer_store_dword v2, v3, s[12:15], s98 offen offset:{4*i}")

SRD_X, SRD_W, SRD_WS, SRD_G, SRD_O = 4, 8, 12, 16, 20
S_W, S_TB, S_GRP, S_B, S_P = 24, 25, 26, 27, 28
S_T0, S_T1, S_T2, S_T3 = 29, 30, 31, 32
S_X0, S_X1, S_WOFF, S_QS = 33, 34, 35, 36
S_CH, S_M0, S_KVB, S_SOFF, S_CNT = 37, 38, 39, 40, 41
S_EX = 42
S_PTR = 44
S_DBG = 60
S_MSTEP, S_SSTEP, S_NSL, S_C0 = 64, 65, 66, 67
S_OK = 68
S_POS = 28

def srd(a, d, ptr, size):
    a(f"s_mov_b32 s{d}, s{ptr}\ns_and_b32 s{d+1}, s{ptr+1}, 0xffff\ns_mov_b32 s{d+2}, {size}\ns_mov_b32 s{d+3}, 0x00020000")

def spin(a, tag, load, reg):
    a(f"s_mov_b32 s{S_CNT}, {SPIN_MAX}")
    a.label(f"L_spin_{tag}")
    a(f"""
    s_waitcnt vmcnt(0)
    v_cmp_eq_u32 vcc, 0, v{reg}
    s_cbranch_vccz L_got_{tag}
    s_sleep {OPT.get('slp', 1)}
    {load}
    s_sub_u32 s{S_CNT}, s{S_CNT}, 1
    s_cmp_lg_u32 s{S_CNT}, 0
    s_cbranch_scc1 L_spin_{tag}
    s_waitcnt vmcnt(0)
    """)
    a.label(f"L_got_{tag}")

ACC = 8
WF = ACC + 56
XF = WF + 56
AW = XF + 16
AG, AXR = AW + 7, AW + 8
EKM, EVA, EVB, EMID, EONE, EKC, ESC = range(AW + 12, AW + 19)
PF = ESC + 1
P1_END = PF + 2
T_QA, T_QB, T_KA, T_KB, T_VA, T_VB, T_MID = range(7)
acc = lambda n, tt: ACC + (2 * n + tt) * 4

def p1_reads(ks):
    wf = WF + 28 * (ks % 2); xf = XF + 8 * (ks % 2)
    st = (ks // 2) % 3
    off = WST[st] - WST[0] + (ks % 2) * 8192
    xa, xo = (AXR + 2, 0) if st == 1 else (AXR, XST[st] - XST[2])
    L = [[f"ds_read_b128 {vr(xf+4*tt,4)}, v{xa+ks%2} offset:{xo + tt*2048}" for tt in range(2)]]
    for n in (T_QA, T_QB, T_KA, T_KB, T_VA, T_VB, T_MID):
        g = [f"ds_read_b64_tr_b16 {vr(wf+4*n,2)}, v{AW+n} offset:{off}",
             f"ds_read_b64_tr_b16 {vr(wf+4*n+2,2)}, v{AW+n} offset:{off+1024}"]
        if n == T_MID:
            g += [f"s_mov_b64 exec, {sr(S_EX,2)}",
                  f"ds_read_b128 {vr(wf+4*n,4)}, v{AG} offset:{64*ks}",
                  "s_mov_b64 exec, -1"]
        L.append(g)
    return L

def byte_table(a, dst, idx, table):
    w = [sum(table[4*i+k] << (8*k) for k in range(4)) for i in range(len(table) // 4)]
    a(f"v_and_b32 v{dst}, 7, v{idx}\nv_or_b32 v{dst}, 0x0c0c0c00, v{dst}")
    a(f"s_mov_b32 s{S_CNT}, {hex(w[1])}\nv_mov_b32 v{ACC+4}, {hex(w[0])}")
    if len(w) == 2:
        a(f"v_perm_b32 v{dst}, s{S_CNT}, v{ACC+4}, v{dst}"); return
    a(f"v_perm_b32 v{ACC+5}, s{S_CNT}, v{ACC+4}, v{dst}")
    a(f"s_mov_b32 s{S_CNT}, {hex(w[3])}\nv_mov_b32 v{ACC+4}, {hex(w[2])}\nv_cmp_gt_u32 vcc, 8, v{idx}")
    a(f"v_perm_b32 v{dst}, s{S_CNT}, v{ACC+4}, v{dst}\ns_nop 0\nv_cndmask_b32 v{dst}, v{dst}, v{ACC+5}, vcc")

MAP = {
 "4": f"""s_and_b32 s{S_T0}, s2, 7
    s_lshl_b32 s{S_T0}, s{S_T0}, 2
    s_bfe_u32 s{S_T1}, s2, 0x20003
    s_or_b32 s{S_GRP}, s{S_T0}, s{S_T1}
    s_lshr_b32 s{S_TB}, s2, 5""",
 "s": f"""s_and_b32 s{S_T0}, s2, 7
    s_lshl_b32 s{S_T0}, s{S_T0}, 2
    s_bfe_u32 s{S_T1}, s2, 0x10006
    s_lshl_b32 s{S_T1}, s{S_T1}, 1
    s_or_b32 s{S_GRP}, s{S_T0}, s{S_T1}
    s_lshr_b32 s{S_T0}, s2, 7
    s_bfe_u32 s{S_T1}, s2, 0x10001
    s_xor_b32 s{S_T0}, s{S_T0}, s{S_T1}
    s_xor_b32 s{S_T0}, s{S_T0}, 1
    s_or_b32 s{S_GRP}, s{S_GRP}, s{S_T0}
    s_bfe_u32 s{S_TB}, s2, 0x30003""",
 "8": f"""s_bfe_u32 s{S_T0}, s2, 0x20001
    s_lshl_b32 s{S_T0}, s{S_T0}, 3
    s_bfe_u32 s{S_T1}, s2, 0x30003
    s_or_b32 s{S_GRP}, s{S_T0}, s{S_T1}
    s_and_b32 s{S_T0}, s2, 1
    s_lshl_b32 s{S_T0}, s{S_T0}, 2
    s_lshr_b32 s{S_TB}, s2, 6
    s_or_b32 s{S_TB}, s{S_TB}, s{S_T0}""",
}
def entry(a):
    if OPT.get("hfirst"): a("s_memrealtime s[98:99]")
    a(f"""
    s_load_dwordx16 {sr(S_PTR,16)}, s[0:1], 0
    s_load_dwordx4 {sr(S_DBG,4)}, s[0:1], 64
    v_readfirstlane_b32 s{S_W}, v0
    v_and_b32 v1, 63, v0
    {MAP[OPT.get("map", "s")]}
    s_lshr_b32 s{S_B}, s{S_GRP}, 4
    s_and_b32 s{S_P}, s{S_GRP}, 15
    s_lshr_b32 s{S_W}, s{S_W}, 6
    v_lshrrev_b32 v2, 4, v1
    v_and_b32 v3, 15, v1
    s_mov_b32 s4, {hex(POS_TAB & 0xffffffff)}
    s_mov_b32 s5, {hex(POS_TAB >> 32)}
    s_lshl_b32 s{S_T0}, s{S_P}, 2
    s_lshr_b64 s[4:5], s[4:5], s{S_T0}
    s_mul_i32 s36, s{S_P}, 72
    s_and_b32 s{S_POS}, s4, 15
    """)
    if OPT.get("hold"):
        if not OPT.get("hfirst"): a("s_waitcnt lgkmcnt(0)\ns_memrealtime s[98:99]")
        a(f"s_waitcnt lgkmcnt(0)\ns_add_u32 s72, s98, {int(OPT['hold'])}")
        if OPT.get("hwg"): a(f"s_cmp_eq_u32 s2, {OPT['hwg']}\ns_cselect_b32 s72, s72, s98")
    if OPT.get("delay"):
        a(f"s_memrealtime s[98:99]\ns_waitcnt lgkmcnt(0)\ns_add_u32 s72, s98, {int(OPT['delay'])}")
        a.label("L_delay")
        a("s_sleep 4\ns_memrealtime s[98:99]\ns_waitcnt lgkmcnt(0)\ns_sub_u32 s99, s72, s98\ns_cmp_gt_i32 s99, 0\ns_cbranch_scc1 L_delay")
    a(f"s_cmp_lt_u32 s{S_W}, 8\ns_cbranch_scc1 L_compute")

def prefetch(a):
    PFR = int(OPT.get("pfr", 64)); PFW = -(-(576 - PFR) * 27 // 1024)
    a(f"""
    s_cmp_lt_u32 s2, 128
    s_cbranch_scc1 L_nopf
    s_and_b32 s{S_T0}, s2, 127
    s_lshl_b32 s{S_T0}, s{S_T0}, 3
    s_add_u32 s{S_T0}, s{S_T0}, s{S_W}
    s_mul_i32 s{S_T1}, s{S_T0}, {PFW*128}
    s_add_u32 s{S_T1}, s{S_T1}, {PFR*3456}
    s_mul_i32 s{S_T0}, s{S_T0}, {18*128}
    v_lshlrev_b32 v4, 7, v1
    s_waitcnt lgkmcnt(0)
    """)
    srd(a, SRD_X, S_PTR, 2048 * 1152)
    srd(a, SRD_W, S_PTR + 2, 576 * 3456)
    srd(a, SRD_G, S_PTR + 8, 576 * 3456)
    a(f"""
    s_mov_b64 exec, {hex((1 << PFW) - 1)}
    buffer_load_dword v{PF}, v4, {sr(SRD_W,4)}, s{S_T1} offen
    buffer_load_dword v{PF+1}, v4, {sr(SRD_G,4)}, s{S_T1} offen
    s_mov_b64 exec, 0x3ffff
    buffer_load_dword v159, v4, {sr(SRD_X,4)}, s{S_T0} offen
    s_mov_b64 exec, -1
    """)
    a.label("L_nopf")

def phase1(a):
    if OPT.get("pf", "early") == "early": prefetch(a)
    a(f"""
    s_lshl_b32 s{S_T3}, s{S_W}, 12
    s_add_u32 s{S_T3}, s{S_T3}, {XST[2]}
    v_lshrrev_b32 v4, 1, v3
    v_xor_b32 v4, v4, v2
    v_lshlrev_b32 v5, 7, v3
    v_add_u32 v5, s{S_T3}, v5
    v_lshl_add_u32 v{AXR}, v4, 4, v5
    v_xor_b32 v4, 4, v4
    v_lshl_add_u32 v{AXR+1}, v4, 4, v5
    v_add_u32 v{AXR+2}, {XST[1]-XST[2]}, v{AXR}
    v_add_u32 v{AXR+3}, {XST[1]-XST[2]}, v{AXR+1}
    v_bfe_u32 v4, v1, 2, 2
    v_and_b32 v5, 3, v1
    v_and_b32 v6, 1, v2
    v_lshlrev_b32 v6, 2, v6
    v_or_b32 v6, v6, v4
    v_lshlrev_b32 v6, 1, v6
    v_lshl_add_u32 v7, v2, 3, v4
    v_lshlrev_b32 v7, 8, v7
    v_add_u32 v7, {WST[0]}, v7
    """)
    u, t = ACC, ACC + 1
    def addr(n):
        a(f"""
        v_lshrrev_b32 v{t}, 1, v{u}
        v_xor_b32 v{t}, v{t}, v6
        v_lshl_add_u32 v{t}, v{t}, 4, v7
        v_and_b32 v{u+2}, 1, v{u}
        v_lshl_add_u32 v{AW+n}, v{u+2}, 3, v{t}
        """)
    a(f"v_lshrrev_b32 v{u}, 1, v5\nv_lshl_add_u32 v{u}, v5, 1, v{u}"); addr(T_QA)
    a(f"v_add_u32 v{u}, 1, v{u}"); addr(T_QB)
    a(f"v_add_u32 v{u}, 9, v{u}"); addr(T_KA)
    a(f"v_add_u32 v{u}, 1, v{u}"); addr(T_KB)
    a(f"v_add_u32 v{u}, 21, v5"); addr(T_VA)
    a(f"v_add_u32 v{u}, 25, v5"); addr(T_VB)
    a(f"v_lshlrev_b32 v{u}, 3, v5\ns_mov_b32 s{S_T0}, 0x1b1d0e04\nv_lshrrev_b32 v{u}, v{u}, s{S_T0}\nv_and_b32 v{u}, 0xff, v{u}"); addr(T_MID)
    a(f"v_lshlrev_b32 v{AG}, 4, v2\nv_add_u32 v{AG}, {GATE_LDS}, v{AG}")
    a(f"s_mov_b32 s{S_EX}, 0xf000f000\ns_mov_b32 s{S_EX+1}, 0xf000f000")
    byte_table(a, EVA, 3, [vpos_dim(d) for d in range(16)])
    byte_table(a, EVB, 3, [vpos_dim(16), vpos_dim(17)] + [vpos_dim(d) for d in range(14)])
    a(f"""
    s_lshr_b32 s{S_T0}, s{S_W}, 1
    s_mul_i32 s{S_T0}, s{S_T0}, {PB}
    s_and_b32 s{S_T1}, s{S_W}, 1
    v_lshrrev_b32 v4, 1, v2
    v_and_b32 v5, 1, v2
    v_mul_u32_u24 v6, {HS}, v4
    v_lshl_add_u32 v7, v5, 5, v3
    v_lshl_add_u32 v6, v7, 4, v6
    s_lshl_b32 s{S_QS}, s{S_T1}, 10
    s_add_u32 s{S_QS}, s{S_QS}, s{S_T0}
    v_add_u32 v{EKM}, s{S_QS}, v6
    s_mul_i32 s{S_QS}, s{S_T1}, {2*VSUB}
    s_add_u32 s{S_QS}, s{S_QS}, s{S_T0}
    s_add_u32 s{S_QS}, s{S_QS}, {VOFF}
    v_mul_u32_u24 v6, 320, v4
    v_lshl_add_u32 v6, v5, 3, v6
    v_add_u32 v6, s{S_QS}, v6
    v_lshl_add_u32 v{EVA}, v{EVA}, 4, v6
    v_lshl_add_u32 v{EVB}, v{EVB}, 4, v6
    v_mov_b32 v6, {HS}
    v_cmp_gt_u32 vcc, 2, v3
    v_lshrrev_b32 v4, 3, v3
    v_mul_u32_u24 v4, 320, v4
    v_cndmask_b32 v6, v6, 0, vcc
    v_add_u32 v{EVB}, v{EVB}, v6
    v_and_b32 v5, 7, v3
    v_lshl_add_u32 v4, v5, 1, v4
    s_add_u32 s{S_CNT}, s{S_QS}, {HS}
    v_add_u32 v4, s{S_CNT}, v4
    s_lshl_b32 s{S_T1}, s{S_T1}, 3
    s_add_u32 s{S_T1}, s{S_T1}, s{S_T0}
    s_add_u32 s{S_T1}, s{S_T1}, {KROFF}
    v_lshlrev_b32 v5, 4, v3
    v_add_u32 v5, s{S_T1}, v5
    v_add_u32 v6, {QIMG}, v5
    v_cmp_eq_u32 vcc, 1, v2
    v_add_u32 v7, 4, v6
    s_nop 0
    v_cndmask_b32 v6, v6, v5, vcc
    v_cmp_eq_u32 vcc, 2, v2
    v_mov_b32 v{ESC}, 1.0
    s_nop 0
    v_cndmask_b32 v6, v6, v4, vcc
    v_cmp_eq_u32 vcc, 3, v2
    v_mov_b32 v5, {hex(f32(QSCALE))}
    s_nop 0
    v_cndmask_b32 v{EMID}, v6, v7, vcc
    v_cmp_eq_u32 vcc, 0, v2
    v_bfe_u32 v4, v1, 2, 1
    v_mul_u32_u24 v4, {HS}, v4
    v_cndmask_b32 v{ESC}, v{ESC}, v5, vcc
    v_and_b32 v5, 3, v1
    v_mul_u32_u24 v5, 320, v5
    v_bfe_u32 v6, v1, 3, 1
    v_mul_u32_u24 v6, {16*(vpos_slot(18)-vpos_slot(19))}, v6
    v_add3_u32 v4, v4, v5, v6
    s_add_u32 s{S_QS}, s{S_QS}, {16*vpos_slot(19)}
    v_add_u32 v{EONE}, s{S_QS}, v4
    v_lshrrev_b32 v4, 5, v1
    v_mul_u32_u24 v4, {HS}, v4
    v_and_b32 v5, 31, v1
    v_lshl_add_u32 v4, v5, 4, v4
    s_add_u32 s{S_T1}, s{S_T1}, 4
    v_add_u32 v{EKC}, s{S_T1}, v4
    s_mov_b32 s{S_QS}, {hex(f32(QSCALE))}
    s_waitcnt lgkmcnt(0)
    """)
    srd(a, SRD_WS, S_DBG + 2, WS_END)
    srd(a, SRD_O, S_PTR + 14, 2048 * 1152)
    att_addr(a); p3_addr(a)
    if OPT.get("pf", "early") == "late": prefetch(a)
    stamp(a, 1)
    a("s_barrier")
    stamp(a, 2)
    for g in p1_reads(0):
        for x in g: a(x)
    for ks in range(18):
        n = ks // 2
        a("s_waitcnt lgkmcnt(0)")
        if ks % 2 == 1 and n + 1 < 9:
            a("s_barrier")
            if OPT.get("g1prof"): stamp(a, 5 + n)
        groups = p1_reads(ks + 1) if ks + 1 < 18 else []
        if OPT.get("noreads"): groups = []
        if OPT.get("noxreads"): groups = groups[1:]
        wf = WF + 28 * (ks % 2); x = XF + 8 * (ks % 2)
        i = 0
        for nn in (T_QA, T_QB, T_KA, T_KB, T_VA, T_VB, T_MID):
            for tt in range(2):
                c = vr(acc(nn, tt), 4)
                cin = "0" if ks == 0 else c
                if OPT.get("nomfma") and 0 < ks < 17: pass
                elif nn in (T_VA, T_VB):
                    a(f"v_mfma_f32_16x16x32_bf16 {c}, {vr(x+4*tt,4)}, {vr(wf+4*nn,4)}, {cin}")
                else:
                    a(f"v_mfma_f32_16x16x32_bf16 {c}, {vr(wf+4*nn,4)}, {vr(x+4*tt,4)}, {cin}")
                if i < len(groups):
                    for y in groups[i]: a(y)
                i += 1
    stamp(a, 3)
    a("s_waitcnt vmcnt(0)")
    T = WF
    a(f"v_bfe_u32 v{T+16}, v1, 3, 1\ns_mov_b32 s{S_T0}, 0x3f803f80\nv_mul_lo_u32 v{T+16}, v{T+16}, s{S_T0}\nv_mov_b32 v{T+20}, 0x3f80")
    a(f"v_mov_b32 v{T+17}, v{T+16}\nv_mov_b32 v{T+18}, v{T+16}\nv_mov_b32 v{T+19}, v{T+16}")
    a(f"ds_write_b32 v{EKC}, v{T+20}")
    a(f"s_mov_b64 exec, 0xffff\nds_write_b128 v{EONE}, {vr(T+16,4)}\ns_mov_b64 exec, -1")
    a(f"v_add_u32 v{T+21}, {QIMG}, v{EKM}")
    for tt in range(2):
        t = T + 24 + 16 * tt
        for k, n in enumerate((T_KA, T_KB)):
            c = acc(n, tt)
            a(f"v_cvt_pk_bf16_f32 v{t+2*k}, v{c}, v{c+1}\nv_cvt_pk_bf16_f32 v{t+2*k+1}, v{c+2}, v{c+3}")
        a(f"ds_write_b128 v{EKM}, {vr(t,4)} offset:{256*tt}")
        for k, (n, ad) in enumerate(((T_VA, EVA), (T_VB, EVB))):
            c = acc(n, tt)
            a(f"v_cvt_pk_bf16_f32 v{t+4+2*k}, v{c}, v{c+1}\nv_cvt_pk_bf16_f32 v{t+5+2*k}, v{c+2}, v{c+3}")
            a(f"ds_write_b64 v{ad}, {vr(t+4+2*k,2)} offset:{VSUB*tt}")
        c = acc(T_MID, tt)
        for e in range(4): a(f"v_mul_f32 v{c+e}, v{ESC}, v{c+e}")
        a(f"v_cvt_pk_bf16_f32 v{t+12}, v{c}, v{c+1}\nv_cvt_pk_bf16_f32 v{t+13}, v{c+2}, v{c+3}")
        vo = [VSUB * tt + 16 * vpos_dim(14 + e) for e in range(4)]
        a(f"""
        s_mov_b32 exec_lo, 0
        s_mov_b32 exec_hi, 0xffff
        ds_write_b16 v{EMID}, v{t+12} offset:{vo[0]}
        ds_write_b16_d16_hi v{EMID}, v{t+12} offset:{vo[1]}
        ds_write_b16 v{EMID}, v{t+13} offset:{vo[2]}
        ds_write_b16_d16_hi v{EMID}, v{t+13} offset:{vo[3]}
        s_mov_b32 exec_hi, 0xffff0000
        v_mov_b32 v{t+12}, v{c}
        v_mov_b32 v{t+13}, v{c}
        s_mov_b32 exec_lo, -1
        ds_write_b32 v{EMID}, v{t+12} offset:{256*tt}
        ds_write_b32 v{EMID}, v{t+13} offset:{256*tt+HS}
        s_mov_b64 exec, -1
        """)
        for k, n in enumerate((T_QA, T_QB)):
            c = acc(n, tt)
            for e in range(4): a(f"v_mul_f32 v{c+e}, s{S_QS}, v{c+e}")
            a(f"v_cvt_pk_bf16_f32 v{t+8+2*k}, v{c}, v{c+1}\nv_cvt_pk_bf16_f32 v{t+9+2*k}, v{c+2}, v{c+3}")
        a(f"ds_write_b128 v{T+21}, {vr(t+8,4)} offset:{256*tt}")
    att_pre(a)
    a("s_waitcnt lgkmcnt(0)\ns_barrier")

SB = (8, 40); OA = 72; QM = 104; QR = 112; KM = 116; KR = 120; VF = 124
IDX, AKM, AKR, AV, VG = range(132, 137)
BKM, BKR, BV = 160, 161, 162
TMP = 140
P2_END = 163
LAST_BARS = tuple(int(x) for x in os.environ.get('LB', '2,3').split(',') if x)
ORDER = "E3 s3p lv1 E3 2b lkr E8 w0 s0 E4 s1 E4 m0 E4 s2 lv0 E3 m1 lkm E3"

def att_ops(t):
    par = t % 2
    cur, nxt = SB[par], SB[1 - par]
    pb = lambda x: ((x % 8) // 2) * PB
    return cur, {
     "2b": f"v_mfma_f32_32x32x4_2b_bf16 {vr(nxt,32)}, {vr(KR+2*(1-par),2)}, {vr(QR,2)}, 0",
     "m0": f"v_mfma_f32_32x32x16_bf16 {vr(nxt,16)}, {vr(KM,4)}, {vr(QM,4)}, {vr(nxt,16)}",
     "m1": f"v_mfma_f32_32x32x16_bf16 {vr(nxt+16,16)}, {vr(KM,4)}, {vr(QM+4,4)}, {vr(nxt+16,16)}",
     "s0": f"v_smfmac_f32_32x32x32_bf16 {vr(OA,16)}, {vr(VF,4)}, {vr(cur,8)}, v{IDX}",
     "s1": f"v_smfmac_f32_32x32x32_bf16 {vr(OA,16)}, {vr(VF+4,4)}, {vr(cur+8,8)}, v{IDX}",
     "s2": f"v_smfmac_f32_32x32x32_bf16 {vr(OA+16,16)}, {vr(VF,4)}, {vr(cur+16,8)}, v{IDX}",
     "s3": f"v_smfmac_f32_32x32x32_bf16 {vr(OA+16,16)}, {vr(VF+4,4)}, {vr(cur+24,8)}, v{IDX}",
     "s3p": f"v_smfmac_f32_32x32x32_bf16 {vr(OA+16,16)}, {vr(VF+4,4)}, {vr(nxt+24,8)}, v{IDX}",
     "lkr": f"ds_read_b128 {vr(KR,4)}, v{AKR} offset:{pb(t+2)}" if par == 0 else None,
     "lkm": f"ds_read_b128 {vr(KM,4)}, v{AKM} offset:{pb(t+2)+1024*par}",
     "lv0": f"ds_read_b128 {vr(VF,4)}, v{AV} offset:{pb(t+1)+2*VSUB*(1-par)}",
     "lv1": f"ds_read_b128 {vr(VF+4,4)}, v{AV} offset:{pb(t)+2*VSUB*par+VSUB}",
    }

def att_tile(a, t, hooks=None, skip=()):
    cur, ops = att_ops(t)
    e = 0
    for tok in ORDER.split():
        if hooks and tok in hooks: hooks[tok]()
        if tok[0] == "E":
            for _ in range(int(tok[1:])):
                a(f"v_exp_f32 v{cur+e}, v{cur+e}"); e += 1
        elif tok[0] == "w": a(f"s_waitcnt lgkmcnt({tok[1:]})")
        elif ops[tok] and tok not in skip: a(ops[tok])

def rem_off(a, dst, base):
    a(f"""
    s_lshr_b32 s{S_T1}, s{S_POS}, 3
    s_lshl_b32 s{S_T1}, s{S_T1}, 10
    s_and_b32 s{S_T2}, s{S_POS}, 3
    s_lshl_b32 s{S_T2}, s{S_T2}, 8
    s_add_u32 s{S_T1}, s{S_T1}, s{S_T2}
    s_bfe_u32 s{S_T2}, s{S_POS}, 0x10002
    s_lshl_b32 s{S_T2}, s{S_T2}, 3
    s_add_u32 s{S_T1}, s{S_T1}, s{S_T2}
    s_add_u32 s{S_T1}, s{S_T1}, 16384
    s_add_u32 s{dst}, s{base}, s{S_T1}
    """)

def att_addr(a):
    a(f"""
    s_lshr_b32 s{S_T0}, s{S_W}, 2
    s_mul_i32 s{S_T0}, s{S_T0}, {HS}
    v_lshlrev_b32 v4, 4, v1
    v_add_u32 v{BKM}, s{S_T0}, v4
    v_and_b32 v7, 31, v1
    v_lshlrev_b32 v4, 4, v7
    s_add_u32 s{S_T1}, s{S_T0}, {KROFF}
    v_add_u32 v{BKR}, s{S_T1}, v4
    v_min_u32 v7, 19, v7
    v_lshrrev_b32 v4, 2, v7
    v_lshlrev_b32 v4, 3, v4
    s_mov_b32 s{S_T2}, 0x1004000c
    v_lshrrev_b32 v6, v4, s{S_T2}
    v_and_b32 v6, 0xff, v6
    v_and_b32 v4, 3, v7
    v_add_u32 v6, v6, v4
    v_add_u32 v4, 1, v4
    v_and_b32 v4, 3, v4
    v_or_b32 v4, 8, v4
    v_cmp_gt_u32 vcc, 16, v7
    v_lshrrev_b32 v5, 5, v1
    v_mul_u32_u24 v5, 20, v5
    v_cndmask_b32 v4, v4, v6, vcc
    v_add_u32 v4, v4, v5
    s_add_u32 s{S_T1}, s{S_T0}, {VOFF}
    v_lshlrev_b32 v4, 4, v4
    v_add_u32 v{BV}, s{S_T1}, v4
    s_and_b32 s{S_NSL}, s{S_W}, 3
    s_mul_i32 s{S_NSL}, s{S_NSL}, {PB}
    s_add_u32 s{S_NSL}, s{S_NSL}, {QIMG}
    """)

def att_pre(a):
    a(f"""
    v_lshrrev_b32 v5, 5, v1
    v_add_u32 v6, s{S_NSL}, v{BKM}
    v_lshl_add_u32 v7, v5, 3, v{BKR}
    v_add_u32 v7, s{S_NSL}, v7
    v_mov_b32 v{IDX}, 0xdddddddd
    v_mov_b32 v{AKM}, v{BKM}
    v_mov_b32 v{AKR}, v{BKR}
    v_mov_b32 v{AV}, v{BV}
    """)

def att_setup(a):
    a(f"""
    ds_read_b128 {vr(QM,4)}, v6
    ds_read_b128 {vr(QM+4,4)}, v6 offset:1024
    ds_read_b64 {vr(QR,2)}, v7
    ds_read_b128 {vr(KR,4)}, v{BKR}
    ds_read_b128 {vr(KM,4)}, v{BKM}
    """)
    a(f"""
    s_and_b32 s{S_T0}, s{S_W}, 3
    s_lshl_b32 s{S_T1}, s{S_TB}, 2
    s_add_u32 s{S_T0}, s{S_T0}, s{S_T1}
    s_lshl_b32 s{S_T0}, s{S_T0}, 3
    s_add_u32 s{S_T0}, s{S_T0}, s{S_B}
    s_mul_i32 s{S_T0}, s{S_T0}, {OST}
    s_add_u32 s{S_T0}, s{S_T0}, {WS_O}
    s_lshr_b32 s{S_T3}, s{S_W}, 2
    s_lshl_b32 s{S_T1}, s{S_POS}, 1
    s_add_u32 s{S_T1}, s{S_T1}, s{S_T3}
    s_lshl_b32 s{S_T1}, s{S_T1}, 9
    s_add_u32 s{S_X0}, s{S_T0}, s{S_T1}
    s_add_u32 s{S_X1}, s{S_X0}, {4*OST}
    v_bfe_u32 v2, v1, 4, 1
    v_mul_u32_u24 v2, {2*OST}, v2
    v_lshrrev_b32 v3, 5, v1
    v_lshl_add_u32 v2, v3, 8, v2
    v_and_b32 v4, 15, v1
    v_lshl_add_u32 v2, v4, 4, v2
    s_lshl_b32 s{S_T3}, s{S_T3}, 2
    s_add_u32 s{S_T0}, s{S_T0}, s{S_T3}
    """)
    rem_off(a, S_WOFF, S_T0)
    a(f"""
    v_lshrrev_b32 v3, 4, v1
    v_mul_u32_u24 v3, {2*OST}, v3
    v_lshl_add_u32 v3, v4, 4, v3
    s_lshl_b32 s{S_T0}, s{S_B}, 31
    s_xor_b32 s{S_T0}, s{S_T0}, {hex(f32(-math.log2(math.e)))}
    """)
    s0, s1 = SB
    a(f"s_waitcnt lgkmcnt(2)\nv_mul_f32 v{VG}, s{S_T0}, v{QR+1}\nv_mov_b32 v{QR+1}, 0")
    a(f"ds_read_b128 {vr(VF,4)}, v{AV}\ns_waitcnt lgkmcnt(1)")
    qk = lambda: (a(f"v_mfma_f32_32x32x4_2b_bf16 {vr(s0,32)}, {vr(KR,2)}, {vr(QR,2)}, 0"))
    def mains():
        a(f"v_mfma_f32_32x32x16_bf16 {vr(s0,16)}, {vr(KM,4)}, {vr(QM,4)}, {vr(s0,16)}")
        a(f"v_mfma_f32_32x32x16_bf16 {vr(s0+16,16)}, {vr(KM,4)}, {vr(QM+4,4)}, {vr(s0+16,16)}")
    qk()
    for i in range(20): a(f"v_mov_b32 v{OA+i}, 0")
    mains()
    for i in range(20, 32): a(f"v_mov_b32 v{OA+i}, 0")
    T = TMP
    for blk in range(2):
        b = s0 + 16 * blk; m = T + blk
        a(f"v_max3_f32 v{m}, v{b}, v{b+1}, v{b+2}")
        for i in range(3, 15, 2): a(f"v_max3_f32 v{m}, v{m}, v{b+i}, v{b+i+1}")
        a(f"v_max_f32 v{m}, v{m}, v{b+15}")
    a(f"""
    s_nop 1
    v_permlane32_swap_b32 v{T}, v{T+1}
    v_max_f32 v{T}, v{T}, v{T+1}
    v_cvt_pk_bf16_f32 v{QR+1}, -v{T}, 0
    s_nop 1
    """)
    qk()
    for i in range(8): a(f"v_mov_b32 v{s1+24+i}, 0")
    for i in range(4): a(f"v_mov_b32 v{VF+4+i}, 0")
    a(f"""
    s_lshl_b32 s{S_KVB}, s{S_GRP}, 3
    s_mul_i32 s{S_KVB}, s{S_KVB}, {SLOT}
    s_mov_b64 {sr(S_OK,2)}, -1
    s_mov_b32 s{S_CH}, 0
    s_mov_b32 s{S_NSL}, 0
    s_nop 0
    """)
    mains()
    a(f"ds_read_b128 {vr(KM,4)}, v{AKM} offset:1024\nv_exp_f32 v{VG}, v{VG}\ns_nop 0\nv_add_f32 v{VG}, 1.0, v{VG}\nv_rcp_f32 v{VG}, v{VG}")
    a.nop(6)

def att_chunk(a, last=False):
    def sync():
        a(f"""
        s_add_u32 s{S_NSL}, s{S_NSL}, {SLOT}
        s_cmp_eq_u32 s{S_NSL}, {4*SLOT}
        s_cselect_b32 s{S_NSL}, 0, s{S_NSL}
        s_barrier
        v_add_u32 v{AKR}, s{S_NSL}, v{BKR}
        v_add_u32 v{AKM}, s{S_NSL}, v{BKM}
        """)
    for t in range(8):
        hooks = {}; skip = ()
        if not last:
            if t == 6: hooks["lkr"] = sync
            if t == 7: hooks["lv0"] = lambda: a(f"v_add_u32 v{AV}, s{S_NSL}, v{BV}")
        else:
            if t == 1: hooks["2b"] = lambda: a("s_barrier")
            if t % 2 == 0 and t // 2 in LAST_BARS: hooks["2b"] = lambda: a("s_barrier")
            if t == 6: skip = ("lkr", "lkm")
            if t == 7: skip = ("2b", "m0", "m1", "lkm", "lv0"); hooks["s0"] = lambda: a("s_barrier")
        att_tile(a, t, hooks, skip)

def att_finish(a):
    _, ops = att_ops(7)
    a(f"s_nop 1\n{ops['s3']}")
    T = TMP
    a.label("L_att_norm")
    late = OPT.get("prel", "early") == "late"
    if late: a.nop(11)
    else: p3_preload(a, 0, 3)
    m = T + 2
    a(f"""
    v_mov_b32 v{T}, v{OA+10}
    v_mov_b32 v{T+1}, v{OA+26}
    s_mov_b32 s{S_T0}, {hex(f32(2.0**-60))}
    s_mov_b32 s{S_T1}, {hex(f32(2.0**60))}
    v_permlane32_swap_b32 v{T}, v{T+1}
    v_add_f32 v{m}, |v{OA}|, |v{OA+16}|
    v_cmp_nle_f32 s[4:5], s{S_T0}, v{T}
    v_cmp_nge_f32 s[6:7], s{S_T1}, v{T}
    v_rcp_f32 v{T}, v{T}
    """)
    for i in range(1, 10): a(f"v_add_f32 v{m}, v{m}, |v{OA+i}|\nv_add_f32 v{m}, v{m}, |v{OA+16+i}|")
    a(f"""
    s_mov_b32 s{S_T0}, 0x7f000000
    v_mul_f32 v{T}, v{T}, v{VG}
    v_cmp_nge_f32 vcc, s{S_T0}, v{m}
    v_mov_b32 v{T+1}, v{T}
    s_or_b64 s[4:5], s[4:5], s[6:7]
    s_or_b64 vcc, vcc, s[4:5]
    s_and_b64 vcc, vcc, {sr(S_OK,2)}
    s_cbranch_vccnz L_att_slow
    v_permlane32_swap_b32 v{T}, v{T+1}
    """)
    for blk in range(2):
        o = OA + 16 * blk; f = T + blk; d = T + 4 + 4 * blk
        for i in range(10): a(f"v_mul_f32 v{o+i}, v{f}, v{o+i}")
        for i in range(4): a(f"v_cvt_pk_bf16_f32 v{d+i}, v{o+2*i}, v{o+2*i+1}")
        for i in range(4): a(f"v_min_u32 v{d+i}, -2, v{d+i}")
        a(f"buffer_store_dwordx4 {vr(d,4)}, v2, {sr(SRD_WS,4)}, s{S_X0+blk} offen sc1")
        a(f"v_cvt_pk_bf16_f32 v{T+12+blk}, v{o+8}, v{o+9}")
        if late and blk == 0: p3_preload(a, 0, 1)
    a(f"s_nop 1\nv_permlane32_swap_b32 v{T+12}, v{T+13}\nv_min_u32 v{T+12}, -2, v{T+12}")
    a(f"buffer_store_dword v{T+12}, v3, {sr(SRD_WS,4)}, s{S_WOFF} offen sc1")

def att_slow(a):
    s0 = SB[0]; T = TMP
    M0, M1, GK = T + 14, T + 15, T + 16
    a.label("L_att_slow")
    a(f"""
    s_mov_b64 {sr(S_OK,2)}, 0
    v_mov_b32 v{QR+1}, 0
    v_mov_b32 v{M0}, 0xff800000
    v_mov_b32 v{M1}, 0xff800000
    s_waitcnt vmcnt(0) lgkmcnt(0)
    """)
    for i in range(32): a(f"v_mov_b32 v{OA+i}, 0")
    for ps in range(2):
        a(f"s_mov_b32 s{S_CNT}, 0")
        a.label(f"L_slow_{ps}")
        a(f"""
        s_lshr_b32 s{S_T0}, s{S_CNT}, 1
        s_bfe_u32 s{S_T1}, s{S_CNT}, 0x30003
        s_lshl_b32 s{S_T1}, s{S_T1}, 2
        s_add_u32 s{S_T0}, s{S_T0}, s{S_T1}
        s_mul_i32 s{S_T0}, s{S_T0}, {PB}
        s_add_u32 s{S_T0}, s{S_T0}, s{S_KVB}
        s_and_b32 s{S_T1}, s{S_CNT}, 1
        s_lshl_b32 s{S_T2}, s{S_T1}, 10
        s_add_u32 s{S_T2}, s{S_T2}, s{S_T0}
        buffer_load_dwordx4 {vr(KM,4)}, v{BKM}, {sr(SRD_WS,4)}, s{S_T2} offen sc1
        s_lshl_b32 s{S_T2}, s{S_T1}, 3
        s_add_u32 s{S_T2}, s{S_T2}, s{S_T0}
        buffer_load_dwordx2 {vr(KR,2)}, v{BKR}, {sr(SRD_WS,4)}, s{S_T2} offen sc1
        s_mul_i32 s{S_T2}, s{S_T1}, {2*VSUB}
        s_add_u32 s{S_T2}, s{S_T2}, s{S_T0}
        buffer_load_dwordx4 {vr(VF,4)}, v{BV}, {sr(SRD_WS,4)}, s{S_T2} offen sc1
        buffer_load_dwordx4 {vr(VF+4,4)}, v{BV}, {sr(SRD_WS,4)}, s{S_T2} offen offset:{VSUB} sc1
        s_waitcnt vmcnt(0)
        v_mfma_f32_32x32x4_2b_bf16 {vr(s0,32)}, {vr(KR,2)}, {vr(QR,2)}, 0
        """)
        a.nop(20)
        a(f"v_mfma_f32_32x32x16_bf16 {vr(s0,16)}, {vr(KM,4)}, {vr(QM,4)}, {vr(s0,16)}")
        a(f"v_mfma_f32_32x32x16_bf16 {vr(s0+16,16)}, {vr(KM,4)}, {vr(QM+4,4)}, {vr(s0+16,16)}")
        a.nop(14)
        if ps == 0:
            for blk, m in enumerate((M0, M1)):
                for i in range(0, 16, 2): a(f"v_max3_f32 v{m}, v{m}, v{s0+16*blk+i}, v{s0+16*blk+i+1}")
        else:
            for i in range(32): a(f"v_sub_f32 v{s0+i}, v{s0+i}, v{M0 if i < 16 else M1}")
            for i in range(32): a(f"v_exp_f32 v{s0+i}, v{s0+i}")
            a.nop(2)
            for i in range(4):
                a(f"v_smfmac_f32_32x32x32_bf16 {vr(OA+16*(i//2),16)}, {vr(VF+4*(i%2),4)}, {vr(s0+8*i,8)}, v{IDX}")
            a.nop(14)
        a(f"s_add_u32 s{S_CNT}, s{S_CNT}, 1\ns_cmp_lt_u32 s{S_CNT}, 64\ns_cbranch_scc1 L_slow_{ps}")
        if ps == 0:
            for m in (M0, M1):
                a(f"v_mov_b32 v{GK}, v{m}\ns_nop 1\nv_permlane32_swap_b32 v{GK}, v{m}\nv_max_f32 v{m}, v{m}, v{GK}")
    a("s_branch L_att_norm")

OD = int(os.environ.get('OD', 6)); WD = 5 if OD <= 6 else 4
WBUF = (8, 28, 48, 96, 116) if OD <= 6 else (8, 28, 48, 116)
OF = 72
OACC = 136
AM, AM8, AM15, AR, AR3 = 163, 164, 165, 166, 167
OL, RED, OUT4, OUT2 = 4, 5, 157, 158
CHK = 156
P3_END = 168
S_TT, S_TOK, S_PB = 38, 40, 64
S_OBS = (65, 67, 70, 71, 3)

def p3_addr(a):
    ob = S_OBS
    a(f"""
    s_and_b32 s{S_TT}, s{S_W}, 3
    s_lshr_b32 s{S_PB}, s{S_W}, 2
    s_and_b32 s{S_T0}, s2, 7
    s_lshl_b32 s{S_T0}, s{S_T0}, 2
    s_bfe_u32 s{S_T1}, s2, 0x20003
    s_add_u32 s{S_T0}, s{S_T0}, s{S_T1}
    s_lshl_b32 s{S_T0}, s{S_T0}, 2
    s_add_u32 s{S_TOK}, s{S_T0}, s{S_TT}
    s_mul_i32 s{S_T0}, s{S_PB}, {576*144}
    v_lshrrev_b32 v{ACC}, 4, v1
    v_bfe_u32 v{ACC+1}, v1, 2, 2
    v_and_b32 v4, 3, v1
    v_lshlrev_b32 v4, 3, v4
    v_and_b32 v5, 1, v{ACC}
    v_lshl_add_u32 v5, v5, 2, v{ACC+1}
    v_mul_u32_u24 v5, 288, v5
    v_add_u32 v5, v5, v4
    v_lshrrev_b32 v6, 1, v{ACC}
    v_mul_u32_u24 v7, 2592, v6
    v_add3_u32 v{AM}, v5, v7, s{S_T0}
    v_add_u32 v{AM8}, {8*5184}, v{AM}
    v_add_u32 v{AM15}, {15*5184}, v{AM}
    v_and_b32 v6, s{S_PB}, v6
    v_cmp_eq_u32 vcc, 1, v6
    v_mul_u32_u24 v7, 5184, v{ACC}
    v_lshrrev_b32 v6, 1, v{ACC+1}
    v_cndmask_b32 v{AM15}, v{AM15}, v5, vcc
    v_and_b32 v5, 1, v{ACC+1}
    v_add_u32 v5, 16, v5
    v_mul_u32_u24 v5, 144, v5
    v_add_u32 v5, v5, v4
    v_mul_u32_u24 v4, 2592, v6
    v_add3_u32 v7, v7, v4, v5
    v_add_u32 v{AR}, s{S_T0}, v7
    v_add_u32 v{AR3}, {12*5184}, v{AR}
    v_lshrrev_b32 v4, 3, v1
    v_lshl_add_u32 v4, s{S_PB}, 3, v4
    v_cmp_eq_u32 vcc, 15, v4
    v_add_u32 v5, {63*2592 - 16*144}, v5
    s_nop 0
    v_cndmask_b32 v{AR3}, v{AR3}, v5, vcc
    s_lshr_b32 s{S_T1}, s2, 5
    s_mul_i32 s{S_T1}, s{S_T1}, 144
    s_mul_i32 s{S_T0}, s{S_TOK}, {16*1152}
    s_add_u32 s{S_T0}, s{S_T0}, s{S_T1}
    v_and_b32 v6, 15, v1
    v_mul_u32_u24 v6, 1152, v6
    v_add_u32 v6, s{S_T0}, v6
    v_lshl_add_u32 v{OUT2}, v{ACC}, 3, v6
    v_lshrrev_b32 v{ACC+1}, 5, v1
    v_lshl_add_u32 v6, v{ACC+1}, 4, v6
    v_and_b32 v{ACC}, 1, v{ACC}
    v_lshl_add_u32 v{OUT4}, v{ACC}, 5, v6
    s_lshl_b32 s{S_T0}, s{S_TOK}, 1
    s_add_u32 s{S_T0}, s{S_T0}, s{S_PB}
    s_mul_i32 s{S_T0}, s{S_T0}, {OST}
    s_add_u32 s{ob[0]}, s{S_T0}, {WS_O}
    s_add_u32 s{ob[1]}, s{ob[0]}, 4096
    s_add_u32 s{ob[2]}, s{ob[0]}, 8192
    s_add_u32 s{ob[3]}, s{ob[0]}, 12288
    s_add_u32 s{ob[4]}, s{ob[0]}, 16384
    """)

def p3_wreads(k):
    wb = WBUF[k % WD]; L = []
    for t in range(5):
        g = []
        for i in range(2):
            if k < 8: ad, off = AM, 5184 * k + 144 * i
            elif k < 15: ad, off = AM8, 5184 * (k - 8) + 144 * i
            elif k == 15: ad, off = AM15, 144 * i
            elif (k, i) == (17, 1): ad, off = AR3, 0
            else: ad, off = AR, 5184 * (8 * (k - 16) + 4 * i)
            g.append(f"ds_read_b64_tr_b16 {vr(wb+4*t+2*i,2)}, v{ad} offset:{off+32*t}")
        L.append(g)
    return L

def p3_preload(a, k0, k1):
    for k in range(k0, k1):
        for g in p3_wreads(k):
            for x in g: a(x)

def phase3(a):
    stamp(a, 5)
    def oload(k):
        a(f"buffer_load_dwordx4 {vr(OF+4*(k%OD),4)}, v{OL}, {sr(SRD_WS,4)}, s{S_OBS[k//4]} offen offset:{1024*(k%4)} sc1")
    def ocheck(k, target):
        d = OF + 4 * (k % OD)
        a(f"""
        v_max3_u32 v{CHK}, v{d}, v{d+1}, v{d+2}
        v_max_u32 v{CHK}, v{CHK}, v{d+3}
        v_cmp_eq_u32 vcc, -1, v{CHK}
        s_and_b64 vcc, vcc, {sr(S_OK,2)}
        s_cbranch_scc1 {target}
        """)
    a(f"v_lshlrev_b32 v{OL}, 4, v1\ns_mul_i32 s{S_T0}, s{S_TT}, 5120\nv_add_u32 v{RED}, s{S_T0}, v{OL}")
    p3_preload(a, 1 if OPT.get('prel') == 'late' else 3, WD)
    a(f"s_mov_b64 {sr(S_OK,2)}, -1\ns_mov_b32 s{S_CNT}, {SPIN_MAX}\ns_waitcnt lgkmcnt(15)\ns_barrier")
    stamp(a, 9)
    n0 = int(OPT.get("n0", 3))
    upto = lambda k: min(18, n0 + 2 * (k + 1), k + 1 + OD) if k >= 0 else n0
    def check_ops(k):
        d = OF + 4 * (k % OD)
        return [f"v_max3_u32 v{CHK}, v{d}, v{d+1}, v{d+2}", f"v_max_u32 v{CHK}, v{CHK}, v{d+3}", f"v_cmp_eq_u32 vcc, -1, v{CHK}"]
    for k in range(n0): oload(k)
    a(f"s_waitcnt vmcnt({n0 - 1})")
    for x in check_ops(0): a(x)
    for k in range(18):
        groups = p3_wreads(k + WD) if k + WD < 18 else []
        lg = min(15, 10 * (min(k + WD, 18) - k - 1))
        if k + WD == 7: a("s_barrier")
        a(f"s_and_b64 vcc, vcc, {sr(S_OK,2)}\ns_cbranch_scc1 L_retry_{k}")
        a.label(f"L_have_{k}")
        a(f"s_waitcnt lgkmcnt({lg})")
        if k == 17: a("s_barrier")
        wb = WBUF[k % WD]
        early = [j for j in range(upto(k - 1), upto(k)) if j < k + OD]
        for j in early: oload(j)
        nxt = check_ops(k + 1) if k < 17 else []
        for t in range(5):
            c = vr(OACC + 4 * t, 4)
            a(f"v_mfma_f32_16x16x32_bf16 {c}, {vr(wb+4*t,4)}, {vr(OF+4*(k%OD),4)}, {'0' if k == 0 else c}")
            if t == 4 and upto(k) == k + 1 + OD: oload(k + OD)
            if t < len(groups):
                for y in groups[t]: a(y)
            if nxt and t == 2: a(f"s_waitcnt vmcnt({upto(k-1) + len(early) - k - 2})")
            if nxt and t >= 2: a(nxt[t - 2])
    def retries():
        for k in range(18):
            a.label(f"L_retry_{k}")
            a(f"s_waitcnt vmcnt(0)\ns_sleep {OPT.get('slp3', 2)}")
            oload(k)
            a(f"s_sub_u32 s{S_CNT}, s{S_CNT}, 1\ns_cselect_b64 {sr(S_OK,2)}, 0, {sr(S_OK,2)}\ns_waitcnt vmcnt(0)")
            ocheck(k, f"L_retry_{k}")
            for j in range(k + 1, upto(k - 1)): oload(j)
            a(f"s_branch L_have_{k}")
    a.p3_retries = retries
    stamp(a, 11)
    if PROF: a(f"s_sub_u32 s{72+20}, {SPIN_MAX}, s{S_CNT}")
    T = OF
    a(f"s_cmp_eq_u32 s{S_PB}, 0\ns_cbranch_scc0 L_p3_b")
    def fin(tiles, give, off):
        a.nop(6)
        for t in give: a(f"ds_write_b128 v{RED}, {vr(OACC+4*t,4)} offset:{1024*t}")
        a("s_waitcnt lgkmcnt(0)\ns_barrier")
        for k, t in enumerate(tiles): a(f"ds_read_b128 {vr(T+4*k,4)}, v{RED} offset:{1024*t}")
        for k, t in enumerate(tiles):
            a(f"s_waitcnt lgkmcnt({len(tiles)-1-k})")
            for e in range(4): a(f"v_add_f32 v{OACC+4*t+e}, v{OACC+4*t+e}, v{T+4*k+e}")
        d = T + 12
        t0, t1 = tiles[0], tiles[1]
        a(f"""
        v_cvt_pk_bf16_f32 v{d}, v{OACC+4*t0}, v{OACC+4*t0+1}
        v_cvt_pk_bf16_f32 v{d+1}, v{OACC+4*t0+2}, v{OACC+4*t0+3}
        v_cvt_pk_bf16_f32 v{d+2}, v{OACC+4*t1}, v{OACC+4*t1+1}
        v_cvt_pk_bf16_f32 v{d+3}, v{OACC+4*t1+2}, v{OACC+4*t1+3}
        s_nop 1
        v_permlane16_swap_b32 v{d}, v{d+2}
        v_permlane16_swap_b32 v{d+1}, v{d+3}
        buffer_store_dwordx4 {vr(d,4)}, v{OUT4}, {sr(SRD_O,4)}, 0 offen offset:{off}{OPT.get('omod', '')}
        """)
        if len(tiles) == 3:
            t2 = tiles[2]
            a(f"""
            v_cvt_pk_bf16_f32 v{d+4}, v{OACC+4*t2}, v{OACC+4*t2+1}
            v_cvt_pk_bf16_f32 v{d+5}, v{OACC+4*t2+2}, v{OACC+4*t2+3}
            s_mov_b32 exec_hi, 0
            buffer_store_dwordx2 {vr(d+4,2)}, v{OUT2}, {sr(SRD_O,4)}, 0 offen offset:128{OPT.get('omod', '')}
            """)
        if OPT.get("hold"):
            lab = a.uid("L_hold")
            a("s_waitcnt vmcnt(0)"); a.label(lab)
            a(f"s_sleep 1\ns_memrealtime s[98:99]\ns_waitcnt lgkmcnt(0)\ns_sub_u32 s99, s72, s98\ns_cmp_gt_i32 s99, 0\ns_cbranch_scc1 {lab}")
        if PROF: a("s_waitcnt vmcnt(0)")
        stamp(a, 12); stamp(a, 17, True); stamp_out(a)
        a("s_endpgm")
    fin((0, 1, 4), (2, 3), 0)
    a.label("L_p3_b")
    fin((2, 3), (0, 1, 4), 64)

WPIECE = 864
def loader(a):
    AD0, AD1, AX0, AX1, LA, DW, FA, FL, Z = range(8, 17)
    BUF = 24
    DWS = (DW, 17, 18)
    sWS, sXS, sWO, sXO = (64, 65, 66), (33, 34, 35), 36, 37
    sM, sS, sN, sO = 38, 40, 41, 36
    a("s_setprio 3")
    def wsrc(dst, hi):
        a(f"""
        v_lshlrev_b32 v4, 1, v2
        v_or_b32 v4, {8*hi}, v4
        v_xor_b32 v4, v4, v3
        v_min_u32 v4, 14, v4
        v_mul_u32_u24 v5, 52, v4
        v_lshrrev_b32 v5, 8, v5
        v_lshlrev_b32 v4, 4, v4
        v_mul_u32_u24 v6, 1072, v5
        v_add_u32 v4, v4, v6
        v_and_b32 v5, 2, v5
        v_lshlrev_b32 v5, 2, v5
        v_sub_u32 v4, v4, v5
        v_mul_u32_u24 v5, 3456, v2
        v_add_u32 v{dst}, v4, v5
        """)
    wsrc(AD0, 0); wsrc(AD1, 1)
    a(f"""
    v_lshrrev_b32 v4, 3, v1
    v_mul_u32_u24 v4, 1152, v4
    v_and_b32 v5, 7, v1
    v_xor_b32 v5, v5, v2
    v_lshl_add_u32 v{AX0}, v5, 4, v4
    v_xor_b32 v5, 4, v5
    v_lshl_add_u32 v4, v5, 4, v4
    v_add_u32 v{AX1}, {8*1152}, v4
    v_lshlrev_b32 v{LA}, 4, v1
    s_mul_i32 s{sXO}, s{S_TB}, {256*1152}
    s_mov_b32 m0, {GATE_LDS}
    s_waitcnt lgkmcnt(0)
    s_cmp_eq_u32 s{S_B}, 0
    s_cselect_b32 s{S_PTR+2}, s{S_PTR+2}, s{S_PTR+8}
    s_cselect_b32 s{S_PTR+3}, s{S_PTR+3}, s{S_PTR+9}
    """)
    srd(a, SRD_W, S_PTR + 2, 576 * 3456)
    srd(a, SRD_X, S_PTR, 2048 * 1152)
    srd(a, SRD_G, S_PTR + 12, 1152)
    a(f"buffer_load_dwordx4 v{LA}, {sr(SRD_G,4)}, 0 offen lds")
    a(f"buffer_load_dwordx4 v{LA}, {sr(SRD_G,4)}, 0 offen offset:1024 lds")
    for i in range(3): a(f"s_mov_b32 s{sWS[i]}, {WST[i]}\ns_mov_b32 s{sXS[i]}, {XST[i]}")
    srd(a, SRD_WS, S_DBG + 2, WS_END)
    srd(a, SRD_O, S_DBG, 256)
    a(f"v_mov_b32 v{Z}, 0\nv_lshlrev_b32 v{FA}, 2, v1\ns_mov_b32 s{sN}, 0")
    a(f"s_cmp_eq_u32 s2, 0\ns_cselect_b32 s{S_T3}, 2, 15")
    DW_ = int(OPT.get("dw", 4))
    npc = (0 if OPT.get("now") else 2) + (0 if OPT.get("nox") else 4)
    def part(w0, w1):
        for w in range(w0, w1):
            a("s_waitcnt vmcnt(57)")
            for h in range(0 if OPT.get("now") else 2):
                a(f"""
                s_add_u32 m0, s{sWS[0]}, {h*8192 + w*1024}
                s_add_u32 s{S_T0}, s{sWO}, {(32*h + 4*w)*3456}
                buffer_load_dwordx4 v{AD0 + ((w >> 1) & 1)}, {sr(SRD_W,4)}, s{S_T0} offen lds
                """)
            for u in range(0 if OPT.get("nox") else 4):
                a(f"""
                s_add_u32 m0, s{sXS[0]}, {w*4096 + u*1024}
                s_add_u32 s{S_T0}, s{sXO}, {(32*w + 16*(u >> 1))*1152}
                buffer_load_dwordx4 v{AX0 + (u & 1)}, {sr(SRD_X,4)}, s{S_T0} offen lds
                """)
    a.label("L_ld_pair")
    part(0, DW_)
    a(f"s_cmp_eq_u32 s{sN}, 0\ns_cbranch_scc1 L_ld_first\ns_waitcnt vmcnt({npc*DW_})\ns_barrier")
    a(f"s_cmp_eq_u32 s{sN}, s{S_T3}\ns_cbranch_scc1 L_ld_ready")
    a.label("L_ld_second")
    part(DW_, 8)
    for r in (sWS, sXS):
        a(f"s_mov_b32 s{S_T0}, s{r[0]}\ns_mov_b32 s{r[0]}, s{r[1]}\ns_mov_b32 s{r[1]}, s{r[2]}\ns_mov_b32 s{r[2]}, s{S_T0}")
    a(f"""
    s_add_u32 s{sWO}, s{sWO}, {64*3456}
    s_add_u32 s{sXO}, s{sXO}, 128
    s_add_u32 s{sN}, s{sN}, 1
    s_cmp_lt_u32 s{sN}, 9
    s_cbranch_scc1 L_ld_pair
    s_waitcnt vmcnt(0)
    s_barrier
    """)
    rdy = f"buffer_load_dword v{FL}, v{Z}, {sr(SRD_O,4)}, 0 offen sc1"
    a(f"""
    s_mov_b64 exec, 1
    {rdy}
    s_lshl_b32 s{S_KVB}, s{S_GRP}, 3
    s_add_u32 s{sO}, s{S_KVB}, s{S_TB}
    s_mul_i32 s{sO}, s{sO}, {SLOT}
    s_mul_i32 s{S_KVB}, s{S_KVB}, {SLOT}
    s_lshl_b32 s{S_X1}, s{S_GRP}, 7
    s_add_u32 s{S_X1}, s{S_X1}, {WS_F1}
    s_lshl_b32 s{S_X0}, s{S_TB}, 2
    s_add_u32 s{S_X0}, s{S_X0}, s{S_X1}
    """)
    spin(a, "rdy", rdy, FL)
    a(f"""
    s_mov_b64 exec, -1
    v_mul_u32_u24 v2, 57, v1
    v_lshrrev_b32 v2, 9, v2
    v_mul_u32_u24 v2, {1152 - 144}, v2
    v_lshl_add_u32 v2, v1, 4, v2
    s_lshr_b32 s{S_C0}, s2, 5
    s_mul_i32 s{S_C0}, s{S_C0}, 144
    v_add_u32 v{DW}, s{S_C0}, v2
    v_add_u32 v{DWS[1]}, {6*1152 - WPIECE}, v{DW}
    v_add_u32 v{DWS[2]}, {2*(6*1152 - WPIECE)}, v{DW}
    s_barrier
    """)
    def flag(soff):
        a(f"v_mov_b32 v{FL}, 1\ns_mov_b64 exec, 1\nbuffer_store_dword v{FL}, v{Z}, {sr(SRD_WS,4)}, s{soff} offen sc1\ns_mov_b64 exec, -1")
    def publish():
        rd = lambda i: a(f"ds_read_b128 {vr(BUF+4*(i%24),4)}, v{LA} offset:{1024*i}")
        for i in range(12): rd(i)
        for i in range(40):
            if i + 12 < 40: rd(i + 12)
            a(f"s_waitcnt lgkmcnt({min(12, 39 - i)})")
            a(f"buffer_store_dwordx4 {vr(BUF+4*(i%24),4)}, v{LA}, {sr(SRD_WS,4)}, s{sO} offen offset:{1024*(i%4)} sc1")
            if i % 4 == 3: a(f"s_add_u32 s{sO}, s{sO}, 4096")
        stamp(a, 13)
        a("s_waitcnt vmcnt(0)")
        flag(S_X0); stamp(a, 5)
    def kv_setup(c):
        a(f"""
        s_cmp_gt_u32 s{S_TB}, {(c - 1) % 8}
        s_cselect_b32 s{S_T0}, {(c - 1) % 8}, {c % 8}
        s_mul_i32 s{S_T0}, s{S_T0}, {SLOT}
        s_add_u32 s{sS}, s{S_T0}, s{S_KVB}
        s_mov_b32 s{sM}, {(c % 4) * SLOT}
        """)
    def kv_pieces(n):
        for g in range(n // 4):
            if g % 2 == 0: a("s_waitcnt vmcnt(55)")
            a(f"s_add_u32 m0, s{sM}, {4096*g}\ns_add_u32 s{S_T0}, s{sS}, {4096*g}")
            for i in range(4): a(f"buffer_load_dwordx4 v{LA}, {sr(SRD_WS,4)}, s{S_T0} offen offset:{1024*i} sc1 lds")
    ld1 = f"buffer_load_dword v{FL}, v{FA}, {sr(SRD_WS,4)}, s{S_X1} offen sc1"
    def need(tag, c):
        a(f"s_cmp_gt_u32 s{S_TB}, {c-1}\ns_cselect_b64 exec, {1 << (c-1)}, {1 << c}\n{ld1}")
        spin(a, tag, ld1, FL)
        a("s_mov_b64 exec, -1")
    a(f"s_cmp_ge_u32 s{S_TB}, 3\ns_cbranch_scc1 L_first_chunk")
    a.label("L_publish")
    publish()
    a(f"s_cmp_ge_u32 s{S_TB}, 3\ns_cbranch_scc1 L_published")
    a.label("L_first_chunk")
    need("kv1", 1); stamp(a, 6)
    kv_setup(1); kv_pieces(40)
    a("s_waitcnt vmcnt(0)")
    stamp(a, 14)
    a("s_barrier")
    stamp(a, 15)
    need("kv2", 2)
    kv_setup(2); kv_pieces(40)
    a(f"s_waitcnt vmcnt(20)\ns_cmp_ge_u32 s{S_TB}, 3\ns_cbranch_scc1 L_publish")
    a.label("L_published")
    a(f"s_waitcnt vmcnt(0)\ns_barrier\ns_mov_b64 exec, 0xff\n{ld1}")
    spin(a, "kv3", ld1, FL)
    a("s_mov_b64 exec, -1")
    kv_setup(3); kv_pieces(40)
    def mark_empty():
        a(f"""
        s_lshl_b32 s{S_T0}, s{S_TB}, 5
        s_add_u32 s{S_T0}, s{S_T0}, s{S_B}
        s_mul_i32 s{S_T0}, s{S_T0}, {OST}
        s_add_u32 s{S_T0}, s{S_T0}, {WS_O}
        s_lshl_b32 s{sO}, s{S_POS}, 10
        s_add_u32 s{sO}, s{sO}, s{S_T0}
        v_mov_b32 v{BUF}, -1
        v_mov_b32 v{BUF+1}, -1
        v_mov_b32 v{BUF+2}, -1
        v_mov_b32 v{BUF+3}, -1
        v_lshrrev_b32 v4, 4, v1
        v_mul_u32_u24 v4, {2*OST}, v4
        v_lshl_add_u32 v4, v3, 4, v4
        """)
        for i in range(16):
            a(f"buffer_store_dwordx4 {vr(BUF,4)}, v{LA}, {sr(SRD_WS,4)}, s{sO} offen sc1\ns_add_u32 s{sO}, s{sO}, {2*OST}")
        rem_off(a, sO, S_T0)
        for i in range(4):
            a(f"buffer_store_dwordx2 {vr(BUF,2)}, v4, {sr(SRD_WS,4)}, s{sO} offen sc1\ns_add_u32 s{sO}, s{sO}, {8*OST}")
        a(f"""
        s_lshl_b32 s{S_X0}, s{S_TB}, 7
        s_lshl_b32 s{S_T0}, s{S_GRP}, 2
        s_add_u32 s{S_X0}, s{S_X0}, s{S_T0}
        s_add_u32 s{S_X0}, s{S_X0}, {WS_F2}
        s_and_b32 s{S_X1}, s2, 7
        s_lshl_b32 s{S_X1}, s{S_X1}, 7
        s_add_u32 s{S_X1}, s{S_X1}, {WS_F2}
        """)
    def touch_wo():
        a(f"v_lshlrev_b32 v5, 7, v1\ns_lshr_b32 s{S_T0}, s2, 3\ns_mul_i32 s{S_T0}, s{S_T0}, {162*128}")
        for b in range(2):
            p = S_PTR + 4 + 6 * b
            a(f"s_mov_b32 s{SRD_G}, s{p}\ns_and_b32 s{SRD_G+1}, s{p+1}, 0xffff\ns_mov_b32 s{SRD_G+2}, {576*1152}")
            for i in range(3):
                a(f"s_add_u32 s{S_T1}, s{S_T0}, {8192*i}\nbuffer_load_dword v{BUF+4+3*b+i}, v5, {sr(SRD_G,4)}, s{S_T1} offen")
    for c in range(4, int(OPT.get('nch', 8))):
        if c == 6 and not OPT.get("notouch"): touch_wo()
        if c == 5: mark_empty()
        kv_setup(c); kv_pieces(40)
        a("s_waitcnt vmcnt(40)")
        if c == 5: flag(S_X0)
        a("s_barrier")
        if c in (4, 7): stamp(a, 1 if c == 4 else 2)
    def wo(b, pieces):
        p = S_PTR + 4 + 6 * b
        a(f"s_mov_b32 s{SRD_G}, s{p}\ns_and_b32 s{SRD_G+1}, s{p+1}, 0xffff\ns_mov_b32 s{SRD_G+2}, {576*1152}")
        pieces = list(pieces); issued = 0; guard = 0
        while pieces:
            n = pieces[0]; run = 1
            while run < min(3, len(pieces)) and pieces[run] == n + run and (n + run) % 6: run += 1
            a(f"s_mov_b32 m0, {(96*b + n)*WPIECE}\ns_mov_b32 s{sS}, {(36*PAIRS[n//6] + 6*(n%6))*1152}")
            if issued + run > guard: a("s_waitcnt vmcnt(48)"); guard = issued + 12
            for i in range(run):
                a(f"buffer_load_dwordx4 v{DWS[i]}, {sr(SRD_G,4)}, s{sS} offen offset:{i*WPIECE} lds")
            pieces = pieces[run:]; issued += run
    def freed(npb):
        busy = [(3*SLOT + h*HS + npb*PB, 3*SLOT + (h+1)*HS) for h in range(2)]
        return [n for n in range(93) if all((96+n+1)*WPIECE <= lo or (96+n)*WPIECE >= hi for lo, hi in busy)]
    def rows(row0, n, dst):
        m = (1 << (9 * n)) - 1
        a(f"""
        s_mov_b32 exec_lo, {hex(m & 0xffffffff)}
        s_mov_b32 exec_hi, {hex(m >> 32)}
        s_mov_b32 m0, {dst}
        s_mov_b32 s{sS}, {row0*1152}
        buffer_load_dwordx4 v{DW}, {sr(SRD_G,4)}, s{sS} offen lds
        """)
    a("s_mov_b32 exec_hi, 0x3fffff")
    wo(0, range(45))
    a("s_waitcnt vmcnt(45)\ns_barrier")
    wo(0, range(45, 93))
    ld2 = f"buffer_load_dword v{FL}, v{FA}, {sr(SRD_WS,4)}, s{S_X1} offen sc1"
    a(f"s_mov_b32 exec_hi, 0\n{ld2}")
    spin(a, "o", ld2, FL)
    a("s_mov_b32 exec_hi, 0x3fffff\ns_barrier")
    done = freed(0)
    wo(0, range(93, 96)); wo(1, done)
    for npb in LAST_BARS:
        a("s_barrier")
        wo(1, [n for n in freed(npb) if n not in done]); done = freed(npb)
    a(f"s_waitcnt vmcnt({len(done) - len(freed(0))})\ns_barrier")
    wo(1, [n for n in range(93) if n not in done])
    rows(574, 2, 63 * 2592)
    a("s_barrier")
    a("s_waitcnt vmcnt(56)")
    rows(558, 6, 0); rows(564, 6, WPIECE); rows(570, 4, 2 * WPIECE)
    a("s_waitcnt vmcnt(0)")
    stamp(a, 9)
    a("s_barrier")
    stamp_out(a)
    a("s_endpgm")
    a.label("L_ld_first")
    a(f"""
    s_waitcnt vmcnt(56)
    s_cmp_lg_u32 s2, 0
    s_cbranch_scc1 L_ld_second
    v_mov_b32 v{BUF}, 0
    v_mov_b32 v{BUF+1}, 0
    v_mov_b32 v{BUF+2}, 0
    v_mov_b32 v{BUF+3}, 0
    s_mov_b32 s{S_T0}, {WS_F1}
    """)
    for i in range(4): a(f"buffer_store_dwordx4 {vr(BUF,4)}, v{LA}, {sr(SRD_WS,4)}, s{S_T0} offen offset:{1024*i} sc1")
    a(f"""
    s_mov_b32 s{S_T0}, {WS_F2}
    buffer_store_dwordx4 {vr(BUF,4)}, v{LA}, {sr(SRD_WS,4)}, s{S_T0} offen sc1
    s_branch L_ld_second
    """)
    a.label("L_ld_ready")
    a(f"""
    v_mov_b32 v{FL}, 1
    s_mov_b64 exec, 1
    buffer_store_dword v{FL}, v{Z}, {sr(SRD_O,4)}, 0 offen sc1
    s_mov_b64 exec, -1
    s_branch L_ld_second
    """)

def build():
    a = Asm()
    a("s_cmp_ge_u32 s2, 256\ns_cbranch_scc1 L_exit")
    stamp(a, 0); stamp(a, 16, True)
    entry(a)
    a.late = True
    loader(a)
    a.late = False
    a.label("L_compute")
    phase1(a); stamp(a, 4); a.late = True
    att_setup(a)
    stamp(a, 7); stamp(a, 18, True)
    if OPT.get("prio"):
        a(f"s_cmp_ge_u32 s{S_W}, 4\ns_cbranch_scc{1 if OPT['prio'] == 'old' else 0} L_noprio\ns_setprio 1")
        a.label("L_noprio")
    if OPT.get("align"): a(".p2align 6")
    a.label("L_att_loop")
    att_chunk(a)
    a(f"s_add_u32 s{S_CH}, s{S_CH}, 1\ns_cmp_lt_u32 s{S_CH}, {int(OPT.get('nch', 8)) - 1}\ns_cbranch_scc1 L_att_loop")
    att_chunk(a, last=True)
    stamp(a, 8); stamp(a, 19, True)
    att_finish(a); phase3(a); a.p3_retries()
    att_slow(a)
    a.label("L_exit"); a("s_endpgm")
    return a, max(P1_END, P2_END, P3_END)

def emit(path):
    a, nv = build()
    assert nv <= 168, nv
    label = NAME + "_kernel"
    nv4 = (nv + 3) // 4 * 4
    s = open(f"cdna_kernels/{NAME}.s.ref").read().split("; Override launch")[0]
    s += "; @launch grid=(256,1,1) block=(576,1,1) lds=163840\n"
    s += f""".amdgcn_target "amdgcn-amd-amdhsa--gfx950"
.text
.globl {label}
.p2align 8
.type {label},@function
{label}:
{a.text()}.section .rodata,"a"
.p2align 6
.amdhsa_kernel {label}
  .amdhsa_next_free_vgpr {nv4}
  .amdhsa_next_free_sgpr {102 if PROF or OPT.get('delay') or OPT.get('hold') else 72}
  .amdhsa_accum_offset {nv4}
  .amdhsa_group_segment_fixed_size 0
  .amdhsa_kernarg_size 80
  .amdhsa_user_sgpr_count 2
  .amdhsa_user_sgpr_kernarg_segment_ptr 1
  .amdhsa_system_sgpr_workgroup_id_x 1
.end_amdhsa_kernel
"""
    errs = check_hazards(a.lines) + check_waits(a.lines)
    for e in errs: print(e)
    if errs and not OPT.get("force"):
        print("NOT written:", path); sys.exit(1)
    open(path, "w").write(s)
    import subprocess
    r = subprocess.run([sys.executable, "cdna_unwritten_srd_check.py", path], capture_output=True, text=True)
    if r.returncode:
        print(r.stdout, r.stderr); open(path, "w").write(""); print("REMOVED:", path); sys.exit(1)
    print("wrote", path, "checks", "FAILED" if errs else "OK", len(a.lines), "lines", nv, "vgprs")

if __name__ == "__main__":
    for x in list(sys.argv):
        if x.startswith("-O"):
            k, v = (x[2:].split("=") + ["1"])[:2]; OPT[k] = v.replace("_", " "); sys.argv.remove(x)
    if "--prof" in sys.argv: PROF = True; sys.argv.remove("--prof")
    emit(sys.argv[1] if len(sys.argv) > 1 else f"cdna_kernels/{NAME}.s")
```

```python
import sys, os, math, struct
from asmlib import Asm, vr, sr, check_hazards, check_waits

NAME = "gated_mix__softmax_full_mha__softmax_full_mha__prompt"
def f32(x): return struct.unpack("<I", struct.pack("<f", x))[0]

VSUB = 640
VOFF, KROFF = 2048, 2048 + 4 * VSUB
PB = KROFF + 512
HS = 4 * PB
SLOT = 2 * HS
QIMG = 3 * SLOT
WST = (8192, 24576, 40960)
XST = (90112, 122880, 57344)
GATE_LDS = 155648
WS_KV = 0
OST = 18 * 1024
WS_O = 256 * SLOT
WS_F1 = WS_O + 256 * OST
WS_F2 = WS_F1 + 4096
WS_END = WS_F2 + 1024
PAIRS = [0, 2, 4, 6, 9, 11, 13, 1, 3, 5, 7, 8, 10, 12, 14, 15]
POS_TAB = sum(PAIRS.index(p) << (4 * p) for p in range(16))
PAIR_TAB = sum(p << (4 * k) for k, p in enumerate(PAIRS))
QSCALE = math.log2(math.e) / math.sqrt(18.0)
SPIN_MAX = 1 << 18
def vpos_slot(s): return 12 + s if s < 4 else s - 4 if s < 12 else s + 4 if s < 16 else s - 7 if s < 19 else 8
def vslot_dim(d): return 8 * (d & 1) + (d >> 1) if d < 16 else d
def vpos_dim(d): return vpos_slot(vslot_dim(d))

PROF = False
OPT = {}
WS_PROF = 0x1100000
def stamp(a, i, cyc=False):
    if OPT.get("hat") == str(i) and not cyc and not getattr(a, "isloader", False):
        a(f"s_memrealtime s[98:99]\ns_waitcnt lgkmcnt(0)\ns_add_u32 s72, s98, {int(OPT['hold'])}")
    if not PROF: return
    if OPT.get("g1prof") and 5 <= i <= 12 and getattr(a, "late", False): return
    a(f"{'s_memtime' if cyc else 's_memrealtime'} s[98:99]\ns_waitcnt lgkmcnt(0)\ns_mov_b32 s{72+i}, s98")
def stamp_out(a, n=24):
    if not PROF: return
    if OPT.get("dbgprof"):
        lab = a.uid("L_nodbg")
        a(f"s_lshl_b32 s98, s2, 4\ns_add_u32 s98, s98, s{S_W}\ns_cmp_lg_u32 s98, {16*int(OPT['dbgprof'])}\ns_cbranch_scc1 {lab}")
        srd(a, SRD_G, S_DBG, 256)
        a("s_mov_b64 exec, 1\nv_mov_b32 v3, 0")
        for i in range(1, 13):
            a(f"s_sub_u32 s99, s{72+i}, s72\nv_mov_b32 v2, s99\nbuffer_store_dword v2, v3, s[16:19], 0 offen offset:{4*i}")
        a(f"s_sub_u32 s99, s{72+19}, s{72+18}\nv_mov_b32 v2, s99\nbuffer_store_dword v2, v3, s[16:19], 0 offen offset:52")
        a(f"s_sub_u32 s99, s{72+17}, s{72+16}\nv_mov_b32 v2, s99\nbuffer_store_dword v2, v3, s[16:19], 0 offen offset:56")
        a.label(lab)
        return
    a(f"s_getreg_b32 s94, hwreg(HW_REG_HW_ID)\ns_getreg_b32 s95, hwreg(HW_REG_XCC_ID)")
    a(f"s_lshl_b32 s98, s2, 4\ns_add_u32 s98, s98, s{S_W}\ns_lshl_b32 s98, s98, 7\ns_add_u32 s98, s98, {WS_PROF}")
    a("s_mov_b64 exec, 1\ns_mov_b32 s14, 0x10000000\nv_mov_b32 v3, 0")
    for i in range(n):
        a(f"v_mov_b32 v2, s{72+i}\nbuffer_store_dword v2, v3, s[12:15], s98 offen offset:{4*i}")

SRD_X, SRD_W, SRD_WS, SRD_G, SRD_O = 4, 8, 12, 16, 20
S_W, S_TB, S_GRP, S_B, S_P = 24, 25, 26, 27, 28
S_T0, S_T1, S_T2, S_T3 = 29, 30, 31, 32
S_X0, S_X1, S_WOFF, S_QS = 33, 34, 35, 36
S_CH, S_M0, S_KVB, S_SOFF, S_CNT = 37, 38, 39, 40, 41
S_EX = 42
S_PTR = 44
S_DBG = 60
S_MSTEP, S_SSTEP, S_NSL, S_C0 = 64, 65, 66, 67
S_OK = 68
S_POS = 28

def srd(a, d, ptr, size):
    a(f"s_mov_b32 s{d}, s{ptr}\ns_and_b32 s{d+1}, s{ptr+1}, 0xffff\ns_mov_b32 s{d+2}, {size}\ns_mov_b32 s{d+3}, 0x00020000")

def spin(a, tag, load, reg):
    a(f"s_mov_b32 s{S_CNT}, {SPIN_MAX}")
    a.label(f"L_spin_{tag}")
    a(f"""
    s_waitcnt vmcnt(0)
    v_cmp_eq_u32 vcc, 0, v{reg}
    s_cbranch_vccz L_got_{tag}
    s_sleep {OPT.get('slp', 1)}
    {load}
    s_sub_u32 s{S_CNT}, s{S_CNT}, 1
    s_cmp_lg_u32 s{S_CNT}, 0
    s_cbranch_scc1 L_spin_{tag}
    s_waitcnt vmcnt(0)
    """)
    a.label(f"L_got_{tag}")

ACC = 8
WF = ACC + 56
XF = WF + 56
AW = XF + 16
AG, AXR = AW + 7, AW + 8
EKM, EVA, EVB, EMID, EONE, EKC, ESC = range(AW + 12, AW + 19)
PF = ESC + 1
P1_END = PF + 2
T_QA, T_QB, T_KA, T_KB, T_VA, T_VB, T_MID = range(7)
acc = lambda n, tt: ACC + (2 * n + tt) * 4

def p1_reads(ks):
    wf = WF + 28 * (ks % 2); xf = XF + 8 * (ks % 2)
    st = (ks // 2) % 3
    off = WST[st] - WST[0] + (ks % 2) * 8192
    xa, xo = (AXR + 2, 0) if st == 1 else (AXR, XST[st] - XST[2])
    L = [[f"ds_read_b128 {vr(xf+4*tt,4)}, v{xa+ks%2} offset:{xo + tt*2048}" for tt in range(2)]]
    for n in (T_QA, T_QB, T_KA, T_KB, T_VA, T_VB, T_MID):
        g = [f"ds_read_b64_tr_b16 {vr(wf+4*n,2)}, v{AW+n} offset:{off}",
             f"ds_read_b64_tr_b16 {vr(wf+4*n+2,2)}, v{AW+n} offset:{off+1024}"]
        if n == T_MID:
            g += [f"s_mov_b64 exec, {sr(S_EX,2)}",
                  f"ds_read_b128 {vr(wf+4*n,4)}, v{AG} offset:{64*ks}",
                  "s_mov_b64 exec, -1"]
        L.append(g)
    return L

def byte_table(a, dst, idx, table):
    w = [sum(table[4*i+k] << (8*k) for k in range(4)) for i in range(len(table) // 4)]
    a(f"v_and_b32 v{dst}, 7, v{idx}\nv_or_b32 v{dst}, 0x0c0c0c00, v{dst}")
    a(f"s_mov_b32 s{S_CNT}, {hex(w[1])}\nv_mov_b32 v{ACC+4}, {hex(w[0])}")
    if len(w) == 2:
        a(f"v_perm_b32 v{dst}, s{S_CNT}, v{ACC+4}, v{dst}"); return
    a(f"v_perm_b32 v{ACC+5}, s{S_CNT}, v{ACC+4}, v{dst}")
    a(f"s_mov_b32 s{S_CNT}, {hex(w[3])}\nv_mov_b32 v{ACC+4}, {hex(w[2])}\nv_cmp_gt_u32 vcc, 8, v{idx}")
    a(f"v_perm_b32 v{dst}, s{S_CNT}, v{ACC+4}, v{dst}\ns_nop 0\nv_cndmask_b32 v{dst}, v{dst}, v{ACC+5}, vcc")

MAP = {
 "4": f"""s_and_b32 s{S_T0}, s2, 7
    s_lshl_b32 s{S_T0}, s{S_T0}, 2
    s_bfe_u32 s{S_T1}, s2, 0x20003
    s_or_b32 s{S_GRP}, s{S_T0}, s{S_T1}
    s_lshr_b32 s{S_TB}, s2, 5""",
 "s": f"""s_and_b32 s{S_T0}, s2, 7
    s_lshl_b32 s{S_T0}, s{S_T0}, 2
    s_bfe_u32 s{S_T1}, s2, 0x10006
    s_lshl_b32 s{S_T1}, s{S_T1}, 1
    s_or_b32 s{S_GRP}, s{S_T0}, s{S_T1}
    s_lshr_b32 s{S_T0}, s2, 7
    s_bfe_u32 s{S_T1}, s2, 0x10001
    s_xor_b32 s{S_T0}, s{S_T0}, s{S_T1}
    s_xor_b32 s{S_T0}, s{S_T0}, 1
    s_or_b32 s{S_GRP}, s{S_GRP}, s{S_T0}
    s_bfe_u32 s{S_TB}, s2, 0x30003""",
 "8": f"""s_bfe_u32 s{S_T0}, s2, 0x20001
    s_lshl_b32 s{S_T0}, s{S_T0}, 3
    s_bfe_u32 s{S_T1}, s2, 0x30003
    s_or_b32 s{S_GRP}, s{S_T0}, s{S_T1}
    s_and_b32 s{S_T0}, s2, 1
    s_lshl_b32 s{S_T0}, s{S_T0}, 2
    s_lshr_b32 s{S_TB}, s2, 6
    s_or_b32 s{S_TB}, s{S_TB}, s{S_T0}""",
}
def entry(a):
    if OPT.get("hfirst"): a("s_memrealtime s[98:99]")
    a(f"""
    s_load_dwordx16 {sr(S_PTR,16)}, s[0:1], 0
    s_load_dwordx4 {sr(S_DBG,4)}, s[0:1], 64
    v_readfirstlane_b32 s{S_W}, v0
    v_and_b32 v1, 63, v0
    {MAP[OPT.get("map", "s")]}
    s_lshr_b32 s{S_B}, s{S_GRP}, 4
    s_and_b32 s{S_P}, s{S_GRP}, 15
    s_lshr_b32 s{S_W}, s{S_W}, 6
    v_lshrrev_b32 v2, 4, v1
    v_and_b32 v3, 15, v1
    s_mov_b32 s4, {hex(POS_TAB & 0xffffffff)}
    s_mov_b32 s5, {hex(POS_TAB >> 32)}
    s_lshl_b32 s{S_T0}, s{S_P}, 2
    s_lshr_b64 s[4:5], s[4:5], s{S_T0}
    s_mul_i32 s36, s{S_P}, 72
    s_and_b32 s{S_POS}, s4, 15
    """)
    if OPT.get("hold"):
        if not OPT.get("hfirst"): a("s_waitcnt lgkmcnt(0)\ns_memrealtime s[98:99]")
        a(f"s_waitcnt lgkmcnt(0)\ns_add_u32 s72, s98, {int(OPT['hold'])}")
        if OPT.get("hwg"): a(f"s_cmp_eq_u32 s2, {OPT['hwg']}\ns_cselect_b32 s72, s72, s98")
    if OPT.get("delay"):
        a(f"s_memrealtime s[98:99]\ns_waitcnt lgkmcnt(0)\ns_add_u32 s72, s98, {int(OPT['delay'])}")
        a.label("L_delay")
        a("s_sleep 4\ns_memrealtime s[98:99]\ns_waitcnt lgkmcnt(0)\ns_sub_u32 s99, s72, s98\ns_cmp_gt_i32 s99, 0\ns_cbranch_scc1 L_delay")
    a(f"s_cmp_lt_u32 s{S_W}, 8\ns_cbranch_scc1 L_compute")

def prefetch(a):
    PFR = int(OPT.get("pfr", 64)); PFW = -(-(576 - PFR) * 27 // 1024)
    a(f"""
    s_cmp_lt_u32 s2, 128
    s_cbranch_scc1 L_nopf
    s_and_b32 s{S_T0}, s2, 127
    s_lshl_b32 s{S_T0}, s{S_T0}, 3
    s_add_u32 s{S_T0}, s{S_T0}, s{S_W}
    s_mul_i32 s{S_T1}, s{S_T0}, {PFW*128}
    s_add_u32 s{S_T1}, s{S_T1}, {PFR*3456}
    s_mul_i32 s{S_T0}, s{S_T0}, {18*128}
    v_lshlrev_b32 v4, 7, v1
    s_waitcnt lgkmcnt(0)
    """)
    srd(a, SRD_X, S_PTR, 2048 * 1152)
    srd(a, SRD_W, S_PTR + 2, 576 * 3456)
    srd(a, SRD_G, S_PTR + 8, 576 * 3456)
    a(f"""
    s_mov_b64 exec, {hex((1 << PFW) - 1)}
    buffer_load_dword v{PF}, v4, {sr(SRD_W,4)}, s{S_T1} offen
    buffer_load_dword v{PF+1}, v4, {sr(SRD_G,4)}, s{S_T1} offen
    s_mov_b64 exec, 0x3ffff
    buffer_load_dword v159, v4, {sr(SRD_X,4)}, s{S_T0} offen
    s_mov_b64 exec, -1
    """)
    a.label("L_nopf")

def phase1(a):
    if OPT.get("pf", "early") == "early": prefetch(a)
    a(f"""
    s_lshl_b32 s{S_T3}, s{S_W}, 12
    s_add_u32 s{S_T3}, s{S_T3}, {XST[2]}
    v_lshrrev_b32 v4, 1, v3
    v_xor_b32 v4, v4, v2
    v_lshlrev_b32 v5, 7, v3
    v_add_u32 v5, s{S_T3}, v5
    v_lshl_add_u32 v{AXR}, v4, 4, v5
    v_xor_b32 v4, 4, v4
    v_lshl_add_u32 v{AXR+1}, v4, 4, v5
    v_add_u32 v{AXR+2}, {XST[1]-XST[2]}, v{AXR}
    v_add_u32 v{AXR+3}, {XST[1]-XST[2]}, v{AXR+1}
    v_bfe_u32 v4, v1, 2, 2
    v_and_b32 v5, 3, v1
    v_and_b32 v6, 1, v2
    v_lshlrev_b32 v6, 2, v6
    v_or_b32 v6, v6, v4
    v_lshlrev_b32 v6, 1, v6
    v_lshl_add_u32 v7, v2, 3, v4
    v_lshlrev_b32 v7, 8, v7
    v_add_u32 v7, {WST[0]}, v7
    """)
    u, t = ACC, ACC + 1
    def addr(n):
        a(f"""
        v_lshrrev_b32 v{t}, 1, v{u}
        v_xor_b32 v{t}, v{t}, v6
        v_lshl_add_u32 v{t}, v{t}, 4, v7
        v_and_b32 v{u+2}, 1, v{u}
        v_lshl_add_u32 v{AW+n}, v{u+2}, 3, v{t}
        """)
    a(f"v_lshrrev_b32 v{u}, 1, v5\nv_lshl_add_u32 v{u}, v5, 1, v{u}"); addr(T_QA)
    a(f"v_add_u32 v{u}, 1, v{u}"); addr(T_QB)
    a(f"v_add_u32 v{u}, 9, v{u}"); addr(T_KA)
    a(f"v_add_u32 v{u}, 1, v{u}"); addr(T_KB)
    a(f"v_add_u32 v{u}, 21, v5"); addr(T_VA)
    a(f"v_add_u32 v{u}, 25, v5"); addr(T_VB)
    a(f"v_lshlrev_b32 v{u}, 3, v5\ns_mov_b32 s{S_T0}, 0x1b1d0e04\nv_lshrrev_b32 v{u}, v{u}, s{S_T0}\nv_and_b32 v{u}, 0xff, v{u}"); addr(T_MID)
    a(f"v_lshlrev_b32 v{AG}, 4, v2\nv_add_u32 v{AG}, {GATE_LDS}, v{AG}")
    a(f"s_mov_b32 s{S_EX}, 0xf000f000\ns_mov_b32 s{S_EX+1}, 0xf000f000")
    byte_table(a, EVA, 3, [vpos_dim(d) for d in range(16)])
    byte_table(a, EVB, 3, [vpos_dim(16), vpos_dim(17)] + [vpos_dim(d) for d in range(14)])
    a(f"""
    s_lshr_b32 s{S_T0}, s{S_W}, 1
    s_mul_i32 s{S_T0}, s{S_T0}, {PB}
    s_and_b32 s{S_T1}, s{S_W}, 1
    v_lshrrev_b32 v4, 1, v2
    v_and_b32 v5, 1, v2
    v_mul_u32_u24 v6, {HS}, v4
    v_lshl_add_u32 v7, v5, 5, v3
    v_lshl_add_u32 v6, v7, 4, v6
    s_lshl_b32 s{S_QS}, s{S_T1}, 10
    s_add_u32 s{S_QS}, s{S_QS}, s{S_T0}
    v_add_u32 v{EKM}, s{S_QS}, v6
    s_mul_i32 s{S_QS}, s{S_T1}, {2*VSUB}
    s_add_u32 s{S_QS}, s{S_QS}, s{S_T0}
    s_add_u32 s{S_QS}, s{S_QS}, {VOFF}
    v_mul_u32_u24 v6, 320, v4
    v_lshl_add_u32 v6, v5, 3, v6
    v_add_u32 v6, s{S_QS}, v6
    v_lshl_add_u32 v{EVA}, v{EVA}, 4, v6
    v_lshl_add_u32 v{EVB}, v{EVB}, 4, v6
    v_mov_b32 v6, {HS}
    v_cmp_gt_u32 vcc, 2, v3
    v_lshrrev_b32 v4, 3, v3
    v_mul_u32_u24 v4, 320, v4
    v_cndmask_b32 v6, v6, 0, vcc
    v_add_u32 v{EVB}, v{EVB}, v6
    v_and_b32 v5, 7, v3
    v_lshl_add_u32 v4, v5, 1, v4
    s_add_u32 s{S_CNT}, s{S_QS}, {HS}
    v_add_u32 v4, s{S_CNT}, v4
    s_lshl_b32 s{S_T1}, s{S_T1}, 3
    s_add_u32 s{S_T1}, s{S_T1}, s{S_T0}
    s_add_u32 s{S_T1}, s{S_T1}, {KROFF}
    v_lshlrev_b32 v5, 4, v3
    v_add_u32 v5, s{S_T1}, v5
    v_add_u32 v6, {QIMG}, v5
    v_cmp_eq_u32 vcc, 1, v2
    v_add_u32 v7, 4, v6
    s_nop 0
    v_cndmask_b32 v6, v6, v5, vcc
    v_cmp_eq_u32 vcc, 2, v2
    v_mov_b32 v{ESC}, 1.0
    s_nop 0
    v_cndmask_b32 v6, v6, v4, vcc
    v_cmp_eq_u32 vcc, 3, v2
    v_mov_b32 v5, {hex(f32(QSCALE))}
    s_nop 0
    v_cndmask_b32 v{EMID}, v6, v7, vcc
    v_cmp_eq_u32 vcc, 0, v2
    v_bfe_u32 v4, v1, 2, 1
    v_mul_u32_u24 v4, {HS}, v4
    v_cndmask_b32 v{ESC}, v{ESC}, v5, vcc
    v_and_b32 v5, 3, v1
    v_mul_u32_u24 v5, 320, v5
    v_bfe_u32 v6, v1, 3, 1
    v_mul_u32_u24 v6, {16*(vpos_slot(18)-vpos_slot(19))}, v6
    v_add3_u32 v4, v4, v5, v6
    s_add_u32 s{S_QS}, s{S_QS}, {16*vpos_slot(19)}
    v_add_u32 v{EONE}, s{S_QS}, v4
    v_lshrrev_b32 v4, 5, v1
    v_mul_u32_u24 v4, {HS}, v4
    v_and_b32 v5, 31, v1
    v_lshl_add_u32 v4, v5, 4, v4
    s_add_u32 s{S_T1}, s{S_T1}, 4
    v_add_u32 v{EKC}, s{S_T1}, v4
    s_mov_b32 s{S_QS}, {hex(f32(QSCALE))}
    s_waitcnt lgkmcnt(0)
    """)
    srd(a, SRD_WS, S_DBG + 2, WS_END)
    srd(a, SRD_O, S_PTR + 14, 2048 * 1152)
    att_addr(a); p3_addr(a)
    if OPT.get("pf", "early") == "late": prefetch(a)
    stamp(a, 1)
    a("s_barrier")
    stamp(a, 2)
    for g in p1_reads(0):
        for x in g: a(x)
    for ks in range(18):
        n = ks // 2
        a("s_waitcnt lgkmcnt(0)")
        if ks % 2 == 1 and n + 1 < 9:
            a("s_barrier")
            if OPT.get("g1prof"): stamp(a, 5 + n)
        groups = p1_reads(ks + 1) if ks + 1 < 18 else []
        if OPT.get("noreads"): groups = []
        if OPT.get("noxreads"): groups = groups[1:]
        wf = WF + 28 * (ks % 2); x = XF + 8 * (ks % 2)
        i = 0
        for nn in (T_QA, T_QB, T_KA, T_KB, T_VA, T_VB, T_MID):
            for tt in range(2):
                c = vr(acc(nn, tt), 4)
                cin = "0" if ks == 0 else c
                if OPT.get("nomfma") and 0 < ks < 17: pass
                elif nn in (T_VA, T_VB):
                    a(f"v_mfma_f32_16x16x32_bf16 {c}, {vr(x+4*tt,4)}, {vr(wf+4*nn,4)}, {cin}")
                else:
                    a(f"v_mfma_f32_16x16x32_bf16 {c}, {vr(wf+4*nn,4)}, {vr(x+4*tt,4)}, {cin}")
                if i < len(groups):
                    for y in groups[i]: a(y)
                i += 1
    stamp(a, 3)
    a("s_waitcnt vmcnt(0)")
    T = WF
    a(f"v_bfe_u32 v{T+16}, v1, 3, 1\ns_mov_b32 s{S_T0}, 0x3f803f80\nv_mul_lo_u32 v{T+16}, v{T+16}, s{S_T0}\nv_mov_b32 v{T+20}, 0x3f80")
    a(f"v_mov_b32 v{T+17}, v{T+16}\nv_mov_b32 v{T+18}, v{T+16}\nv_mov_b32 v{T+19}, v{T+16}")
    a(f"ds_write_b32 v{EKC}, v{T+20}")
    a(f"s_mov_b64 exec, 0xffff\nds_write_b128 v{EONE}, {vr(T+16,4)}\ns_mov_b64 exec, -1")
    a(f"v_add_u32 v{T+21}, {QIMG}, v{EKM}")
    for tt in range(2):
        t = T + 24 + 16 * tt
        for k, n in enumerate((T_KA, T_KB)):
            c = acc(n, tt)
            a(f"v_cvt_pk_bf16_f32 v{t+2*k}, v{c}, v{c+1}\nv_cvt_pk_bf16_f32 v{t+2*k+1}, v{c+2}, v{c+3}")
        a(f"ds_write_b128 v{EKM}, {vr(t,4)} offset:{256*tt}")
        for k, (n, ad) in enumerate(((T_VA, EVA), (T_VB, EVB))):
            c = acc(n, tt)
            a(f"v_cvt_pk_bf16_f32 v{t+4+2*k}, v{c}, v{c+1}\nv_cvt_pk_bf16_f32 v{t+5+2*k}, v{c+2}, v{c+3}")
            a(f"ds_write_b64 v{ad}, {vr(t+4+2*k,2)} offset:{VSUB*tt}")
        c = acc(T_MID, tt)
        for e in range(4): a(f"v_mul_f32 v{c+e}, v{ESC}, v{c+e}")
        a(f"v_cvt_pk_bf16_f32 v{t+12}, v{c}, v{c+1}\nv_cvt_pk_bf16_f32 v{t+13}, v{c+2}, v{c+3}")
        vo = [VSUB * tt + 16 * vpos_dim(14 + e) for e in range(4)]
        a(f"""
        s_mov_b32 exec_lo, 0
        s_mov_b32 exec_hi, 0xffff
        ds_write_b16 v{EMID}, v{t+12} offset:{vo[0]}
        ds_write_b16_d16_hi v{EMID}, v{t+12} offset:{vo[1]}
        ds_write_b16 v{EMID}, v{t+13} offset:{vo[2]}
        ds_write_b16_d16_hi v{EMID}, v{t+13} offset:{vo[3]}
        s_mov_b32 exec_hi, 0xffff0000
        v_mov_b32 v{t+12}, v{c}
        v_mov_b32 v{t+13}, v{c}
        s_mov_b32 exec_lo, -1
        ds_write_b32 v{EMID}, v{t+12} offset:{256*tt}
        ds_write_b32 v{EMID}, v{t+13} offset:{256*tt+HS}
        s_mov_b64 exec, -1
        """)
        for k, n in enumerate((T_QA, T_QB)):
            c = acc(n, tt)
            for e in range(4): a(f"v_mul_f32 v{c+e}, s{S_QS}, v{c+e}")
            a(f"v_cvt_pk_bf16_f32 v{t+8+2*k}, v{c}, v{c+1}\nv_cvt_pk_bf16_f32 v{t+9+2*k}, v{c+2}, v{c+3}")
        a(f"ds_write_b128 v{T+21}, {vr(t+8,4)} offset:{256*tt}")
    att_pre(a)
    a("s_waitcnt lgkmcnt(0)\ns_barrier")

SB = (8, 40); OA = 72; QM = 104; QR = 112; KM = 116; KR = 120; VF = 124
IDX, AKM, AKR, AV, VG = range(132, 137)
BKM, BKR, BV = 160, 161, 162
TMP = 140
P2_END = 163
LAST_BARS = tuple(int(x) for x in os.environ.get('LB', '2,3').split(',') if x)
ORDER = "E3 s3p lv1 E3 2b lkr E8 w0 s0 E4 s1 E4 m0 E4 s2 lv0 E3 m1 lkm E3"

def att_ops(t):
    par = t % 2
    cur, nxt = SB[par], SB[1 - par]
    pb = lambda x: ((x % 8) // 2) * PB
    return cur, {
     "2b": f"v_mfma_f32_32x32x4_2b_bf16 {vr(nxt,32)}, {vr(KR+2*(1-par),2)}, {vr(QR,2)}, 0",
     "m0": f"v_mfma_f32_32x32x16_bf16 {vr(nxt,16)}, {vr(KM,4)}, {vr(QM,4)}, {vr(nxt,16)}",
     "m1": f"v_mfma_f32_32x32x16_bf16 {vr(nxt+16,16)}, {vr(KM,4)}, {vr(QM+4,4)}, {vr(nxt+16,16)}",
     "s0": f"v_smfmac_f32_32x32x32_bf16 {vr(OA,16)}, {vr(VF,4)}, {vr(cur,8)}, v{IDX}",
     "s1": f"v_smfmac_f32_32x32x32_bf16 {vr(OA,16)}, {vr(VF+4,4)}, {vr(cur+8,8)}, v{IDX}",
     "s2": f"v_smfmac_f32_32x32x32_bf16 {vr(OA+16,16)}, {vr(VF,4)}, {vr(cur+16,8)}, v{IDX}",
     "s3": f"v_smfmac_f32_32x32x32_bf16 {vr(OA+16,16)}, {vr(VF+4,4)}, {vr(cur+24,8)}, v{IDX}",
     "s3p": f"v_smfmac_f32_32x32x32_bf16 {vr(OA+16,16)}, {vr(VF+4,4)}, {vr(nxt+24,8)}, v{IDX}",
     "lkr": f"ds_read_b128 {vr(KR,4)}, v{AKR} offset:{pb(t+2)}" if par == 0 else None,
     "lkm": f"ds_read_b128 {vr(KM,4)}, v{AKM} offset:{pb(t+2)+1024*par}",
     "lv0": f"ds_read_b128 {vr(VF,4)}, v{AV} offset:{pb(t+1)+2*VSUB*(1-par)}",
     "lv1": f"ds_read_b128 {vr(VF+4,4)}, v{AV} offset:{pb(t)+2*VSUB*par+VSUB}",
    }

def att_tile(a, t, hooks=None, skip=()):
    cur, ops = att_ops(t)
    e = 0
    for tok in ORDER.split():
        if hooks and tok in hooks: hooks[tok]()
        if tok[0] == "E":
            for _ in range(int(tok[1:])):
                a(f"v_exp_f32 v{cur+e}, v{cur+e}"); e += 1
        elif tok[0] == "w": a(f"s_waitcnt lgkmcnt({tok[1:]})")
        elif ops[tok] and tok not in skip: a(ops[tok])

def rem_off(a, dst, base):
    a(f"""
    s_lshr_b32 s{S_T1}, s{S_POS}, 3
    s_lshl_b32 s{S_T1}, s{S_T1}, 10
    s_and_b32 s{S_T2}, s{S_POS}, 3
    s_lshl_b32 s{S_T2}, s{S_T2}, 8
    s_add_u32 s{S_T1}, s{S_T1}, s{S_T2}
    s_bfe_u32 s{S_T2}, s{S_POS}, 0x10002
    s_lshl_b32 s{S_T2}, s{S_T2}, 3
    s_add_u32 s{S_T1}, s{S_T1}, s{S_T2}
    s_add_u32 s{S_T1}, s{S_T1}, 16384
    s_add_u32 s{dst}, s{base}, s{S_T1}
    """)

def att_addr(a):
    a(f"""
    s_lshr_b32 s{S_T0}, s{S_W}, 2
    s_mul_i32 s{S_T0}, s{S_T0}, {HS}
    v_lshlrev_b32 v4, 4, v1
    v_add_u32 v{BKM}, s{S_T0}, v4
    v_and_b32 v7, 31, v1
    v_lshlrev_b32 v4, 4, v7
    s_add_u32 s{S_T1}, s{S_T0}, {KROFF}
    v_add_u32 v{BKR}, s{S_T1}, v4
    v_min_u32 v7, 19, v7
    v_lshrrev_b32 v4, 2, v7
    v_lshlrev_b32 v4, 3, v4
    s_mov_b32 s{S_T2}, 0x1004000c
    v_lshrrev_b32 v6, v4, s{S_T2}
    v_and_b32 v6, 0xff, v6
    v_and_b32 v4, 3, v7
    v_add_u32 v6, v6, v4
    v_add_u32 v4, 1, v4
    v_and_b32 v4, 3, v4
    v_or_b32 v4, 8, v4
    v_cmp_gt_u32 vcc, 16, v7
    v_lshrrev_b32 v5, 5, v1
    v_mul_u32_u24 v5, 20, v5
    v_cndmask_b32 v4, v4, v6, vcc
    v_add_u32 v4, v4, v5
    s_add_u32 s{S_T1}, s{S_T0}, {VOFF}
    v_lshlrev_b32 v4, 4, v4
    v_add_u32 v{BV}, s{S_T1}, v4
    s_and_b32 s{S_NSL}, s{S_W}, 3
    s_mul_i32 s{S_NSL}, s{S_NSL}, {PB}
    s_add_u32 s{S_NSL}, s{S_NSL}, {QIMG}
    """)

def att_pre(a):
    a(f"""
    v_lshrrev_b32 v5, 5, v1
    v_add_u32 v6, s{S_NSL}, v{BKM}
    v_lshl_add_u32 v7, v5, 3, v{BKR}
    v_add_u32 v7, s{S_NSL}, v7
    v_mov_b32 v{IDX}, 0xdddddddd
    v_mov_b32 v{AKM}, v{BKM}
    v_mov_b32 v{AKR}, v{BKR}
    v_mov_b32 v{AV}, v{BV}
    """)

def att_setup(a):
    a(f"""
    ds_read_b128 {vr(QM,4)}, v6
    ds_read_b128 {vr(QM+4,4)}, v6 offset:1024
    ds_read_b64 {vr(QR,2)}, v7
    ds_read_b128 {vr(KR,4)}, v{BKR}
    ds_read_b128 {vr(KM,4)}, v{BKM}
    """)
    a(f"""
    s_and_b32 s{S_T0}, s{S_W}, 3
    s_lshl_b32 s{S_T1}, s{S_TB}, 2
    s_add_u32 s{S_T0}, s{S_T0}, s{S_T1}
    s_lshl_b32 s{S_T0}, s{S_T0}, 3
    s_add_u32 s{S_T0}, s{S_T0}, s{S_B}
    s_mul_i32 s{S_T0}, s{S_T0}, {OST}
    s_add_u32 s{S_T0}, s{S_T0}, {WS_O}
    s_lshr_b32 s{S_T3}, s{S_W}, 2
    s_lshl_b32 s{S_T1}, s{S_POS}, 1
    s_add_u32 s{S_T1}, s{S_T1}, s{S_T3}
    s_lshl_b32 s{S_T1}, s{S_T1}, 9
    s_add_u32 s{S_X0}, s{S_T0}, s{S_T1}
    s_add_u32 s{S_X1}, s{S_X0}, {4*OST}
    v_bfe_u32 v2, v1, 4, 1
    v_mul_u32_u24 v2, {2*OST}, v2
    v_lshrrev_b32 v3, 5, v1
    v_lshl_add_u32 v2, v3, 8, v2
    v_and_b32 v4, 15, v1
    v_lshl_add_u32 v2, v4, 4, v2
    s_lshl_b32 s{S_T3}, s{S_T3}, 2
    s_add_u32 s{S_T0}, s{S_T0}, s{S_T3}
    """)
    rem_off(a, S_WOFF, S_T0)
    a(f"""
    v_lshrrev_b32 v3, 4, v1
    v_mul_u32_u24 v3, {2*OST}, v3
    v_lshl_add_u32 v3, v4, 4, v3
    s_lshl_b32 s{S_T0}, s{S_B}, 31
    s_xor_b32 s{S_T0}, s{S_T0}, {hex(f32(-math.log2(math.e)))}
    """)
    s0, s1 = SB
    a(f"s_waitcnt lgkmcnt(2)\nv_mul_f32 v{VG}, s{S_T0}, v{QR+1}\nv_mov_b32 v{QR+1}, 0")
    a(f"ds_read_b128 {vr(VF,4)}, v{AV}\ns_waitcnt lgkmcnt(1)")
    qk = lambda: (a(f"v_mfma_f32_32x32x4_2b_bf16 {vr(s0,32)}, {vr(KR,2)}, {vr(QR,2)}, 0"))
    def mains():
        a(f"v_mfma_f32_32x32x16_bf16 {vr(s0,16)}, {vr(KM,4)}, {vr(QM,4)}, {vr(s0,16)}")
        a(f"v_mfma_f32_32x32x16_bf16 {vr(s0+16,16)}, {vr(KM,4)}, {vr(QM+4,4)}, {vr(s0+16,16)}")
    qk()
    for i in range(20): a(f"v_mov_b32 v{OA+i}, 0")
    mains()
    for i in range(20, 32): a(f"v_mov_b32 v{OA+i}, 0")
    T = TMP
    for blk in range(2):
        b = s0 + 16 * blk; m = T + blk
        a(f"v_max3_f32 v{m}, v{b}, v{b+1}, v{b+2}")
        for i in range(3, 15, 2): a(f"v_max3_f32 v{m}, v{m}, v{b+i}, v{b+i+1}")
        a(f"v_max_f32 v{m}, v{m}, v{b+15}")
    a(f"""
    s_nop 1
    v_permlane32_swap_b32 v{T}, v{T+1}
    v_max_f32 v{T}, v{T}, v{T+1}
    v_cvt_pk_bf16_f32 v{QR+1}, -v{T}, 0
    s_nop 1
    """)
    qk()
    for i in range(8): a(f"v_mov_b32 v{s1+24+i}, 0")
    for i in range(4): a(f"v_mov_b32 v{VF+4+i}, 0")
    a(f"""
    s_lshl_b32 s{S_KVB}, s{S_GRP}, 3
    s_mul_i32 s{S_KVB}, s{S_KVB}, {SLOT}
    s_mov_b64 {sr(S_OK,2)}, -1
    s_mov_b32 s{S_CH}, 0
    s_mov_b32 s{S_NSL}, 0
    s_nop 0
    """)
    mains()
    a(f"ds_read_b128 {vr(KM,4)}, v{AKM} offset:1024\nv_exp_f32 v{VG}, v{VG}\ns_nop 0\nv_add_f32 v{VG}, 1.0, v{VG}\nv_rcp_f32 v{VG}, v{VG}")
    a.nop(6)

def att_chunk(a, last=False):
    def sync():
        a(f"""
        s_add_u32 s{S_NSL}, s{S_NSL}, {SLOT}
        s_cmp_eq_u32 s{S_NSL}, {4*SLOT}
        s_cselect_b32 s{S_NSL}, 0, s{S_NSL}
        s_barrier
        v_add_u32 v{AKR}, s{S_NSL}, v{BKR}
        v_add_u32 v{AKM}, s{S_NSL}, v{BKM}
        """)
    for t in range(8):
        hooks = {}; skip = ()
        if not last:
            if t == 6: hooks["lkr"] = sync
            if t == 7: hooks["lv0"] = lambda: a(f"v_add_u32 v{AV}, s{S_NSL}, v{BV}")
        else:
            if t == 1: hooks["2b"] = lambda: a("s_barrier")
            if t % 2 == 0 and t // 2 in LAST_BARS: hooks["2b"] = lambda: a("s_barrier")
            if t == 6: skip = ("lkr", "lkm")
            if t == 7: skip = ("2b", "m0", "m1", "lkm", "lv0"); hooks["s0"] = lambda: a("s_barrier")
        att_tile(a, t, hooks, skip)

def att_finish(a):
    _, ops = att_ops(7)
    a(f"s_nop 1\n{ops['s3']}")
    T = TMP
    a.label("L_att_norm")
    late = OPT.get("prel", "early") == "late"
    if late: a.nop(11)
    else: p3_preload(a, 0, 3)
    m = T + 2
    a(f"""
    v_mov_b32 v{T}, v{OA+10}
    v_mov_b32 v{T+1}, v{OA+26}
    s_mov_b32 s{S_T0}, {hex(f32(2.0**-60))}
    s_mov_b32 s{S_T1}, {hex(f32(2.0**60))}
    v_permlane32_swap_b32 v{T}, v{T+1}
    v_add_f32 v{m}, |v{OA}|, |v{OA+16}|
    v_cmp_nle_f32 s[4:5], s{S_T0}, v{T}
    v_cmp_nge_f32 s[6:7], s{S_T1}, v{T}
    v_rcp_f32 v{T}, v{T}
    """)
    for i in range(1, 10): a(f"v_add_f32 v{m}, v{m}, |v{OA+i}|\nv_add_f32 v{m}, v{m}, |v{OA+16+i}|")
    a(f"""
    s_mov_b32 s{S_T0}, 0x7f000000
    v_mul_f32 v{T}, v{T}, v{VG}
    v_cmp_nge_f32 vcc, s{S_T0}, v{m}
    v_mov_b32 v{T+1}, v{T}
    s_or_b64 s[4:5], s[4:5], s[6:7]
    s_or_b64 vcc, vcc, s[4:5]
    s_and_b64 vcc, vcc, {sr(S_OK,2)}
    s_cbranch_vccnz L_att_slow
    v_permlane32_swap_b32 v{T}, v{T+1}
    """)
    for blk in range(2):
        o = OA + 16 * blk; f = T + blk; d = T + 4 + 4 * blk
        for i in range(10): a(f"v_mul_f32 v{o+i}, v{f}, v{o+i}")
        for i in range(4): a(f"v_cvt_pk_bf16_f32 v{d+i}, v{o+2*i}, v{o+2*i+1}")
        for i in range(4): a(f"v_min_u32 v{d+i}, -2, v{d+i}")
        a(f"buffer_store_dwordx4 {vr(d,4)}, v2, {sr(SRD_WS,4)}, s{S_X0+blk} offen sc1")
        a(f"v_cvt_pk_bf16_f32 v{T+12+blk}, v{o+8}, v{o+9}")
        if late and blk == 0: p3_preload(a, 0, 1)
    a(f"s_nop 1\nv_permlane32_swap_b32 v{T+12}, v{T+13}\nv_min_u32 v{T+12}, -2, v{T+12}")
    a(f"buffer_store_dword v{T+12}, v3, {sr(SRD_WS,4)}, s{S_WOFF} offen sc1")

def att_slow(a):
    s0 = SB[0]; T = TMP
    M0, M1, GK = T + 14, T + 15, T + 16
    a.label("L_att_slow")
    a(f"""
    s_mov_b64 {sr(S_OK,2)}, 0
    v_mov_b32 v{QR+1}, 0
    v_mov_b32 v{M0}, 0xff800000
    v_mov_b32 v{M1}, 0xff800000
    s_waitcnt vmcnt(0) lgkmcnt(0)
    """)
    for i in range(32): a(f"v_mov_b32 v{OA+i}, 0")
    for ps in range(2):
        a(f"s_mov_b32 s{S_CNT}, 0")
        a.label(f"L_slow_{ps}")
        a(f"""
        s_lshr_b32 s{S_T0}, s{S_CNT}, 1
        s_bfe_u32 s{S_T1}, s{S_CNT}, 0x30003
        s_lshl_b32 s{S_T1}, s{S_T1}, 2
        s_add_u32 s{S_T0}, s{S_T0}, s{S_T1}
        s_mul_i32 s{S_T0}, s{S_T0}, {PB}
        s_add_u32 s{S_T0}, s{S_T0}, s{S_KVB}
        s_and_b32 s{S_T1}, s{S_CNT}, 1
        s_lshl_b32 s{S_T2}, s{S_T1}, 10
        s_add_u32 s{S_T2}, s{S_T2}, s{S_T0}
        buffer_load_dwordx4 {vr(KM,4)}, v{BKM}, {sr(SRD_WS,4)}, s{S_T2} offen sc1
        s_lshl_b32 s{S_T2}, s{S_T1}, 3
        s_add_u32 s{S_T2}, s{S_T2}, s{S_T0}
        buffer_load_dwordx2 {vr(KR,2)}, v{BKR}, {sr(SRD_WS,4)}, s{S_T2} offen sc1
        s_mul_i32 s{S_T2}, s{S_T1}, {2*VSUB}
        s_add_u32 s{S_T2}, s{S_T2}, s{S_T0}
        buffer_load_dwordx4 {vr(VF,4)}, v{BV}, {sr(SRD_WS,4)}, s{S_T2} offen sc1
        buffer_load_dwordx4 {vr(VF+4,4)}, v{BV}, {sr(SRD_WS,4)}, s{S_T2} offen offset:{VSUB} sc1
        s_waitcnt vmcnt(0)
        v_mfma_f32_32x32x4_2b_bf16 {vr(s0,32)}, {vr(KR,2)}, {vr(QR,2)}, 0
        """)
        a.nop(20)
        a(f"v_mfma_f32_32x32x16_bf16 {vr(s0,16)}, {vr(KM,4)}, {vr(QM,4)}, {vr(s0,16)}")
        a(f"v_mfma_f32_32x32x16_bf16 {vr(s0+16,16)}, {vr(KM,4)}, {vr(QM+4,4)}, {vr(s0+16,16)}")
        a.nop(14)
        if ps == 0:
            for blk, m in enumerate((M0, M1)):
                for i in range(0, 16, 2): a(f"v_max3_f32 v{m}, v{m}, v{s0+16*blk+i}, v{s0+16*blk+i+1}")
        else:
            for i in range(32): a(f"v_sub_f32 v{s0+i}, v{s0+i}, v{M0 if i < 16 else M1}")
            for i in range(32): a(f"v_exp_f32 v{s0+i}, v{s0+i}")
            a.nop(2)
            for i in range(4):
                a(f"v_smfmac_f32_32x32x32_bf16 {vr(OA+16*(i//2),16)}, {vr(VF+4*(i%2),4)}, {vr(s0+8*i,8)}, v{IDX}")
            a.nop(14)
        a(f"s_add_u32 s{S_CNT}, s{S_CNT}, 1\ns_cmp_lt_u32 s{S_CNT}, 64\ns_cbranch_scc1 L_slow_{ps}")
        if ps == 0:
            for m in (M0, M1):
                a(f"v_mov_b32 v{GK}, v{m}\ns_nop 1\nv_permlane32_swap_b32 v{GK}, v{m}\nv_max_f32 v{m}, v{m}, v{GK}")
    a("s_branch L_att_norm")

OD = int(os.environ.get('OD', 6)); WD = 5 if OD <= 6 else 4
WBUF = (8, 28, 48, 96, 116) if OD <= 6 else (8, 28, 48, 116)
OF = 72
OACC = 136
AM, AM8, AM15, AR, AR3 = 163, 164, 165, 166, 167
OL, RED, OUT4, OUT2 = 4, 5, 157, 158
CHK = 156
P3_END = 168
S_TT, S_TOK, S_PB = 38, 40, 64
S_OBS = (65, 67, 70, 71, 3)

def p3_addr(a):
    ob = S_OBS
    a(f"""
    s_and_b32 s{S_TT}, s{S_W}, 3
    s_lshr_b32 s{S_PB}, s{S_W}, 2
    s_and_b32 s{S_T0}, s2, 7
    s_lshl_b32 s{S_T0}, s{S_T0}, 2
    s_bfe_u32 s{S_T1}, s2, 0x20003
    s_add_u32 s{S_T0}, s{S_T0}, s{S_T1}
    s_lshl_b32 s{S_T0}, s{S_T0}, 2
    s_add_u32 s{S_TOK}, s{S_T0}, s{S_TT}
    s_mul_i32 s{S_T0}, s{S_PB}, {576*144}
    v_lshrrev_b32 v{ACC}, 4, v1
    v_bfe_u32 v{ACC+1}, v1, 2, 2
    v_and_b32 v4, 3, v1
    v_lshlrev_b32 v4, 3, v4
    v_and_b32 v5, 1, v{ACC}
    v_lshl_add_u32 v5, v5, 2, v{ACC+1}
    v_mul_u32_u24 v5, 288, v5
    v_add_u32 v5, v5, v4
    v_lshrrev_b32 v6, 1, v{ACC}
    v_mul_u32_u24 v7, 2592, v6
    v_add3_u32 v{AM}, v5, v7, s{S_T0}
    v_add_u32 v{AM8}, {8*5184}, v{AM}
    v_add_u32 v{AM15}, {15*5184}, v{AM}
    v_and_b32 v6, s{S_PB}, v6
    v_cmp_eq_u32 vcc, 1, v6
    v_mul_u32_u24 v7, 5184, v{ACC}
    v_lshrrev_b32 v6, 1, v{ACC+1}
    v_cndmask_b32 v{AM15}, v{AM15}, v5, vcc
    v_and_b32 v5, 1, v{ACC+1}
    v_add_u32 v5, 16, v5
    v_mul_u32_u24 v5, 144, v5
    v_add_u32 v5, v5, v4
    v_mul_u32_u24 v4, 2592, v6
    v_add3_u32 v7, v7, v4, v5
    v_add_u32 v{AR}, s{S_T0}, v7
    v_add_u32 v{AR3}, {12*5184}, v{AR}
    v_lshrrev_b32 v4, 3, v1
    v_lshl_add_u32 v4, s{S_PB}, 3, v4
    v_cmp_eq_u32 vcc, 15, v4
    v_add_u32 v5, {63*2592 - 16*144}, v5
    s_nop 0
    v_cndmask_b32 v{AR3}, v{AR3}, v5, vcc
    s_lshr_b32 s{S_T1}, s2, 5
    s_mul_i32 s{S_T1}, s{S_T1}, 144
    s_mul_i32 s{S_T0}, s{S_TOK}, {16*1152}
    s_add_u32 s{S_T0}, s{S_T0}, s{S_T1}
    v_and_b32 v6, 15, v1
    v_mul_u32_u24 v6, 1152, v6
    v_add_u32 v6, s{S_T0}, v6
    v_lshl_add_u32 v{OUT2}, v{ACC}, 3, v6
    v_lshrrev_b32 v{ACC+1}, 5, v1
    v_lshl_add_u32 v6, v{ACC+1}, 4, v6
    v_and_b32 v{ACC}, 1, v{ACC}
    v_lshl_add_u32 v{OUT4}, v{ACC}, 5, v6
    s_lshl_b32 s{S_T0}, s{S_TOK}, 1
    s_add_u32 s{S_T0}, s{S_T0}, s{S_PB}
    s_mul_i32 s{S_T0}, s{S_T0}, {OST}
    s_add_u32 s{ob[0]}, s{S_T0}, {WS_O}
    s_add_u32 s{ob[1]}, s{ob[0]}, 4096
    s_add_u32 s{ob[2]}, s{ob[0]}, 8192
    s_add_u32 s{ob[3]}, s{ob[0]}, 12288
    s_add_u32 s{ob[4]}, s{ob[0]}, 16384
    """)

def p3_wreads(k):
    wb = WBUF[k % WD]; L = []
    for t in range(5):
        g = []
        for i in range(2):
            if k < 8: ad, off = AM, 5184 * k + 144 * i
            elif k < 15: ad, off = AM8, 5184 * (k - 8) + 144 * i
            elif k == 15: ad, off = AM15, 144 * i
            elif (k, i) == (17, 1): ad, off = AR3, 0
            else: ad, off = AR, 5184 * (8 * (k - 16) + 4 * i)
            g.append(f"ds_read_b64_tr_b16 {vr(wb+4*t+2*i,2)}, v{ad} offset:{off+32*t}")
        L.append(g)
    return L

def p3_preload(a, k0, k1):
    for k in range(k0, k1):
        for g in p3_wreads(k):
            for x in g: a(x)

def phase3(a):
    stamp(a, 5)
    def oload(k):
        a(f"buffer_load_dwordx4 {vr(OF+4*(k%OD),4)}, v{OL}, {sr(SRD_WS,4)}, s{S_OBS[k//4]} offen offset:{1024*(k%4)} sc1")
    def ocheck(k, target):
        d = OF + 4 * (k % OD)
        a(f"""
        v_max3_u32 v{CHK}, v{d}, v{d+1}, v{d+2}
        v_max_u32 v{CHK}, v{CHK}, v{d+3}
        v_cmp_eq_u32 vcc, -1, v{CHK}
        s_and_b64 vcc, vcc, {sr(S_OK,2)}
        s_cbranch_scc1 {target}
        """)
    a(f"v_lshlrev_b32 v{OL}, 4, v1\ns_mul_i32 s{S_T0}, s{S_TT}, 5120\nv_add_u32 v{RED}, s{S_T0}, v{OL}")
    p3_preload(a, 1 if OPT.get('prel') == 'late' else 3, WD)
    a(f"s_mov_b64 {sr(S_OK,2)}, -1\ns_mov_b32 s{S_CNT}, {SPIN_MAX}\ns_waitcnt lgkmcnt(15)\ns_barrier")
    stamp(a, 9)
    n0 = int(OPT.get("n0", 3))
    upto = lambda k: min(18, n0 + 2 * (k + 1), k + 1 + OD) if k >= 0 else n0
    def check_ops(k):
        d = OF + 4 * (k % OD)
        return [f"v_max3_u32 v{CHK}, v{d}, v{d+1}, v{d+2}", f"v_max_u32 v{CHK}, v{CHK}, v{d+3}", f"v_cmp_eq_u32 vcc, -1, v{CHK}"]
    for k in range(n0): oload(k)
    a(f"s_waitcnt vmcnt({n0 - 1})")
    for x in check_ops(0): a(x)
    for k in range(18):
        groups = p3_wreads(k + WD) if k + WD < 18 else []
        lg = min(15, 10 * (min(k + WD, 18) - k - 1))
        if k + WD == 7: a("s_barrier")
        a(f"s_and_b64 vcc, vcc, {sr(S_OK,2)}\ns_cbranch_scc1 L_retry_{k}")
        a.label(f"L_have_{k}")
        a(f"s_waitcnt lgkmcnt({lg})")
        if k == 17: a("s_barrier")
        wb = WBUF[k % WD]
        early = [j for j in range(upto(k - 1), upto(k)) if j < k + OD]
        for j in early: oload(j)
        nxt = check_ops(k + 1) if k < 17 else []
        for t in range(5):
            c = vr(OACC + 4 * t, 4)
            a(f"v_mfma_f32_16x16x32_bf16 {c}, {vr(wb+4*t,4)}, {vr(OF+4*(k%OD),4)}, {'0' if k == 0 else c}")
            if t == 4 and upto(k) == k + 1 + OD: oload(k + OD)
            if t < len(groups):
                for y in groups[t]: a(y)
            if nxt and t == 2: a(f"s_waitcnt vmcnt({upto(k-1) + len(early) - k - 2})")
            if nxt and t >= 2: a(nxt[t - 2])
    def retries():
        for k in range(18):
            a.label(f"L_retry_{k}")
            a(f"s_waitcnt vmcnt(0)\ns_sleep {OPT.get('slp3', 2)}")
            oload(k)
            a(f"s_sub_u32 s{S_CNT}, s{S_CNT}, 1\ns_cselect_b64 {sr(S_OK,2)}, 0, {sr(S_OK,2)}\ns_waitcnt vmcnt(0)")
            ocheck(k, f"L_retry_{k}")
            for j in range(k + 1, upto(k - 1)): oload(j)
            a(f"s_branch L_have_{k}")
    a.p3_retries = retries
    stamp(a, 11)
    if PROF: a(f"s_sub_u32 s{72+20}, {SPIN_MAX}, s{S_CNT}")
    T = OF
    a(f"s_cmp_eq_u32 s{S_PB}, 0\ns_cbranch_scc0 L_p3_b")
    def fin(tiles, give, off):
        a.nop(6)
        for t in give: a(f"ds_write_b128 v{RED}, {vr(OACC+4*t,4)} offset:{1024*t}")
        a("s_waitcnt lgkmcnt(0)\ns_barrier")
        for k, t in enumerate(tiles): a(f"ds_read_b128 {vr(T+4*k,4)}, v{RED} offset:{1024*t}")
        for k, t in enumerate(tiles):
            a(f"s_waitcnt lgkmcnt({len(tiles)-1-k})")
            for e in range(4): a(f"v_add_f32 v{OACC+4*t+e}, v{OACC+4*t+e}, v{T+4*k+e}")
        d = T + 12
        t0, t1 = tiles[0], tiles[1]
        a(f"""
        v_cvt_pk_bf16_f32 v{d}, v{OACC+4*t0}, v{OACC+4*t0+1}
        v_cvt_pk_bf16_f32 v{d+1}, v{OACC+4*t0+2}, v{OACC+4*t0+3}
        v_cvt_pk_bf16_f32 v{d+2}, v{OACC+4*t1}, v{OACC+4*t1+1}
        v_cvt_pk_bf16_f32 v{d+3}, v{OACC+4*t1+2}, v{OACC+4*t1+3}
        s_nop 1
        v_permlane16_swap_b32 v{d}, v{d+2}
        v_permlane16_swap_b32 v{d+1}, v{d+3}
        buffer_store_dwordx4 {vr(d,4)}, v{OUT4}, {sr(SRD_O,4)}, 0 offen offset:{off}{OPT.get('omod', '')}
        """)
        if len(tiles) == 3:
            t2 = tiles[2]
            a(f"""
            v_cvt_pk_bf16_f32 v{d+4}, v{OACC+4*t2}, v{OACC+4*t2+1}
            v_cvt_pk_bf16_f32 v{d+5}, v{OACC+4*t2+2}, v{OACC+4*t2+3}
            s_mov_b32 exec_hi, 0
            buffer_store_dwordx2 {vr(d+4,2)}, v{OUT2}, {sr(SRD_O,4)}, 0 offen offset:128{OPT.get('omod', '')}
            """)
        if OPT.get("hold"):
            lab = a.uid("L_hold")
            a("s_waitcnt vmcnt(0)"); a.label(lab)
            a(f"s_sleep 1\ns_memrealtime s[98:99]\ns_waitcnt lgkmcnt(0)\ns_sub_u32 s99, s72, s98\ns_cmp_gt_i32 s99, 0\ns_cbranch_scc1 {lab}")
        if PROF: a("s_waitcnt vmcnt(0)")
        stamp(a, 12); stamp(a, 17, True); stamp_out(a)
        a("s_endpgm")
    fin((0, 1, 4), (2, 3), 0)
    a.label("L_p3_b")
    fin((2, 3), (0, 1, 4), 64)

WPIECE = 864
def loader(a):
    AD0, AD1, AX0, AX1, LA, DW, FA, FL, Z = range(8, 17)
    BUF = 24
    DWS = (DW, 17, 18)
    sWS, sXS, sWO, sXO = (64, 65, 66), (33, 34, 35), 36, 37
    sM, sS, sN, sO = 38, 40, 41, 36
    a("s_setprio 3")
    def wsrc(dst, hi):
        a(f"""
        v_lshlrev_b32 v4, 1, v2
        v_or_b32 v4, {8*hi}, v4
        v_xor_b32 v4, v4, v3
        v_min_u32 v4, 14, v4
        v_mul_u32_u24 v5, 52, v4
        v_lshrrev_b32 v5, 8, v5
        v_lshlrev_b32 v4, 4, v4
        v_mul_u32_u24 v6, 1072, v5
        v_add_u32 v4, v4, v6
        v_and_b32 v5, 2, v5
        v_lshlrev_b32 v5, 2, v5
        v_sub_u32 v4, v4, v5
        v_mul_u32_u24 v5, 3456, v2
        v_add_u32 v{dst}, v4, v5
        """)
    wsrc(AD0, 0); wsrc(AD1, 1)
    a(f"""
    v_lshrrev_b32 v4, 3, v1
    v_mul_u32_u24 v4, 1152, v4
    v_and_b32 v5, 7, v1
    v_xor_b32 v5, v5, v2
    v_lshl_add_u32 v{AX0}, v5, 4, v4
    v_xor_b32 v5, 4, v5
    v_lshl_add_u32 v4, v5, 4, v4
    v_add_u32 v{AX1}, {8*1152}, v4
    v_lshlrev_b32 v{LA}, 4, v1
    s_mul_i32 s{sXO}, s{S_TB}, {256*1152}
    s_mov_b32 m0, {GATE_LDS}
    s_waitcnt lgkmcnt(0)
    s_cmp_eq_u32 s{S_B}, 0
    s_cselect_b32 s{S_PTR+2}, s{S_PTR+2}, s{S_PTR+8}
    s_cselect_b32 s{S_PTR+3}, s{S_PTR+3}, s{S_PTR+9}
    """)
    srd(a, SRD_W, S_PTR + 2, 576 * 3456)
    srd(a, SRD_X, S_PTR, 2048 * 1152)
    srd(a, SRD_G, S_PTR + 12, 1152)
    a(f"buffer_load_dwordx4 v{LA}, {sr(SRD_G,4)}, 0 offen lds")
    a(f"buffer_load_dwordx4 v{LA}, {sr(SRD_G,4)}, 0 offen offset:1024 lds")
    for i in range(3): a(f"s_mov_b32 s{sWS[i]}, {WST[i]}\ns_mov_b32 s{sXS[i]}, {XST[i]}")
    srd(a, SRD_WS, S_DBG + 2, WS_END)
    srd(a, SRD_O, S_DBG, 256)
    a(f"v_mov_b32 v{Z}, 0\nv_lshlrev_b32 v{FA}, 2, v1\ns_mov_b32 s{sN}, 0")
    a(f"s_cmp_eq_u32 s2, 0\ns_cselect_b32 s{S_T3}, 2, 15")
    DW_ = int(OPT.get("dw", 4))
    npc = (0 if OPT.get("now") else 2) + (0 if OPT.get("nox") else 4)
    def part(w0, w1):
        for w in range(w0, w1):
            a("s_waitcnt vmcnt(57)")
            for h in range(0 if OPT.get("now") else 2):
                a(f"""
                s_add_u32 m0, s{sWS[0]}, {h*8192 + w*1024}
                s_add_u32 s{S_T0}, s{sWO}, {(32*h + 4*w)*3456}
                buffer_load_dwordx4 v{AD0 + ((w >> 1) & 1)}, {sr(SRD_W,4)}, s{S_T0} offen lds
                """)
            for u in range(0 if OPT.get("nox") else 4):
                a(f"""
                s_add_u32 m0, s{sXS[0]}, {w*4096 + u*1024}
                s_add_u32 s{S_T0}, s{sXO}, {(32*w + 16*(u >> 1))*1152}
                buffer_load_dwordx4 v{AX0 + (u & 1)}, {sr(SRD_X,4)}, s{S_T0} offen lds
                """)
    a.label("L_ld_pair")
    part(0, DW_)
    a(f"s_cmp_eq_u32 s{sN}, 0\ns_cbranch_scc1 L_ld_first\ns_waitcnt vmcnt({npc*DW_})\ns_barrier")
    a(f"s_cmp_eq_u32 s{sN}, s{S_T3}\ns_cbranch_scc1 L_ld_ready")
    a.label("L_ld_second")
    part(DW_, 8)
    for r in (sWS, sXS):
        a(f"s_mov_b32 s{S_T0}, s{r[0]}\ns_mov_b32 s{r[0]}, s{r[1]}\ns_mov_b32 s{r[1]}, s{r[2]}\ns_mov_b32 s{r[2]}, s{S_T0}")
    a(f"""
    s_add_u32 s{sWO}, s{sWO}, {64*3456}
    s_add_u32 s{sXO}, s{sXO}, 128
    s_add_u32 s{sN}, s{sN}, 1
    s_cmp_lt_u32 s{sN}, 9
    s_cbranch_scc1 L_ld_pair
    s_waitcnt vmcnt(0)
    s_barrier
    """)
    rdy = f"buffer_load_dword v{FL}, v{Z}, {sr(SRD_O,4)}, 0 offen sc1"
    a(f"""
    s_mov_b64 exec, 1
    {rdy}
    s_lshl_b32 s{S_KVB}, s{S_GRP}, 3
    s_add_u32 s{sO}, s{S_KVB}, s{S_TB}
    s_mul_i32 s{sO}, s{sO}, {SLOT}
    s_mul_i32 s{S_KVB}, s{S_KVB}, {SLOT}
    s_lshl_b32 s{S_X1}, s{S_GRP}, 7
    s_add_u32 s{S_X1}, s{S_X1}, {WS_F1}
    s_lshl_b32 s{S_X0}, s{S_TB}, 2
    s_add_u32 s{S_X0}, s{S_X0}, s{S_X1}
    """)
    spin(a, "rdy", rdy, FL)
    a(f"""
    s_mov_b64 exec, -1
    v_mul_u32_u24 v2, 57, v1
    v_lshrrev_b32 v2, 9, v2
    v_mul_u32_u24 v2, {1152 - 144}, v2
    v_lshl_add_u32 v2, v1, 4, v2
    s_lshr_b32 s{S_C0}, s2, 5
    s_mul_i32 s{S_C0}, s{S_C0}, 144
    v_add_u32 v{DW}, s{S_C0}, v2
    v_add_u32 v{DWS[1]}, {6*1152 - WPIECE}, v{DW}
    v_add_u32 v{DWS[2]}, {2*(6*1152 - WPIECE)}, v{DW}
    s_barrier
    """)
    def flag(soff):
        a(f"v_mov_b32 v{FL}, 1\ns_mov_b64 exec, 1\nbuffer_store_dword v{FL}, v{Z}, {sr(SRD_WS,4)}, s{soff} offen sc1\ns_mov_b64 exec, -1")
    def publish():
        rd = lambda i: a(f"ds_read_b128 {vr(BUF+4*(i%24),4)}, v{LA} offset:{1024*i}")
        for i in range(12): rd(i)
        for i in range(40):
            if i + 12 < 40: rd(i + 12)
            a(f"s_waitcnt lgkmcnt({min(12, 39 - i)})")
            a(f"buffer_store_dwordx4 {vr(BUF+4*(i%24),4)}, v{LA}, {sr(SRD_WS,4)}, s{sO} offen offset:{1024*(i%4)} sc1")
            if i % 4 == 3: a(f"s_add_u32 s{sO}, s{sO}, 4096")
        stamp(a, 13)
        a("s_waitcnt vmcnt(0)")
        flag(S_X0); stamp(a, 5)
    def kv_setup(c):
        a(f"""
        s_cmp_gt_u32 s{S_TB}, {(c - 1) % 8}
        s_cselect_b32 s{S_T0}, {(c - 1) % 8}, {c % 8}
        s_mul_i32 s{S_T0}, s{S_T0}, {SLOT}
        s_add_u32 s{sS}, s{S_T0}, s{S_KVB}
        s_mov_b32 s{sM}, {(c % 4) * SLOT}
        """)
    def kv_pieces(n):
        for g in range(n // 4):
            if g % 2 == 0: a("s_waitcnt vmcnt(55)")
            a(f"s_add_u32 m0, s{sM}, {4096*g}\ns_add_u32 s{S_T0}, s{sS}, {4096*g}")
            for i in range(4): a(f"buffer_load_dwordx4 v{LA}, {sr(SRD_WS,4)}, s{S_T0} offen offset:{1024*i} sc1 lds")
    ld1 = f"buffer_load_dword v{FL}, v{FA}, {sr(SRD_WS,4)}, s{S_X1} offen sc1"
    def need(tag, c):
        a(f"s_cmp_gt_u32 s{S_TB}, {c-1}\ns_cselect_b64 exec, {1 << (c-1)}, {1 << c}\n{ld1}")
        spin(a, tag, ld1, FL)
        a("s_mov_b64 exec, -1")
    a(f"s_cmp_ge_u32 s{S_TB}, 3\ns_cbranch_scc1 L_first_chunk")
    a.label("L_publish")
    publish()
    a(f"s_cmp_ge_u32 s{S_TB}, 3\ns_cbranch_scc1 L_published")
    a.label("L_first_chunk")
    need("kv1", 1); stamp(a, 6)
    kv_setup(1); kv_pieces(40)
    a("s_waitcnt vmcnt(0)")
    stamp(a, 14)
    a("s_barrier")
    stamp(a, 15)
    need("kv2", 2)
    kv_setup(2); kv_pieces(40)
    a(f"s_waitcnt vmcnt(20)\ns_cmp_ge_u32 s{S_TB}, 3\ns_cbranch_scc1 L_publish")
    a.label("L_published")
    a(f"s_waitcnt vmcnt(0)\ns_barrier\ns_mov_b64 exec, 0xff\n{ld1}")
    spin(a, "kv3", ld1, FL)
    a("s_mov_b64 exec, -1")
    kv_setup(3); kv_pieces(40)
    def mark_empty():
        a(f"""
        s_lshl_b32 s{S_T0}, s{S_TB}, 5
        s_add_u32 s{S_T0}, s{S_T0}, s{S_B}
        s_mul_i32 s{S_T0}, s{S_T0}, {OST}
        s_add_u32 s{S_T0}, s{S_T0}, {WS_O}
        s_lshl_b32 s{sO}, s{S_POS}, 10
        s_add_u32 s{sO}, s{sO}, s{S_T0}
        v_mov_b32 v{BUF}, -1
        v_mov_b32 v{BUF+1}, -1
        v_mov_b32 v{BUF+2}, -1
        v_mov_b32 v{BUF+3}, -1
        v_lshrrev_b32 v4, 4, v1
        v_mul_u32_u24 v4, {2*OST}, v4
        v_lshl_add_u32 v4, v3, 4, v4
        """)
        for i in range(16):
            a(f"buffer_store_dwordx4 {vr(BUF,4)}, v{LA}, {sr(SRD_WS,4)}, s{sO} offen sc1\ns_add_u32 s{sO}, s{sO}, {2*OST}")
        rem_off(a, sO, S_T0)
        for i in range(4):
            a(f"buffer_store_dwordx2 {vr(BUF,2)}, v4, {sr(SRD_WS,4)}, s{sO} offen sc1\ns_add_u32 s{sO}, s{sO}, {8*OST}")
        a(f"""
        s_lshl_b32 s{S_X0}, s{S_TB}, 7
        s_lshl_b32 s{S_T0}, s{S_GRP}, 2
        s_add_u32 s{S_X0}, s{S_X0}, s{S_T0}
        s_add_u32 s{S_X0}, s{S_X0}, {WS_F2}
        s_and_b32 s{S_X1}, s2, 7
        s_lshl_b32 s{S_X1}, s{S_X1}, 7
        s_add_u32 s{S_X1}, s{S_X1}, {WS_F2}
        """)
    def touch_wo():
        a(f"v_lshlrev_b32 v5, 7, v1\ns_lshr_b32 s{S_T0}, s2, 3\ns_mul_i32 s{S_T0}, s{S_T0}, {162*128}")
        for b in range(2):
            p = S_PTR + 4 + 6 * b
            a(f"s_mov_b32 s{SRD_G}, s{p}\ns_and_b32 s{SRD_G+1}, s{p+1}, 0xffff\ns_mov_b32 s{SRD_G+2}, {576*1152}")
            for i in range(3):
                a(f"s_add_u32 s{S_T1}, s{S_T0}, {8192*i}\nbuffer_load_dword v{BUF+4+3*b+i}, v5, {sr(SRD_G,4)}, s{S_T1} offen")
    for c in range(4, int(OPT.get('nch', 8))):
        if c == 6 and not OPT.get("notouch"): touch_wo()
        if c == 5: mark_empty()
        kv_setup(c); kv_pieces(40)
        a("s_waitcnt vmcnt(40)")
        if c == 5: flag(S_X0)
        a("s_barrier")
        if c in (4, 7): stamp(a, 1 if c == 4 else 2)
    def wo(b, pieces):
        p = S_PTR + 4 + 6 * b
        a(f"s_mov_b32 s{SRD_G}, s{p}\ns_and_b32 s{SRD_G+1}, s{p+1}, 0xffff\ns_mov_b32 s{SRD_G+2}, {576*1152}")
        pieces = list(pieces); issued = 0; guard = 0
        while pieces:
            n = pieces[0]; run = 1
            while run < min(3, len(pieces)) and pieces[run] == n + run and (n + run) % 6: run += 1
            a(f"s_mov_b32 m0, {(96*b + n)*WPIECE}\ns_mov_b32 s{sS}, {(36*PAIRS[n//6] + 6*(n%6))*1152}")
            if issued + run > guard: a("s_waitcnt vmcnt(48)"); guard = issued + 12
            for i in range(run):
                a(f"buffer_load_dwordx4 v{DWS[i]}, {sr(SRD_G,4)}, s{sS} offen offset:{i*WPIECE} lds")
            pieces = pieces[run:]; issued += run
    def freed(npb):
        busy = [(3*SLOT + h*HS + npb*PB, 3*SLOT + (h+1)*HS) for h in range(2)]
        return [n for n in range(93) if all((96+n+1)*WPIECE <= lo or (96+n)*WPIECE >= hi for lo, hi in busy)]
    def rows(row0, n, dst):
        m = (1 << (9 * n)) - 1
        a(f"""
        s_mov_b32 exec_lo, {hex(m & 0xffffffff)}
        s_mov_b32 exec_hi, {hex(m >> 32)}
        s_mov_b32 m0, {dst}
        s_mov_b32 s{sS}, {row0*1152}
        buffer_load_dwordx4 v{DW}, {sr(SRD_G,4)}, s{sS} offen lds
        """)
    a("s_mov_b32 exec_hi, 0x3fffff")
    wo(0, range(45))
    a("s_waitcnt vmcnt(45)\ns_barrier")
    wo(0, range(45, 93))
    ld2 = f"buffer_load_dword v{FL}, v{FA}, {sr(SRD_WS,4)}, s{S_X1} offen sc1"
    a(f"s_mov_b32 exec_hi, 0\n{ld2}")
    spin(a, "o", ld2, FL)
    a("s_mov_b32 exec_hi, 0x3fffff\ns_barrier")
    done = freed(0)
    wo(0, range(93, 96)); wo(1, done)
    for npb in LAST_BARS:
        a("s_barrier")
        wo(1, [n for n in freed(npb) if n not in done]); done = freed(npb)
    a(f"s_waitcnt vmcnt({len(done) - len(freed(0))})\ns_barrier")
    wo(1, [n for n in range(93) if n not in done])
    rows(574, 2, 63 * 2592)
    a("s_barrier")
    a("s_waitcnt vmcnt(56)")
    rows(558, 6, 0); rows(564, 6, WPIECE); rows(570, 4, 2 * WPIECE)
    a("s_waitcnt vmcnt(0)")
    stamp(a, 9)
    a("s_barrier")
    stamp_out(a)
    a("s_endpgm")
    a.label("L_ld_first")
    a(f"""
    s_waitcnt vmcnt(56)
    s_cmp_lg_u32 s2, 0
    s_cbranch_scc1 L_ld_second
    v_mov_b32 v{BUF}, 0
    v_mov_b32 v{BUF+1}, 0
    v_mov_b32 v{BUF+2}, 0
    v_mov_b32 v{BUF+3}, 0
    s_mov_b32 s{S_T0}, {WS_F1}
    """)
    for i in range(4): a(f"buffer_store_dwordx4 {vr(BUF,4)}, v{LA}, {sr(SRD_WS,4)}, s{S_T0} offen offset:{1024*i} sc1")
    a(f"""
    s_mov_b32 s{S_T0}, {WS_F2}
    buffer_store_dwordx4 {vr(BUF,4)}, v{LA}, {sr(SRD_WS,4)}, s{S_T0} offen sc1
    s_branch L_ld_second
    """)
    a.label("L_ld_ready")
    a(f"""
    v_mov_b32 v{FL}, 1
    s_mov_b64 exec, 1
    buffer_store_dword v{FL}, v{Z}, {sr(SRD_O,4)}, 0 offen sc1
    s_mov_b64 exec, -1
    s_branch L_ld_second
    """)

def build():
    a = Asm()
    a("s_cmp_ge_u32 s2, 256\ns_cbranch_scc1 L_exit")
    stamp(a, 0); stamp(a, 16, True)
    entry(a)
    a.late = True; a.isloader = True
    loader(a)
    a.late = False; a.isloader = False
    a.label("L_compute")
    phase1(a); stamp(a, 4); a.late = True
    att_setup(a)
    stamp(a, 7); stamp(a, 18, True)
    if OPT.get("prio"):
        a(f"s_cmp_ge_u32 s{S_W}, 4\ns_cbranch_scc{1 if OPT['prio'] == 'old' else 0} L_noprio\ns_setprio 1")
        a.label("L_noprio")
    if OPT.get("align"): a(".p2align 6")
    a.label("L_att_loop")
    att_chunk(a)
    a(f"s_add_u32 s{S_CH}, s{S_CH}, 1\ns_cmp_lt_u32 s{S_CH}, {int(OPT.get('nch', 8)) - 1}\ns_cbranch_scc1 L_att_loop")
    att_chunk(a, last=True)
    stamp(a, 8); stamp(a, 19, True)
    att_finish(a); phase3(a); a.p3_retries()
    att_slow(a)
    a.label("L_exit"); a("s_endpgm")
    return a, max(P1_END, P2_END, P3_END)

def emit(path):
    a, nv = build()
    assert nv <= 168, nv
    label = NAME + "_kernel"
    nv4 = (nv + 3) // 4 * 4
    s = open(f"cdna_kernels/{NAME}.s.ref").read().split("; Override launch")[0]
    s += "; @launch grid=(256,1,1) block=(576,1,1) lds=163840\n"
    s += f""".amdgcn_target "amdgcn-amd-amdhsa--gfx950"
.text
.globl {label}
.p2align 8
.type {label},@function
{label}:
{a.text()}.section .rodata,"a"
.p2align 6
.amdhsa_kernel {label}
  .amdhsa_next_free_vgpr {nv4}
  .amdhsa_next_free_sgpr {102 if PROF or OPT.get('delay') or OPT.get('hold') else 72}
  .amdhsa_accum_offset {nv4}
  .amdhsa_group_segment_fixed_size 0
  .amdhsa_kernarg_size 80
  .amdhsa_user_sgpr_count 2
  .amdhsa_user_sgpr_kernarg_segment_ptr 1
  .amdhsa_system_sgpr_workgroup_id_x 1
.end_amdhsa_kernel
"""
    errs = check_hazards(a.lines) + check_waits(a.lines)
    for e in errs: print(e)
    if errs and not OPT.get("force"):
        print("NOT written:", path); sys.exit(1)
    open(path, "w").write(s)
    import subprocess
    r = subprocess.run([sys.executable, "cdna_unwritten_srd_check.py", path], capture_output=True, text=True)
    if r.returncode:
        print(r.stdout, r.stderr); open(path, "w").write(""); print("REMOVED:", path); sys.exit(1)
    print("wrote", path, "checks", "FAILED" if errs else "OK", len(a.lines), "lines", nv, "vgprs")

if __name__ == "__main__":
    for x in list(sys.argv):
        if x.startswith("-O"):
            k, v = (x[2:].split("=") + ["1"])[:2]; OPT[k] = v.replace("_", " "); sys.argv.remove(x)
    if "--prof" in sys.argv: PROF = True; sys.argv.remove("--prof")
    emit(sys.argv[1] if len(sys.argv) > 1 else f"cdna_kernels/{NAME}.s")
```
